```python
import torch

def _softmax(x, axis=-1):
    return torch.softmax(x, dim=axis)
def _gelu(x):
    return torch.nn.functional.gelu(x, approximate="tanh")
def _silu(x):
    return torch.nn.functional.silu(x)
def _sigmoid(x):
    return torch.sigmoid(x)
def _layernorm(x, axis=-1, eps=1e-5):
    m = x.mean(dim=axis, keepdim=True)
    v = x.var(dim=axis, keepdim=True, unbiased=False)
    return (x - m) / torch.sqrt(v + eps)
def _scatter_add(tgt, idx, src, axis=0):
    return tgt.clone().index_add_(axis, idx, src)
def _segment_sum(src, seg, n):
    out = torch.zeros((n,) + src.shape[1:], dtype=src.dtype)
    return out.index_add_(0, seg, src)
def _pad(x, pw):
    flat = tuple(v for pair in reversed(pw) for v in pair)
    return torch.nn.functional.pad(x, flat)

kernel_name = 'parallel_sum__spectral_fnet__dense_activation_relu__prompt'

def setup_inputs():

    _w = (lambda a: (lambda t: t.to(torch.bfloat16) if t.is_floating_point() else t)(torch.as_tensor(a)))
    def _A_setup():
        B, S, D = 1, 2048, 1024
        ns = torch.arange(S)[:, None] * torch.arange(S)[None, :]
        nd = torch.arange(D)[:, None] * torch.arange(D)[None, :]
        Ws_re = torch.cos(-2.0 * torch.pi * ns / S).to(float)
        Ws_im = torch.sin(-2.0 * torch.pi * ns / S).to(float)
        Wd_re = torch.cos(-2.0 * torch.pi * nd / D).to(float)
        Wd_im = torch.sin(-2.0 * torch.pi * nd / D).to(float)
        return {
            "x": _w((lambda *s: torch.randn(*s, dtype=torch.bfloat16) * 0.05)(B, S, D)),
            "dft_seq_re": _w(Ws_re),
            "dft_seq_im": _w(Ws_im),
            "dft_hid_re": _w(Wd_re),
            "dft_hid_im": _w(Wd_im),
        }
    _A_in = _A_setup()

    def _B_setup():
        B, S, D, Dff = 1, 2048, 1024, 3584
        return {
            "x": _w((lambda *s: torch.randn(*s, dtype=torch.bfloat16) * 0.05)(B, S, D)),
            "w1": _w((lambda *s: torch.randn(*s, dtype=torch.bfloat16) * 0.4)(D, Dff)),
            "w2": _w((lambda *s: torch.randn(*s, dtype=torch.bfloat16) * 0.4)(Dff, D)),
        }
    _B_in = _B_setup()

    return {
        "A_x": _A_in["x"],
        "A_dft_seq_re": _A_in["dft_seq_re"],
        "A_dft_seq_im": _A_in["dft_seq_im"],
        "A_dft_hid_re": _A_in["dft_hid_re"],
        "A_dft_hid_im": _A_in["dft_hid_im"],
        "B_x": _B_in["x"],
        "B_w1": _B_in["w1"],
        "B_w2": _B_in["w2"],
    }

def reference(A_x, A_dft_seq_re, A_dft_seq_im, A_dft_hid_re, A_dft_hid_im, B_x, B_w1, B_w2):
    def _A_ref(x, dft_seq_re, dft_seq_im, dft_hid_re, dft_hid_im):
        a = torch.einsum("bsd,ed->bse", x, dft_hid_re)
        b = torch.einsum("bsd,ed->bse", x, dft_hid_im)
        y = torch.einsum("ts,bse->bte", dft_seq_re, a) - torch.einsum("ts,bse->bte", dft_seq_im, b)
        return y

    def _B_ref(x, w1, w2):
        h = torch.einsum("bsd,df->bsf", x, w1)
        zero = torch.zeros_like(h)
        h = torch.maximum(h, zero)
        return torch.einsum("bsf,fd->bsd", h, w2)

    x = A_x
    xn = _layernorm(x, axis=-1)
    return x + _A_ref(xn, A_dft_seq_re, A_dft_seq_im, A_dft_hid_re, A_dft_hid_im) + _B_ref(xn, B_w1, B_w2)
```

```python
KN = "parallel_sum__spectral_fnet__dense_activation_relu__prompt"


class Asm:
    def __init__(self):
        self.L = []
        self.nlab = 0
        self.ds = []
        self.vm = []

    def e(self, s):
        self.L.append("    " + s)

    def c(self, s):
        self.L.append("    ; " + s)

    def label(self, name):
        self.L.append(name + ":")

    def newlabel(self, base="L"):
        self.nlab += 1
        return f"{base}_{self.nlab}"

    def raw(self, s):
        self.L.append(s)

    def ds_issue(self, text, tag):
        self.e(text)
        self.ds.append(tag)

    def ds_need(self, tags):
        if not isinstance(tags, (list, set)):
            tags = [tags]
        last = -1
        for i, t in enumerate(self.ds):
            if t in tags:
                last = i
        if last < 0:
            return False
        n = len(self.ds) - 1 - last
        n = min(n, 15)
        self.e(f"s_waitcnt lgkmcnt({n})")
        self.ds = self.ds[len(self.ds) - n:] if n > 0 else []
        return True

    def ds_drain(self):
        self.e("s_waitcnt lgkmcnt(0)")
        self.ds = []

    def vm_issue(self, text, tag):
        self.e(text)
        self.vm.append(tag)

    def vm_need(self, tags):
        if not isinstance(tags, (list, set)):
            tags = [tags]
        last = -1
        for i, t in enumerate(self.vm):
            if t in tags:
                last = i
        if last < 0:
            return False
        n = len(self.vm) - 1 - last
        n = min(n, 63)
        self.e(f"s_waitcnt vmcnt({n})")
        self.vm = self.vm[len(self.vm) - n:] if n > 0 else []
        return True

    def vm_drain(self):
        self.e("s_waitcnt vmcnt(0)")
        self.vm = []

    def text(self, verbose=False):
        import hazard
        out, n = hazard.fix(self.L, verbose)
        return "\n".join(out) + "\n"


def vr(a, n=1):
    return f"v{a}" if n == 1 else f"v[{a}:{a+n-1}]"


def sr(a, n=1):
    return f"s{a}" if n == 1 else f"s[{a}:{a+n-1}]"


def srd(A, d, plo, nbytes):
    A.e(f"s_mov_b32 s{d}, s{plo}")
    A.e(f"s_and_b32 s{d+1}, s{plo+1}, 0xffff")
    A.e(f"s_mov_b32 s{d+2}, {nbytes}")
    A.e(f"s_mov_b32 s{d+3}, 0x00020000")


def kernel_begin(A, name):
    A.raw(f".globl {name}")
    A.raw(".p2align 8")
    A.raw(f".type {name},@function")
    A.raw(f"{name}:")


def descriptor(A, name, vgpr=256, sgpr=102):
    A.raw(".p2align 6")
    A.raw(f".amdhsa_kernel {name}")
    for l in [f".amdhsa_next_free_vgpr {vgpr}", f".amdhsa_next_free_sgpr {sgpr}", f".amdhsa_accum_offset {vgpr}",
              ".amdhsa_group_segment_fixed_size 0", ".amdhsa_kernarg_size 88", ".amdhsa_user_sgpr_count 2",
              ".amdhsa_user_sgpr_kernarg_segment_ptr 1", ".amdhsa_system_sgpr_workgroup_id_x 1"]:
        A.raw("  " + l)
    A.raw(".end_amdhsa_kernel")
```

```python
import re

TRANS = ("v_exp_", "v_log_", "v_rcp_", "v_rsq_", "v_sqrt_", "v_sin_", "v_cos_")


def regs_of(tok):
    tok = tok.strip().lstrip("-").strip("|")
    m = re.fullmatch(r"([vs])(\d+)", tok)
    if m:
        return {(m.group(1), int(m.group(2)))}
    m = re.fullmatch(r"([vs])\[(\d+):(\d+)\]", tok)
    if m:
        return {(m.group(1), i) for i in range(int(m.group(2)), int(m.group(3)) + 1)}
    if tok in ("vcc", "vcc_lo", "vcc_hi"):
        return {("s", "vcc")}
    if tok == "m0":
        return {("s", "m0")}
    if tok in ("exec", "exec_lo", "exec_hi"):
        return {("s", "exec")}
    return set()


class I:
    def __init__(self, text):
        self.text = text
        t = text.split(";")[0].strip()
        self.op = t.split()[0] if t else ""
        rest = t[len(self.op):].strip()
        ops = [o.strip() for o in rest.split(",")] if rest else []
        toks = []
        for o in ops:
            toks.append(o.split()[0] if o else "")
        self.toks = toks
        self.mods = rest
        op = self.op
        self.valu = op.startswith("v_") and not op.startswith("v_mfma") and op != "v_nop"
        self.mfma = op.startswith("v_mfma")
        self.dot = op.startswith("v_dot")
        self.trans = op.startswith(TRANS)
        self.vmem = op.startswith(("buffer_", "global_", "flat_"))
        self.ds = op.startswith("ds_")
        self.salu = op.startswith("s_")
        self.dpp = self.valu and (" row_" in rest or " wave_" in rest or "quad_perm" in rest or op.endswith("_dpp"))
        self.perm = op.startswith("v_permlane")
        self.ldsdma = self.vmem and re.search(r"\blds\b", rest) is not None
        self.states = 1
        if op == "s_nop":
            self.states = int(toks[0], 0) + 1
        R = [regs_of(x) for x in toks]
        self.w, self.r = set(), set()
        self.srcC = set()
        self.widestore = set()
        self.lanesel = set()
        if self.mfma:
            self.w = R[0]; self.r = R[1] | R[2] | R[3]; self.srcC = R[3]; self.ab = R[1] | R[2]
            self.passes = 8 if "32x32x16" in op else 4
        elif self.valu:
            if self.perm and "swap" in op:
                self.w = R[0] | R[1]; self.r = R[0] | R[1]
            else:
                nd = 2 if ("_co_" in op and not op.startswith("v_cmp")) else 1
                for x in R[:nd]:
                    self.w |= x
                for x in R[nd:]:
                    self.r |= x
                if op.startswith(("v_dot2c", "v_fmac", "v_mac", "v_writelane")) or self.dpp:
                    self.r |= R[0]
                if op.startswith("v_cmpx"):
                    self.w |= {("s", "exec")}
                if op.startswith(("v_readlane", "v_writelane")):
                    self.lanesel = R[2]
        elif self.vmem:
            if "store" in op or "atomic" in op:
                for x in R:
                    self.r |= x
                if re.search(r"x[34]$", op):
                    self.widestore = R[0] if op.startswith("buffer") else R[1]
            elif self.ldsdma:
                for x in R:
                    self.r |= x
                self.r |= {("s", "m0")}
            else:
                self.w = R[0]
                for x in R[1:]:
                    self.r |= x
        elif self.ds:
            if "read" in op:
                self.w = R[0]
                for x in R[1:]:
                    self.r |= x
            else:
                for x in R:
                    self.r |= x
        elif self.salu:
            if op.startswith(("s_cmp", "s_cbranch", "s_branch", "s_waitcnt", "s_barrier", "s_nop", "s_setprio", "s_endpgm", "s_sleep", "s_bitcmp")):
                for x in R:
                    self.r |= x
            elif R:
                self.w = R[0]
                for x in R[1:]:
                    self.r |= x


def V(s):
    return {x for x in s if x[0] == "v"}


def S(s):
    return {x for x in s if x[0] == "s"}


def need(p, c):
    n = 0
    if p.mfma:
        big = {4: 8, 8: 12}[p.passes]
        if c.mfma:
            if p.w & c.ab:
                n = max(n, big)
            if p.w & c.srcC and not (p.w == c.srcC and p.passes == c.passes):
                n = max(n, big - 2)
            if p.w & c.w and not (p.w == c.w):
                n = max(n, big)
        elif (c.valu or c.vmem or c.ds) and (p.w & (c.r | c.w)):
            n = max(n, big)
        if (c.valu or c.ds or c.vmem) and (p.srcC & c.w):
            n = max(n, {4: 3, 8: 7}[p.passes])
    if p.valu:
        if c.mfma and V(p.w) & c.r:
            n = max(n, 3 if p.dot else 2)
        if c.mfma and ("s", "exec") in p.w:
            n = max(n, 4)
        if (c.dpp or c.perm) and V(p.w) & c.r:
            n = max(n, 2)
        if c.op.startswith(("v_readlane", "v_readfirstlane")) and V(p.w) & c.r:
            n = max(n, 1)
        if c.vmem and S(p.w) & c.r:
            n = max(n, 5)
        if c.valu and S(p.w) & c.r:
            n = max(n, 2)
        if c.lanesel & S(p.w):
            n = max(n, 4)
        if p.trans and (c.valu or c.mfma or c.vmem or c.ds) and p.w & c.r:
            n = max(n, 1)
        if p.dot and (p.w & (c.r | c.w)):
            if c.op == p.op:
                srcs = set()
                for t in c.toks[1:]:
                    srcs |= regs_of(t)
                if p.op.startswith("v_dot2c"):
                    if p.w & srcs:
                        n = max(n, 3)
                else:
                    ab = regs_of(c.toks[1]) | regs_of(c.toks[2])
                    if p.w & ab:
                        n = max(n, 3)
            else:
                n = max(n, 3)
        if ("s", "exec") in p.w and (c.dpp):
            n = max(n, 5)
        if ("s", "exec") in p.w and (c.perm or c.op.startswith(("v_readlane", "v_readfirstlane", "v_writelane"))):
            n = max(n, 4)
    if p.salu and ("s", "m0") in p.w and c.ldsdma:
        n = max(n, 1)
    if p.widestore and p.widestore & c.w:
        n = max(n, 2 if (c.valu or c.mfma) else 1)
    return n


def is_instr(line):
    t = line.strip()
    return line.startswith("    ") and t and not t.startswith((";", "."))


def fix(lines, verbose=False):
    out = []
    hist = []
    labels = {}
    nfix = 0
    for ln in lines:
        if not is_instr(ln):
            out.append(ln)
            t = ln.strip()
            if t.endswith(":") and not ln.startswith(" "):
                labels[t[:-1]] = len(out)
            continue
        c = I(ln.strip())
        d = 0
        req = 0
        for p in reversed(hist):
            if d >= 12:
                break
            req = max(req, need(p, c) - d)
            d += p.states
        if req > 0:
            out.append(f"    s_nop {req-1}")
            hist.append(I(f"s_nop {req-1}"))
            nfix += 1
            if verbose:
                print(f"hazard: +{req} before: {ln.strip()}")
        out.append(ln)
        hist.append(c)
        hist = hist[-16:]
        if c.op in ("s_branch", "s_endpgm"):
            pass
    lab = {}
    for i, ln in enumerate(out):
        t = ln.strip()
        if t.endswith(":") and not ln.startswith(" "):
            lab[t[:-1]] = i
    for i, ln in enumerate(out):
        if is_instr(ln) and ln.strip().startswith(("s_cbranch", "s_branch")):
            tgt = ln.split()[1]
            if tgt not in lab:
                continue
            tail = [I(x.strip()) for x in out[max(0, i-20):i+1] if is_instr(x)]
            head = [I(x.strip()) for x in out[lab[tgt]:lab[tgt]+30] if is_instr(x)]
            dh = 0
            for c in head:
                if dh >= 12:
                    break
                d = dh
                for p in reversed(tail):
                    if d >= 12:
                        break
                    if need(p, c) > d:
                        raise RuntimeError(f"hazard across branch to {tgt}: {p.text} -> {c.text} (have {d})")
                    d += p.states
                dh += c.states
    return out, nfix
```

```python
from asmlib import *

WS_H = 0
H_PB = 224 * 1024
WS_AT = 16 << 20
WS_BT = 18 << 20
AT_BLK = 33 * 1024
AT_PE = 9 * AT_BLK
AT_TP = 2 * AT_PE
WS_ST = 20 << 20
WS_FLAG = (20 << 20) + 65536
WS_PART = 24 << 20
WS_DBG = 40 << 20
WS_BYTES = 268435456

STG = 49152
L_PM = 3 * STG
L_TM = L_PM + 4096
L_R = L_TM + 4096
L_CS = L_R + 1024
K1_LDS = L_CS + 8192
L_CS = 0
K1_LDS_H = L_R + 1024

S_X, S_W, S_WS, S_D = 16, 20, 24, 28
S_WAVE, S_XCD, S_J, S_M, S_F = 32, 33, 34, 35, 36
S_DBG = 64


def stamp(A, idx, sreg=90, enable=False):
    if not enable:
        return
    A.e(f"s_memtime s[{sreg}:{sreg+1}]")
    A.e("s_waitcnt lgkmcnt(0)")
    A.e(f"v_writelane_b32 v{STAMP_V}, s{sreg}, {idx}")


STAMP_V = 7


def k1h_consumer(A, cfg):
    dbg = cfg.get("stamps", False)
    ACC = 128
    FS = [64, 88]
    AP = [112, 113, 114, 115]
    AT = [116, 117]
    VL, VT0, VT1, VT2 = 1, 2, 3, 4
    sDelta, sCnt, sSlot = 40, 41, 42
    A.c("---- K1 h consumer ----")
    fine = cfg.get("fine", False)
    stp = [0]
    if cfg.get("prio", 1):
        A.e(f"s_setprio {cfg.get('prio', 1)}")
    A.e(f"s_lshr_b32 s43, s{S_WAVE}, 1")
    A.e(f"s_and_b32 s44, s{S_WAVE}, 1")
    A.e(f"v_and_b32 v{VT0}, 31, v{VL}")
    A.e(f"v_lshlrev_b32 v{VT0}, 7, v{VT0}")
    A.e(f"s_lshl_b32 s45, s43, 14")
    A.e(f"v_add_u32 v{VT0}, s45, v{VT0}")
    A.e(f"v_lshrrev_b32 v{VT1}, 5, v{VL}")
    A.e(f"v_bfe_u32 v{VT2}, v{VL}, 1, 3")
    A.e(f"v_xor_b32 v{VT1}, v{VT1}, v{VT2}")
    A.e(f"v_lshl_add_u32 v{AP[0]}, v{VT1}, 4, v{VT0}")
    for j in range(1, 4):
        A.e(f"v_xor_b32 v{AP[j]}, {j << 5}, v{AP[0]}")
    A.e(f"v_lshrrev_b32 v{VT0}, 5, v{VL}")
    A.e(f"v_bfe_u32 v{VT1}, v{VL}, 2, 2")
    A.e(f"v_lshl_add_u32 v{VT0}, v{VT0}, 3, v{VT1}")
    A.e(f"v_lshlrev_b32 v{VT0}, 8, v{VT0}")
    A.e(f"s_lshl_b32 s45, s44, 1")
    A.e(f"v_xor_b32 v{VT1}, s45, v{VT1}")
    A.e(f"v_lshl_add_u32 v{VT0}, v{VT1}, 6, v{VT0}")
    A.e(f"v_bfe_u32 v{VT1}, v{VL}, 4, 1")
    A.e(f"v_lshl_add_u32 v{VT0}, v{VT1}, 5, v{VT0}")
    A.e(f"v_and_b32 v{VT1}, 1, v{VL}")
    A.e(f"v_lshl_add_u32 v{VT0}, v{VT1}, 4, v{VT0}")
    A.e(f"v_bfe_u32 v{VT1}, v{VL}, 1, 1")
    A.e(f"v_lshl_add_u32 v{AT[0]}, v{VT1}, 3, v{VT0}")
    A.e(f"v_xor_b32 v{AT[1]}, 64, v{AT[0]}")
    PF = cfg.get("pf", 0)
    VPF, VDUM = 118, 119
    if PF:
        A.e(f"s_lshl_b32 s45, s{S_M}, 1")
        A.e(f"s_add_u32 s45, s45, s43")
        A.e(f"s_lshr_b32 s46, s45, 3")
        A.e(f"s_and_b32 s45, s45, 7")
        A.e(f"s_lshl_b32 s45, s45, 7")
        A.e(f"s_add_u32 s45, s45, s46")
        A.e(f"v_lshl_add_u32 v{VT0}, v{VL}, 1, s45")
        A.e(f"v_sub_u32 v{VT1}, 2048, v{VT0}")
        A.e(f"s_cmp_eq_u32 s44, 1")
        A.e(f"s_cselect_b64 vcc, -1, 0")
        A.e(f"v_cndmask_b32 v{VT0}, v{VT0}, v{VT1}, vcc")
        A.e(f"v_lshlrev_b32 v{VT0}, 11, v{VT0}")
        A.e(f"s_lshr_b32 s45, s37, 1")
        A.e(f"s_lshl_b32 s45, s45, 7")
        A.e(f"s_add_u32 s45, s45, 256")
        A.e(f"v_add_u32 v{VT0}, s45, v{VT0}")
        A.e(f"s_and_b32 s45, s{S_M}, 1")
        A.e(f"s_lshl_b32 s45, s45, 7")
        A.e(f"s_lshl_b32 s46, s{S_F}, 8")
        A.e(f"s_add_u32 s45, s45, s46")
        A.e(f"s_add_u32 s46, s{S_WAVE}, 2")
        A.e(f"s_mul_i32 s46, s46, {64*7168}")
        A.e(f"s_add_u32 s46, s46, s45")
        A.e(f"v_mul_u32_u24 v{VT1}, 7168, v{VL}")
        A.e(f"v_add_u32 v{VT1}, s46, v{VT1}")
        A.e(f"buffer_load_dword v{VDUM}, v{VT1}, {sr(S_W, 4)}, 0 offen")
        A.e(f"buffer_load_dword v{VDUM}, v{VT0}, {sr(S_X, 4)}, 0 offen")
        if PF == 2:
            for i in range(3):
                A.e(f"v_add_u32 v{VT1}, {4*64*7168}, v{VT1}")
                A.e(f"buffer_load_dword v{VDUM}, v{VT1}, {sr(S_W, 4)}, 0 offen")
        else:
            A.e(f"v_and_b32 v{VT1}, 15, v{VL}")
            A.e(f"s_lshl_b32 s46, s{S_WAVE}, 4")
            A.e(f"s_add_u32 s46, s46, {6*64}")
            A.e(f"v_add_u32 v{VT1}, s46, v{VT1}")
            A.e(f"v_mul_u32_u24 v{VT1}, 7168, v{VT1}")
            A.e(f"v_add_u32 v{VPF}, s45, v{VT1}")
    for r in range(128):
        A.e(f"v_mov_b32 v{ACC + r}, 0")
    A.e(f"s_mov_b32 s{sSlot}, 0")
    A.e(f"s_mov_b32 s59, {STG}")

    def reads(j, fs):
        b = FS[fs]
        R = []
        for nl in range(2):
            for q in range(2):
                R.append((f"ds_read_b64_tr_b16 {vr(b + nl*4 + q*2, 2)}, v{AT[nl]} offset:{32768 + j*4096 + q*1024}", (fs, "T", nl)))
        P = [(f"ds_read_b128 {vr(b + 8 + mb*4, 4)}, v{AP[j]} offset:{mb*4096}", (fs, "P", mb)) for mb in range(4)]
        X = [(f"ds_read_b128 {vr(16 + 4*(i % 8), 4)}, v{AP[j]} offset:{(i & 3)*4096}", (fs, "X", i)) for i in range(cfg.get("xr", 0))]
        return [R[0], R[1], P[0], R[2], R[3], P[1], P[2], P[3]] + X

    def mini_reads(fs):
        b = FS[fs]
        T = [(f"ds_read_b128 {vr(b + nl*4, 4)}, v{AT[0]} offset:{nl*512}", (fs, "T", nl)) for nl in range(2)]
        P = [(f"ds_read_b128 {vr(b + 8 + mb*4, 4)}, v{AP[0]} offset:{mb*512}", (fs, "P", mb)) for mb in range(4)]
        Rr = [(f"ds_read_b32 v{8 + 2*mb}, v{AP[1]} offset:{mb*128}", ("R", mb)) for mb in range(4)]
        return [T[0], P[0], T[1], P[1], P[2], P[3]] + Rr

    def substep(fs, rd, pre=None, barrier_at=None, per_gap=2):
        b = FS[fs]
        rd = list(rd)
        g = 0
        for mb in range(4):
            for nl in range(2):
                A.ds_need([(fs, "T", nl), (fs, "P", mb)])
                A.e(f"v_mfma_f32_32x32x16_bf16 {vr(ACC + (mb*2+nl)*16, 16)}, {vr(b + nl*4, 4)}, {vr(b + 8 + mb*4, 4)}, {vr(ACC + (mb*2+nl)*16, 16)}")
                if pre and g in pre:
                    for t in pre[g]:
                        if t == "BAR":
                            A.ds_drain()
                            if fine:
                                stamp(A, 8 + 2*stp[0], enable=True)
                            A.e("s_barrier")
                            if fine:
                                stamp(A, 9 + 2*stp[0], enable=True)
                                stp[0] += 1
                        else:
                            A.e(t)
                if barrier_at is None or g >= barrier_at:
                    for _ in range(per_gap):
                        if rd:
                            t, tag = rd.pop(0)
                            A.ds_issue(t, tag)
                g += 1
        assert not rd

    A.e("s_barrier")
    stamp(A, 1, enable=dbg)
    for t, tag in reads(0, 0):
        A.ds_issue(t, tag)
    A.e(f"s_mov_b32 s{sCnt}, 15")
    loop = A.newlabel("L_k1c_loop")
    A.label(loop)
    entry_ds = list(A.ds)
    BA = cfg.get("bar_at", 1)

    def body(last):
        pre0 = None
        if PF == 1 and not last:
            pre0 = {5: [f"buffer_load_dword v{VDUM}, v{VPF}, {sr(S_W, 4)}, 0 offen"], 7: [f"v_add_u32 v{VPF}, {64*7168}, v{VPF}"]}
        substep(0, reads(1, 1), pre=pre0)
        substep(1, reads(2, 0))
        if not last:
            pre = {0: [f"s_add_u32 s{sSlot}, s{sSlot}, 1", f"s_cmp_eq_u32 s{sSlot}, 3",
                       f"s_cselect_b32 s{sDelta}, {-2*STG & 0xffffffff}, s59", f"s_cselect_b32 s{sSlot}, 0, s{sSlot}"]}
            substep(0, reads(3, 1), pre=pre)
            upd = [f"v_add_u32 v{r}, s{sDelta}, v{r}" for r in [AT[0], AT[1], AP[0]]]
            upd2 = [f"v_add_u32 v{r}, s{sDelta}, v{r}" for r in AP[1:]]
            pre = {0: upd, 6: upd2}
            pre.setdefault(BA, [])
            pre[BA] = pre[BA] + ["BAR"]
            substep(1, reads(0, 0), pre=pre, barrier_at=BA)
        else:
            pre = {4: [f"v_and_b32 v{VT0}, 31, v{VL}", f"s_lshl_b32 s45, s43, 7", f"v_add_u32 v{VT0}, s45, v{VT0}"],
                   5: [f"v_and_b32 v{VT1}, 19, v{VL}", f"v_bfe_u32 v{VT2}, v{VL}, 2, 1", f"v_lshl_add_u32 v{VT1}, v{VT2}, 3, v{VT1}"],
                   6: [f"v_bfe_u32 v{VT2}, v{VL}, 3, 1", f"v_lshl_add_u32 v{VT1}, v{VT2}, 2, v{VT1}", f"s_lshl_b32 s45, s44, 6"],
                   7: [f"v_add_u32 v{VT1}, s45, v{VT1}", f"v_lshrrev_b32 v{VT2}, 5, v{VL}", f"v_lshl_add_u32 v{VT1}, v{VT2}, 7, v{VT1}"]}
            substep(0, reads(3, 1), pre=pre)
            pre = {0: [f"v_lshlrev_b32 v{AP[0]}, 4, v{VT0}", f"v_add_u32 v{AP[0]}, {L_PM}, v{AP[0]}",
                       f"v_lshlrev_b32 v{AP[1]}, 2, v{VT0}", f"v_add_u32 v{AP[1]}, {L_R}, v{AP[1]}"],
                   1: [f"v_lshlrev_b32 v{AT[0]}, 4, v{VT1}", f"v_add_u32 v{AT[0]}, {L_TM}, v{AT[0]}"]}
            BL = cfg.get("bar_last", 5)
            pre.setdefault(BL, [])
            pre[BL] = pre[BL] + ["BAR"]
            substep(1, mini_reads(0), pre=pre, barrier_at=BL, per_gap=4)
            substep(0, [])

    for _ in range(15 if fine else 1):
        body(False)
    assert A.ds == entry_ds, (A.ds, entry_ds)
    if not fine:
        A.e(f"s_sub_u32 s{sCnt}, s{sCnt}, 1")
        A.e(f"s_cmp_lg_u32 s{sCnt}, 0")
        A.e(f"s_cbranch_scc1 {loop}")
    body(True)
    A.ds_drain()
    stamp(A, 2, enable=dbg)
    A.e(f"s_lshl_b32 s45, s{S_M}, 3")
    A.e(f"s_lshl_b32 s46, s43, 2")
    A.e(f"s_add_u32 s45, s45, s46")
    A.e(f"s_mul_i32 s45, s45, {H_PB}")
    A.e(f"s_lshl_b32 s46, s{S_F}, 13")
    A.e(f"s_add_u32 s45, s45, s46")
    A.e(f"s_lshl_b32 s46, s44, 12")
    A.e(f"s_add_u32 s45, s45, s46")
    if WS_H:
        A.e(f"s_add_u32 s45, s45, {WS_H}")
    A.e(f"v_lshlrev_b32 v{VT0}, 4, v{VL}")
    aux = cfg.get("h_store_aux", "")
    OUT = 16
    k = 0
    for mb in range(4):
        for nl in range(2):
            a = ACC + (mb*2+nl)*16
            o = OUT + (k % 4) * 8
            k += 1
            for i in range(8):
                A.e(f"v_pk_mul_f32 {vr(a+2*i, 2)}, {vr(a+2*i, 2)}, {vr(8+2*mb, 2)} op_sel_hi:[1,0]")
            for i in range(8):
                A.e(f"v_cvt_pk_bf16_f32 v{o+i}, v{a+2*i}, v{a+2*i+1}")
            for i in range(8):
                A.e(f"v_pk_max_i16 v{o+i}, v{o+i}, 0")
            for b in range(2):
                A.e(f"buffer_store_dwordx4 {vr(o+4*b, 4)}, v{VT0}, {sr(S_WS, 4)}, s45 offen offset:{(nl*2+b)*1024}{aux}")
        if mb < 3:
            A.e(f"s_add_u32 s45, s45, {H_PB}")
    stamp(A, 3, enable=dbg)


def k1h_producer(A, cfg):
    dbg = cfg.get("stamps", False)
    VL, VT0, VT1, VT2 = 1, 2, 3, 4
    VP = list(range(8, 16))
    VT = 16
    VSP, VST = 17, 18
    VA = list(range(20, 28))
    SUM, SQ = [28, 29], [30, 31]
    CS = list(range(32, 40))
    DP = 64
    DT = 96
    sPW, sKP, sKT, sLP, sLT, sTmp, sCnt, sRd, sOne, sLo, sHi, sIs = 40, 41, 42, 43, 44, 45, 46, 47, 48, 49, 50, 51
    A.c("---- K1 h producer ----")
    fine = cfg.get("fine", False)
    stp = [0]
    A.e(f"s_sub_u32 s{sPW}, s{S_WAVE}, 4")
    A.e(f"s_lshr_b32 s52, s{sPW}, 1")
    A.e(f"s_lshl_b32 s53, s{S_M}, 1")
    A.e(f"s_add_u32 s52, s52, s53")
    A.e(f"s_lshr_b32 s53, s52, 3")
    A.e(f"s_and_b32 s52, s52, 7")
    A.e(f"s_lshl_b32 s52, s52, 7")
    A.e(f"s_add_u32 s52, s52, s53")
    A.e(f"s_mov_b32 s60, s52")
    A.e(f"s_and_b32 s54, s{sPW}, 1")
    A.e(f"s_cmp_eq_u32 s54, 1")
    A.e(f"s_cselect_b32 s55, -1, 1")
    A.e(f"s_cselect_b32 s56, {2048*2048}, 0")
    A.e(f"s_lshl_b32 s57, s55, 15")
    A.e(f"s_lshl_b32 s55, s55, 11")
    A.e(f"s_mov_b32 s59, {STG}")
    A.e(f"v_lshrrev_b32 v{VT0}, 3, v{VL}")
    A.e(f"v_lshl_add_u32 v{VT0}, v{VT0}, 1, s52")
    A.e(f"v_mul_lo_u32 v{VT0}, v{VT0}, s55")
    A.e(f"v_add_u32 v{VT0}, s56, v{VT0}")
    A.e(f"v_and_b32 v{VT1}, 7, v{VL}")
    A.e(f"v_lshrrev_b32 v{VT2}, 4, v{VL}")
    A.e(f"v_xor_b32 v{VT1}, v{VT1}, v{VT2}")
    A.e(f"v_lshlrev_b32 v{VT1}, 4, v{VT1}")
    A.e(f"v_xor_b32 v{VT2}, 64, v{VT1}")
    A.e(f"v_mov_b32 v5, {1024*2048}")
    A.e(f"v_cmp_eq_u32 vcc, {2048*2048}, v{VT0}")
    A.e(f"s_mov_b32 s58, 0")
    A.e("s_nop 0")
    A.e(f"v_cndmask_b32 v5, v{VT0}, v5, vcc")
    A.e(f"v_add_u32 v{VP[0]}, v5, v{VT1}")
    for p in range(1, 8):
        A.e(f"s_add_u32 s58, s58, s57")
        A.e(f"v_add3_u32 v{VP[p]}, v{VT0}, s58, v{VT2 if p & 1 else VT1}")
    A.e(f"v_lshrrev_b32 v{VT0}, 4, v{VL}")
    A.e(f"v_and_b32 v{VT1}, 15, v{VL}")
    A.e(f"v_lshlrev_b32 v{VT2}, 2, v{VT0}")
    A.e(f"v_xor_b32 v{VT1}, v{VT1}, v{VT2}")
    A.e(f"v_mul_u32_u24 v{VT0}, 7168, v{VT0}")
    A.e(f"v_lshl_add_u32 v{VT0}, v{VT1}, 4, v{VT0}")
    A.e(f"s_lshl_b32 s52, s{S_F}, 8")
    A.e(f"s_mul_i32 s53, s{sPW}, {16*7168}")
    A.e(f"s_add_u32 s52, s52, s53")
    A.e(f"v_add_u32 v{VT}, s52, v{VT0}")
    ROT = cfg.get("rot", 0)
    if ROT:
        if ROT == "mf":
            A.e(f"s_lshl_b32 s{sKP}, s{S_M}, 1")
            A.e(f"s_add_u32 s{sKP}, s{sKP}, s{S_F}")
            A.e(f"s_lshl_b32 s{sKP}, s{sKP}, 7")
        elif ROT == "m":
            A.e(f"s_lshl_b32 s{sKP}, s{S_M}, 8")
        else:
            A.e(f"s_mul_i32 s{sKP}, s{S_XCD}, {ROT*128}")
        A.e(f"s_and_b32 s{sKP}, s{sKP}, 2047")
        A.e(f"s_mul_i32 s{sKT}, s{sKP}, {64*7168//128}")
    else:
        A.e(f"s_mov_b32 s{sKP}, 0")
        A.e(f"s_mov_b32 s{sKT}, 0")
    A.e(f"s_lshl_b32 s{sLP}, s{sPW}, 13")
    A.e(f"s_lshl_b32 s{sLT}, s{sPW}, 12")
    A.e(f"s_add_u32 s{sLT}, s{sLT}, 32768")
    A.e(f"s_mov_b32 s{sIs}, 0")
    auxP, auxT = cfg.get("auxP", ""), cfg.get("auxT", "")

    def dma_list():
        D = []
        for q in range(4):
            D.append([f"s_add_u32 m0, s{sLT}, {q*1024}", f"s_add_u32 s{sTmp}, s{sKT}, {q*28672}",
                      f"buffer_load_dwordx4 v{VT}, {sr(S_W, 4)}, s{sTmp} offen{auxT} lds"])
            for p in (2*q, 2*q+1):
                D.append([f"s_add_u32 m0, s{sLP}, {p*1024}", "s_nop 0",
                          f"buffer_load_dwordx4 v{VP[p]}, {sr(S_X, 4)}, s{sKP} offen{auxP} lds"])
        adv = [f"s_add_u32 s{sKP}, s{sKP}, 128", f"s_and_b32 s{sKP}, s{sKP}, 2047", f"s_mul_i32 s{sKT}, s{sKP}, {64*7168//128}",
               f"s_add_u32 s{sIs}, s{sIs}, 1", f"s_cmp_eq_u32 s{sIs}, 3",
               f"s_cselect_b32 s{sTmp}, {-2*STG & 0xffffffff}, s59", f"s_cselect_b32 s{sIs}, 0, s{sIs}",
               f"s_add_u32 s{sLP}, s{sLP}, s{sTmp}", f"s_add_u32 s{sLT}, s{sLT}, s{sTmp}"]
        return D, adv

    for st in range(2):
        D, adv = dma_list()
        for d in D:
            for t in d:
                A.e(t)
        for t in adv:
            A.e(t)
    stamp(A, 1, enable=dbg)
    A.e(f"v_lshrrev_b32 v{VT0}, 2, v{VL}")
    A.e(f"v_and_b32 v{VT1}, 3, v{VT0}")
    A.e(f"v_xor_b32 v{VT1}, s{sPW}, v{VT1}")
    A.e(f"v_lshlrev_b32 v{VT0}, 8, v{VT0}")
    A.e(f"v_lshl_add_u32 v{VT0}, v{VT1}, 6, v{VT0}")
    A.e(f"v_and_b32 v{VT1}, 3, v{VL}")
    A.e(f"v_lshl_add_u32 v{VST}, v{VT1}, 4, v{VT0}")
    for r in CS:
        A.e(f"v_mov_b32 v{r}, 0")
    A.e(f"s_mov_b32 s{sRd}, 0")
    VFA, VFL, VSA, VSD = 20, 21, 22, 44
    A.e(f"v_and_b32 v{VFA}, 31, v{VL}")
    A.e(f"v_lshlrev_b32 v{VFA}, 2, v{VFA}")
    A.e(f"v_lshl_add_u32 v{VT0}, v{VL}, 1, s60")
    A.e(f"v_mul_lo_u32 v{VT0}, v{VT0}, s55")
    A.e(f"v_add_u32 v{VT0}, s56, v{VT0}")
    A.e(f"v_mov_b32 v5, {1024*2048}")
    A.e(f"v_cmp_eq_u32 vcc, {2048*2048}, v{VT0}")
    A.e(f"v_cndmask_b32 v{VT0}, v{VT0}, v5, vcc")
    A.e(f"v_lshrrev_b32 v{VSA}, 8, v{VT0}")
    A.e(f"s_mov_b32 s61, {WS_ST}")
    if cfg.get("zflag", True):
        A.e(f"s_lshl_b32 s52, s2, 7")
        A.e(f"s_add_u32 s52, s52, {WS_FLAG}")
        A.e(f"v_mov_b32 v5, 0")
        A.e(f"buffer_store_dword v5, v{VFA}, {sr(S_WS, 4)}, s52 offen")
    X0 = 1 if cfg.get("zflag", True) else 0

    def step(issue, vm, pre=None, post=None):
        if fine:
            stamp(A, 8 + 3*stp[0], enable=True)
        A.e(f"s_waitcnt vmcnt({vm})")
        if fine:
            stamp(A, 9 + 3*stp[0], enable=True)
        A.e("s_barrier")
        if fine:
            stamp(A, 10 + 3*stp[0], enable=True)
            stp[0] += 1
        for q in range(4):
            A.ds_issue(f"ds_read_b128 {vr(DT + 4*q, 4)}, v{VST} offset:{32768 + q*4096}", ("T", q))
        if pre:
            pre()
        D, adv = dma_list() if issue else ([], [])
        W = []
        for q in range(4):
            for hh in range(2):
                w = []
                for i in (2*hh, 2*hh+1):
                    w.append(f"v_lshlrev_b32 v{DP + 2*i}, 16, v{DT + 4*q + i}")
                    w.append(f"v_and_b32 v{DP + 2*i + 1}, 0xffff0000, v{DT + 4*q + i}")
                for i in (2*hh, 2*hh+1):
                    w.append(f"v_add_f32 v{CS[2*i]}, v{CS[2*i]}, v{DP + 2*i}")
                    w.append(f"v_add_f32 v{CS[2*i+1]}, v{CS[2*i+1]}, v{DP + 2*i + 1}")
                W.append((("T", q), w))
        if cfg.get("nostats"):
            W = [(t, []) for t, w in W]
        lead = cfg.get("dma_lead", 4)
        for _ in range(lead):
            if D:
                for t in D.pop(0):
                    A.e(t)
        for tag, w in W:
            A.ds_need([tag])
            for t in w:
                A.e(t)
            if D:
                for t in D.pop(0):
                    A.e(t)
        while D:
            for t in D.pop(0):
                A.e(t)
        for t in adv:
            A.e(t)
        if post:
            post()
        A.e(f"s_add_u32 s{sRd}, s{sRd}, 1")
        A.e(f"s_cmp_eq_u32 s{sRd}, 3")
        A.e(f"s_cselect_b32 s{sTmp}, {-2*STG & 0xffffffff}, s59")
        A.e(f"s_cselect_b32 s{sRd}, 0, s{sRd}")
        A.e(f"v_add_u32 v{VST}, s{sTmp}, v{VST}")

    def flag_load():
        A.e(f"buffer_load_dword v{VFL}, v{VFA}, {sr(S_DBG, 4)}, 0 offen sc1")

    def flag_check():
        A.label("L_k1p_poll")
        A.e(f"v_cmp_ne_u32 vcc, 0, v{VFL}")
        A.e(f"s_cmp_eq_u64 vcc, -1")
        A.e(f"s_cbranch_scc1 L_k1p_ok")
        A.e("s_sleep 8")
        flag_load()
        A.e("s_waitcnt vmcnt(0)")
        A.e("s_branch L_k1p_poll")
        A.label("L_k1p_ok")
        A.e(f"buffer_load_dwordx2 {vr(VSD, 2)}, v{VSA}, {sr(S_WS, 4)}, s61 offen sc1")

    def pm_write():
        A.e(f"s_lshl_b32 s53, s{sPW}, 6")
        A.e(f"v_add_u32 v5, s53, v{VL}")
        A.e(f"v_lshlrev_b32 v6, 4, v5")
        A.e(f"v_lshlrev_b32 v5, 2, v5")
        A.e(f"v_add_u32 v6, {L_PM}, v6")
        A.e(f"v_add_u32 v5, {L_R}, v5")
        A.e(f"v_mov_b32 v48, v{VSD}")
        A.e(f"v_and_b32 v49, 0xffff, v{VSD}")
        A.e(f"v_mov_b32 v50, 0")
        A.e(f"v_mov_b32 v51, 0")
        A.e(f"ds_write_b32 v5, v{VSD+1}")
        A.e(f"ds_write_b128 v6, v[48:51]")

    step(True, 12 + X0)
    NL = 9
    A.e(f"s_mov_b32 s{sCnt}, {NL}")
    loop = A.newlabel("L_k1p_loop")
    A.label(loop)
    for _ in range(NL if fine else 1):
        step(True, 12)
    if not fine:
        A.e(f"s_sub_u32 s{sCnt}, s{sCnt}, 1")
        A.e(f"s_cmp_lg_u32 s{sCnt}, 0")
        A.e(f"s_cbranch_scc1 {loop}")
    step(True, 12, post=flag_load)
    step(True, 13)
    step(True, 12, pre=flag_check)
    step(True, 13)
    step(False, 12, post=pm_write)
    step(False, 0)
    stamp(A, 2, enable=dbg)
    SCR = STG
    A.e(f"s_lshl_b32 s52, s{sPW}, 11")
    A.e(f"s_add_u32 s52, s52, {SCR}")
    A.e(f"v_lshlrev_b32 v{VT0}, 5, v{VL}")
    A.e(f"v_add_u32 v{VT0}, s52, v{VT0}")
    A.e(f"ds_write_b128 v{VT0}, {vr(CS[0], 4)}")
    A.e(f"ds_write_b128 v{VT0}, {vr(CS[4], 4)} offset:16")
    A.e(f"v_and_b32 v{VT1}, 31, v{VL}")
    A.e(f"v_lshrrev_b32 v{VT2}, 5, v{VL}")
    A.e(f"v_lshlrev_b32 v5, 2, v{VT1}")
    A.e(f"v_lshl_add_u32 v5, v{VT2}, 10, v5")
    A.e(f"v_add_u32 v5, s52, v5")
    A.e("s_waitcnt lgkmcnt(0)")
    for i in range(8):
        A.e(f"ds_read_b32 v{DT + i}, v5 offset:{i*128}")
    A.e(f"s_lshl_b32 s53, s{sPW}, 5")
    A.e(f"v_add_u32 v{VT1}, s53, v{VT1}")
    A.e(f"v_lshl_add_u32 v{VT1}, v{VT2}, 7, v{VT1}")
    A.e(f"v_lshlrev_b32 v{VT1}, 4, v{VT1}")
    A.e(f"v_add_u32 v{VT1}, {L_TM}, v{VT1}")
    A.e(f"v_mov_b32 v54, 0")
    A.e(f"v_mov_b32 v55, 0")
    A.e("s_waitcnt lgkmcnt(0)")
    for i in range(0, 8, 2):
        A.e(f"v_add_f32 v{DT + i}, v{DT + i}, v{DT + i + 1}")
    A.e(f"v_add_f32 v{DT}, v{DT}, v{DT + 2}")
    A.e(f"v_add_f32 v{DT + 4}, v{DT + 4}, v{DT + 6}")
    A.e(f"v_add_f32 v{DT}, v{DT}, v{DT + 4}")
    C0 = DT
    A.e(f"v_cvt_pk_bf16_f32 v48, -v{C0}, -v{C0}")
    A.e(f"v_and_b32 v48, 0xffff0000, v48")
    A.e(f"v_sub_f32 v49, -v{C0}, v48")
    A.e(f"v_cvt_pk_bf16_f32 v50, v49, v49")
    A.e(f"v_and_b32 v50, 0xffff0000, v50")
    A.e(f"v_sub_f32 v49, v49, v50")
    A.e(f"v_cvt_pk_bf16_f32 v53, v49, 0")
    A.e(f"v_lshrrev_b32 v48, 16, v48")
    A.e(f"v_or_b32 v52, v48, v50")
    A.e(f"ds_write_b128 v{VT1}, v[52:55]")
    A.e("s_waitcnt lgkmcnt(0)")
    A.e("s_barrier")
    stamp(A, 3, enable=dbg)
```

```python
from asmlib import *
from k1h import *

KSTR = 32 * 528
L_T2 = 4 * KSTR
L_RA = 69888
L_XR = L_RA + 65536
OOB = 0x40000000


def k1_special(A, cfg):
    dbg = cfg.get("stamps", False)
    aux = cfg.get("s_store_aux", "")
    VL, T0, T1, T2_, T3 = 1, 2, 3, 4, 5
    VC = 6
    RO = [8, 9, 10, 11]
    Q = 64
    SH = 12
    VP = [20, 21]
    sQB, sKind, sPE, sHB, sTmp, sTmp2, sNB, sSrc, sOut = 40, 41, 42, 43, 44, 45, 46, 47, 48
    sSlot = [50, 51, 52, 53]
    sOne = 54
    A.c("---- K1 special ----")
    A.e(f"s_mov_b32 s{sQB}, s2")
    A.e(f"s_lshr_b32 s{sKind}, s{S_WAVE}, 1")
    A.e(f"s_and_b32 s{sPE}, s{sKind}, 1")
    A.e(f"s_and_b32 s{sHB}, s{S_WAVE}, 1")
    A.e(f"s_cmp_ge_u32 s{S_WAVE}, 4")
    A.e(f"s_cselect_b32 s12, s14, s12")
    A.e(f"s_cselect_b32 s13, s15, s13")
    srd(A, S_D, 12, 1024 * 1024 * 2)
    A.e(f"v_and_b32 v{VC}, 31, v{VL}")
    A.e(f"v_lshrrev_b32 v{T0}, 5, v{VL}")
    A.e(f"s_lshl_b32 s{sTmp}, s{sQB}, 4")
    A.e(f"s_lshl_b32 s{sTmp2}, s{S_WAVE}, 1")
    A.e(f"s_add_u32 s{sTmp}, s{sTmp}, s{sTmp2}")
    A.e(f"v_add_u32 v{T0}, s{sTmp}, v{T0}")
    A.e(f"v_lshlrev_b32 v{RO[0]}, 11, v{T0}")
    A.e(f"v_cmp_eq_u32 s[56:57], 0, v{T0}")
    A.e(f"v_sub_u32 v{RO[1]}, {2048*2048}, v{RO[0]}")
    A.e(f"v_sub_u32 v{RO[2]}, {1024*2048}, v{RO[0]}")
    A.e(f"v_add_u32 v{RO[3]}, {1024*2048}, v{RO[0]}")
    A.e(f"v_mov_b32 v{T1}, {512*2048}")
    A.e(f"v_mov_b32 v{T2_}, {1536*2048}")
    A.e(f"v_cndmask_b32 v{RO[1]}, v{RO[1]}, v{T1}, s[56:57]")
    A.e(f"v_cndmask_b32 v{RO[3]}, v{RO[3]}, v{T2_}, s[56:57]")
    A.e(f"v_lshlrev_b32 v{T0}, 4, v{VC}")
    A.e(f"v_sub_u32 v{T1}, 1008, v{T0}")
    A.e(f"v_cmp_eq_u32 s[58:59], 0, v{VC}")
    A.e(f"v_mov_b32 v{T2_}, {OOB}")
    A.e(f"v_cndmask_b32 v{T2_}, v{T1}, v{T2_}, s[58:59]")
    for i in range(8):
        A.e(f"v_mov_b32 v{SH+i}, 0")
    for r in range(4):
        a, b = 22 + 2*(r & 1), 23 + 2*(r & 1)
        A.e(f"v_add_u32 v{a}, v{RO[r]}, v{T0}")
        A.e(f"v_add_u32 v{b}, v{RO[r]}, v{T1}")
        A.vm_issue(f"buffer_load_dwordx4 {vr(Q+16*r+0, 4)}, v{a}, {sr(S_X,4)}, 0 offen", ("Q", r))
        A.vm_issue(f"buffer_load_dwordx4 {vr(Q+16*r+8, 4)}, v{b}, {sr(S_X,4)}, 0 offen", ("Q", r))
        A.vm_issue(f"buffer_load_dwordx4 {vr(Q+16*r+12, 4)}, v{a}, {sr(S_X,4)}, 0 offen offset:1024", ("Q", r))
        A.vm_issue(f"buffer_load_dwordx4 {vr(Q+16*r+4, 4)}, v{b}, {sr(S_X,4)}, 0 offen offset:1024", ("Q", r))
    for r in range(4):
        a = 22 + (r & 1)
        A.e(f"v_add_u32 v{a}, v{RO[r]}, v{T2_}")
        A.vm_issue(f"buffer_load_short_d16_hi v{SH+2*r}, v{a}, {sr(S_X,4)}, 0 offen offset:1040", ("SH", r))
        A.vm_issue(f"buffer_load_short_d16_hi v{SH+2*r+1}, v{a}, {sr(S_X,4)}, 0 offen offset:16", ("SH", r))
    A.e(f"v_lshrrev_b32 v{T0}, 3, v{VL}")
    A.e(f"v_lshlrev_b32 v{T0}, 12, v{T0}")
    A.e(f"v_and_b32 v{T1}, 7, v{VL}")
    A.e(f"v_lshrrev_b32 v{T2_}, 4, v{VL}")
    A.e(f"v_xor_b32 v{T1}, v{T1}, v{T2_}")
    A.e(f"v_lshl_add_u32 v{VP[0]}, v{T1}, 4, v{T0}")
    A.e(f"v_xor_b32 v{VP[1]}, 64, v{VP[0]}")
    A.e(f"v_add_u32 v{VP[1]}, {8*4096}, v{VP[1]}")
    sBlk, sOutB, sOutM, sMask = 62, 55, 63, 49
    A.e(f"s_bfe_u32 s{sBlk}, s{sQB}, 0x10003")
    A.e(f"s_lshl1_add_u32 s{sBlk}, s{sHB}, s{sBlk}")
    A.e(f"s_lshl_b32 s{sSrc}, s{sBlk}, 6")
    A.e(f"s_add_u32 s{sSrc}, s{sSrc}, s{sPE}")
    A.e(f"s_lshl_b32 s{sSrc}, s{sSrc}, 11")
    A.e(f"s_lshl_b32 s{sTmp}, s{S_WAVE}, 13")
    A.e(f"s_add_u32 s{sSlot[0]}, s{sTmp}, {L_RA}")
    A.e(f"s_add_u32 s{sSlot[1]}, s{sTmp}, {L_RA + 4096}")
    A.e(f"s_mov_b32 s{sSlot[2]}, s{sTmp}")
    A.e(f"s_add_u32 s{sSlot[3]}, s{sTmp}, 4096")

    def dma_slot(q, nxt, tag):
        for p in range(4):
            A.e(f"s_add_u32 m0, s{sSlot[q]}, {p*1024}")
            A.e(f"s_add_u32 s{sTmp}, s{sSrc}, {(p >> 1)*16*4096 + q*128}")
            A.vm_issue(f"buffer_load_dwordx4 v{VP[p & 1]}, {sr(S_D,4)}, s{sTmp} offen lds", tag)

    PX = 28
    A.e(f"v_lshlrev_b32 v{T0}, 12, v{VC}")
    A.e(f"v_lshrrev_b32 v{T1}, 5, v{VL}")
    A.e(f"v_lshl_add_u32 v{T0}, v{T1}, 30, v{T0}")
    A.e(f"s_lshl_b32 s{sTmp}, s{sPE}, 11")
    A.vm_issue(f"buffer_load_ushort v{PX}, v{T0}, {sr(S_D,4)}, s{sTmp} offen offset:512", "PX")
    for i in range(1, 4):
        A.e(f"v_mov_b32 v{PX+i}, 0")
    A.e(f"s_lshl_b32 s{sTmp}, s{S_WAVE}, 10")
    A.e(f"s_add_u32 m0, s{sTmp}, {L_XR}")
    A.e(f"v_lshlrev_b32 v{T0}, 4, v{VL}")
    A.e(f"s_mov_b32 s{sTmp}, {256*2048}")
    A.vm_issue(f"buffer_load_dwordx4 v{T0}, {sr(S_D,4)}, s{sTmp} offen lds", "XR")
    stamp(A, 1, enable=dbg)
    ST = 32
    A.e(f"s_mov_b32 s{sOne}, 0x3f803f80")
    for i in range(8):
        A.e(f"v_mov_b32 v{ST+i}, 0")
    for r in range(0, 4, 2):
        A.vm_need([("Q", r), ("Q", r+1)])
        dma_slot(r >> 1, 0, ("D", r >> 1))
        for i in range(16):
            for rr in (r, r+1):
                A.e(f"v_dot2c_f32_bf16 v{ST+2*rr}, s{sOne}, v{Q+16*rr+i}")
                A.e(f"v_dot2c_f32_bf16 v{ST+2*rr+1}, v{Q+16*rr+i}, v{Q+16*rr+i}")
    for sh in (8, 4, 2, 1):
        for i in range(8):
            A.e(f"v_add_f32_dpp v{ST+i}, v{ST+i}, v{ST+i} row_ror:{sh} row_mask:0xf bank_mask:0xf")
    for i in range(8):
        A.e(f"v_mov_b32 v{ST+8+i}, v{ST+i}")
    for i in range(8):
        A.e(f"v_permlane16_swap_b32 v{ST+i}, v{ST+8+i}")
    for i in range(8):
        A.e(f"v_add_f32 v{ST+i}, v{ST+i}, v{ST+8+i}")
    PUB, MB = 40, 48
    for r in range(4):
        A.e(f"v_mul_f32 v{ST+2*r}, {1.0/1024}, v{ST+2*r}")
        A.e(f"v_mul_f32 v{ST+2*r+1}, {1.0/1024}, v{ST+2*r+1}")
    for r in range(4):
        A.e(f"v_fma_f32 v{ST+2*r+1}, -v{ST+2*r}, v{ST+2*r}, v{ST+2*r+1}")
    for r in range(4):
        A.e(f"v_max_f32 v{ST+2*r+1}, 0, v{ST+2*r+1}")
    for r in range(4):
        A.e(f"v_cvt_pk_bf16_f32 v{ST+2*r+1}, v{ST+2*r+1}, v{ST+2*r+1}")
    for r in range(4):
        A.e(f"v_and_b32 v{ST+2*r+1}, 0xffff0000, v{ST+2*r+1}")
    for r in range(4):
        A.e(f"v_add_f32 v{ST+2*r+1}, 0x3727c5ac, v{ST+2*r+1}")
    for r in range(4):
        A.e(f"v_cvt_pk_bf16_f32 v{ST+2*r+1}, v{ST+2*r+1}, v{ST+2*r+1}")
    for r in range(4):
        A.e(f"v_and_b32 v{ST+2*r+1}, 0xffff0000, v{ST+2*r+1}")
    for r in range(4):
        A.e(f"v_sqrt_f32 v{ST+2*r+1}, v{ST+2*r+1}")
    for r in range(4):
        A.e(f"v_cvt_pk_bf16_f32 v{PUB+2*r}, v{ST+2*r}, v{ST+2*r}")
    for r in range(4):
        A.e(f"v_cvt_pk_bf16_f32 v{ST+2*r+1}, v{ST+2*r+1}, v{ST+2*r+1}")
    for r in range(4):
        A.e(f"v_and_b32 v{ST+2*r+1}, 0xffff0000, v{ST+2*r+1}")
    for r in range(4):
        A.e(f"v_rcp_f32 v{PUB+2*r+1}, v{ST+2*r+1}")
    for r in range(4):
        A.e(f"v_and_b32 v{MB+r}, 0xffff0000, v{PUB+2*r}")
        A.e(f"v_lshrrev_b32 v{RO[r]}, 8, v{RO[r]}")
    A.e(f"s_mov_b32 s{sTmp2}, {WS_ST}")
    A.e(f"s_mov_b64 exec, s[58:59]")
    for r in range(4):
        A.vm_issue(f"buffer_store_dwordx2 {vr(PUB+2*r, 2)}, v{RO[r]}, {sr(S_WS,4)}, s{sTmp2} offen sc1", "ST")
    A.e(f"s_mov_b64 exec, -1")
    WA, WB = 52, 56
    Rr = [PUB + 2*r + 1 for r in range(4)]
    A.e(f"v_mov_b32 v{WA}, v{Rr[0]}")
    A.e(f"v_cndmask_b32 v{WA+1}, v{Rr[1]}, 0, s[56:57]")
    A.e(f"v_mov_b32 v{WA+2}, v{Rr[2]}")
    A.e(f"v_cndmask_b32 v{WA+3}, v{Rr[3]}, 0, s[56:57]")
    A.e(f"v_cndmask_b32 v{WB}, v{Rr[0]}, 0, s[56:57]")
    A.e(f"v_cndmask_b32 v{WB+1}, -v{Rr[1]}, v{Rr[1]}, s[56:57]")
    A.e(f"v_cndmask_b32 v{WB+2}, v{Rr[2]}, 0, s[56:57]")
    A.e(f"v_xor_b32 v{WB+3}, 0x80000000, v{Rr[3]}")
    KG, KH, KT = 32, 34, 36
    A.e(f"v_mul_f32 v{KG+1}, v{WA}, v{MB}")
    A.e(f"v_mul_f32 v{KH+1}, v{WA+2}, v{MB+2}")
    A.e(f"v_mul_f32 v{KT+1}, v{Rr[1]}, v{MB+1}")
    A.e(f"v_fmac_f32 v{KG+1}, v{WA+1}, v{MB+1}")
    A.e(f"v_fmac_f32 v{KH+1}, v{WA+3}, v{MB+3}")
    A.e(f"v_fmac_f32 v{KT+1}, v{Rr[3]}, v{MB+3}")
    G8A, H8A, T8, G8B, H8B = 60, 61, 62, 38, 39
    A.e(f"v_mul_f32 v{G8A}, -2.0, v{KG+1}")
    A.e(f"v_mul_f32 v{H8A}, -2.0, v{KH+1}")
    A.e(f"v_mul_f32 v{T8}, -2.0, v{KT+1}")
    A.e(f"v_mov_b32 v{G8B}, 0")
    A.e(f"v_mov_b32 v{H8B}, 0")
    for K, E in ((KG, G8A), (KH, H8A), (KT, T8)):
        A.e(f"v_mul_f32 v{K+1}, -4.0, v{K+1}")
    for K, E in ((KG, G8A), (KH, H8A), (KT, T8)):
        A.e(f"v_cndmask_b32 v{K}, v{K+1}, v{E}, s[58:59]")
    U0, U1, U2, U3 = 128, 136, 146, 156
    G, H, TT = 164, 196, 228
    PA = 244

    def bc(reg):
        b = reg & ~1
        return vr(b, 2), reg & 1

    for r in range(4):
        q = Q + 16*r
        A.vm_need([("SH", r)])
        for k in range(8):
            op = f"v_and_b32 v{{}}, 0xffff0000, v{{}}" if k & 1 else f"v_lshlrev_b32 v{{}}, 16, v{{}}"
            A.e(op.format(U0 + k, q + (k >> 1)))
            A.e(op.format(U3 + k, q + 12 + (k >> 1)))
            A.e(op.format(U1 + 8 - k, q + 4 + (k >> 1)))
            A.e(op.format(U2 + 8 - k, q + 8 + (k >> 1)))
        A.e(f"v_mov_b32 v{U1}, v{SH+2*r}")
        A.e(f"v_mov_b32 v{U2}, v{SH+2*r+1}")
        ACC = G if r < 2 else H
        first = (r & 1) == 0
        wa, sa = bc(WA + r)
        wb, sb = bc(WB + r)
        wt, st_ = bc(Rr[r])
        K = KG if r < 2 else KH
        for j in range(0, 8, 2):
            p, u, m_, w = PA, PA+2, PA+4, PA+6
            A.e(f"v_pk_add_f32 {vr(p,2)}, {vr(U0+j,2)}, {vr(U1+j,2)}")
            A.e(f"v_pk_add_f32 {vr(u,2)}, {vr(U2+j,2)}, {vr(U3+j,2)}")
            A.e(f"v_pk_add_f32 {vr(m_,2)}, {vr(U0+j,2)}, {vr(U1+j,2)} neg_lo:[0,1] neg_hi:[0,1]")
            A.e(f"v_pk_add_f32 {vr(w,2)}, {vr(U2+j,2)}, {vr(U3+j,2)} neg_lo:[0,1] neg_hi:[0,1]")
            A.e(f"v_pk_add_f32 {vr(U0+j,2)}, {vr(p,2)}, {vr(u,2)}")
            A.e(f"v_pk_add_f32 {vr(U1+j,2)}, {vr(p,2)}, {vr(u,2)} neg_lo:[0,1] neg_hi:[0,1]")
            A.e(f"v_pk_add_f32 {vr(U2+j,2)}, {vr(m_,2)}, {vr(w,2)} neg_lo:[0,1] neg_hi:[0,1]")
            A.e(f"v_pk_add_f32 {vr(U3+j,2)}, {vr(m_,2)}, {vr(w,2)}")
            for kind, U in enumerate((U0, U1, U2, U3)):
                wv, sv = (wa, sa) if kind < 2 else (wb, sb)
                d = vr(ACC + 8*kind + j, 2)
                if first and kind == 0:
                    k0 = 0 if j == 0 else 1
                    A.e(f"v_pk_fma_f32 {d}, {vr(U+j,2)}, {wv}, {vr(K,2)} op_sel:[0,{sv},{k0}] op_sel_hi:[1,{sv},1]")
                elif first:
                    A.e(f"v_pk_mul_f32 {d}, {vr(U+j,2)}, {wv} op_sel:[0,{sv}] op_sel_hi:[1,{sv}]")
                else:
                    A.e(f"v_pk_fma_f32 {d}, {vr(U+j,2)}, {wv}, {d} op_sel:[0,{sv},0] op_sel_hi:[1,{sv},1]")
            if not first:
                for kind, U in enumerate((U0, U1)):
                    d = vr(TT + 8*kind + j, 2)
                    if r == 1 and kind == 0:
                        k0 = 0 if j == 0 else 1
                        A.e(f"v_pk_fma_f32 {d}, {vr(U+j,2)}, {wt}, {vr(KT,2)} op_sel:[0,{st_},{k0}] op_sel_hi:[1,{st_},1]")
                    elif r == 1:
                        A.e(f"v_pk_mul_f32 {d}, {vr(U+j,2)}, {wt} op_sel:[0,{st_}] op_sel_hi:[1,{st_}]")
                    else:
                        A.e(f"v_pk_fma_f32 {d}, {vr(U+j,2)}, {wt}, {d} op_sel:[0,{st_},0] op_sel_hi:[1,{st_},1]")
        A.e(f"v_add_f32 v{PA}, v{U2+8}, v{U1+8}")
        A.e(f"v_sub_f32 v{PA+1}, v{U2+8}, v{U1+8}")
        A.e(f"v_fmac_f32 v{G8A if r < 2 else H8A}, v{WA+r}, v{PA}")
        A.e(f"v_fmac_f32 v{G8B if r < 2 else H8B}, v{WB+r}, v{PA+1}")
        if not first:
            A.e(f"v_fmac_f32 v{T8}, v{Rr[r]}, v{PA}")
    VTW = 22
    A.e(f"v_lshrrev_b32 v{T0}, 5, v{VL}")
    A.e(f"s_lshl_b32 s{sTmp}, s{S_WAVE}, 1")
    A.e(f"v_add_u32 v{T1}, s{sTmp}, v{T0}")
    A.e(f"v_mul_u32_u24 v{T1}, 528, v{T1}")
    A.e(f"v_lshl_add_u32 v{VTW}, v{VC}, 4, v{T1}")
    A.e(f"v_mul_u32_u24 v{T0}, 528, v{T0}")
    A.e(f"v_lshl_add_u32 v{VTW+1}, v{VC}, 4, v{T0}")
    A.e(f"v_add_u32 v{VTW+1}, {L_T2}, v{VTW+1}")
    O = Q
    n = 0
    for kind in range(4):
        for tp in range(2):
            neg = (tp == 1) if kind < 2 else (tp == 0)
            t = U0 + 8*(n & 1)
            o = O + 4*n
            n += 1
            for j in range(0, 8, 2):
                A.e(f"v_pk_add_f32 {vr(t+j,2)}, {vr(G+8*kind+j,2)}, {vr(H+8*kind+j,2)}" + (" neg_lo:[0,1] neg_hi:[0,1]" if neg else ""))
            for j in range(0, 8, 2):
                A.e(f"v_cvt_pk_bf16_f32 v{o + j//2}, v{t+j}, v{t+j+1}")
            A.e(f"ds_write_b128 v{VTW}, {vr(o,4)} offset:{kind*KSTR + tp*16*528}")
    Z = 96
    for i in range(20):
        if i & 3:
            A.e(f"v_mov_b32 v{Z+i}, 0")
    A.e(f"v_add_f32 v{PA}, v{G8A}, v{H8A}")
    A.e(f"v_sub_f32 v{PA+1}, v{G8A}, v{H8A}")
    A.e(f"v_sub_f32 v{PA+2}, v{G8B}, v{H8B}")
    A.e(f"v_add_f32 v{PA+3}, v{G8B}, v{H8B}")
    for i in range(4):
        A.e(f"v_cvt_pk_bf16_f32 v{Z+4*i}, v{PA+i}, 0")
    A.e(f"v_cvt_pk_bf16_f32 v{Z+16}, v{T8}, 0")
    for kind in range(2):
        for j in range(0, 8, 2):
            A.e(f"v_cvt_pk_bf16_f32 v{116 + 4*kind + j//2}, v{TT+8*kind+j}, v{TT+8*kind+j+1}")
    A.e(f"s_mov_b32 s60, 0x80000000")
    A.e(f"s_mov_b32 s61, 0x80000000")
    A.e(f"s_cmp_lg_u32 s{S_WAVE}, 0")
    A.e(f"s_cbranch_scc1 L_k1s_not2")
    for kind in range(2):
        A.e(f"ds_write_b128 v{VTW+1}, {vr(116+4*kind,4)} offset:{kind*1056}")
    A.e(f"s_mov_b64 exec, s[60:61]")
    for kind in range(2):
        A.e(f"ds_write_b128 v{VTW+1}, {vr(Z+16,4)} offset:{kind*1056 + 16}")
    A.label("L_k1s_not2")
    A.e(f"s_mov_b64 exec, s[60:61]")
    for kind in range(4):
        for tp in range(2):
            A.e(f"ds_write_b128 v{VTW}, {vr(Z + 4*((kind >> 1)*2 + tp), 4)} offset:{kind*KSTR + tp*16*528 + 16}")
    A.e(f"s_mov_b64 exec, -1")
    VTR, VTX, VT2R = 22, 23, 24
    A.e(f"v_and_b32 v{T0}, 19, v{VL}")
    A.e(f"v_bfe_u32 v{T1}, v{VL}, 2, 1")
    A.e(f"v_lshl_add_u32 v{T0}, v{T1}, 3, v{T0}")
    A.e(f"v_bfe_u32 v{T1}, v{VL}, 3, 1")
    A.e(f"v_lshl_add_u32 v{T0}, v{T1}, 2, v{T0}")
    A.e(f"v_mul_u32_u24 v{T0}, 528, v{T0}")
    A.e(f"s_mul_i32 s{sTmp}, s{sKind}, {KSTR}")
    A.e(f"v_lshrrev_b32 v{T1}, 5, v{VL}")
    A.e(f"s_mul_i32 s{sTmp2}, s{sPE}, 1056")
    A.e(f"s_add_u32 s{sTmp2}, s{sTmp2}, {L_T2}")
    A.e("s_waitcnt lgkmcnt(0)")
    A.e(f"v_add_u32 v{VTX}, s{sTmp}, v{T0}")
    A.e(f"v_lshl_add_u32 v{VTR}, v{T1}, 4, v{VTX}")
    A.e(f"v_lshlrev_b32 v{VT2R}, 4, v{T1}")
    A.e(f"v_add_u32 v{VT2R}, s{sTmp2}, v{VT2R}")
    A.e(f"v_mov_b32 v{VT2R+1}, s{sTmp2}")
    A.vm_drain()
    A.e("s_barrier")
    stamp(A, 2, enable=dbg)
    A.e(f"s_cmp_lg_u32 s{S_WAVE}, 0")
    A.e(f"s_cbranch_scc1 L_k1s_noflag")
    A.e(f"s_lshl_b32 s{sTmp}, s{sQB}, 2")
    A.e(f"v_mov_b32 v{T0}, s{sTmp}")
    A.e(f"v_mov_b32 v{T1}, 1")
    A.e(f"s_mov_b64 exec, 1")
    A.e(f"buffer_store_dword v{T1}, v{T0}, {sr(S_DBG,4)}, 0 offen sc1")
    if cfg.get("zflag", True):
        A.e(f"s_lshl_b32 s{sTmp}, s{sQB}, 7")
        A.e(f"s_add_u32 s{sTmp}, s{sTmp}, {WS_FLAG}")
        A.e(f"v_mov_b32 v{T2_}, 0")
        A.e(f"buffer_store_dword v{T2_}, v{T2_}, {sr(S_WS,4)}, s{sTmp} offen")
    A.e(f"s_mov_b64 exec, -1")
    A.e("s_waitcnt vmcnt(0)")
    A.label("L_k1s_noflag")
    TF, T2F = 64, 132
    ACC, ACM, ACC2 = 200, 216, 232
    PF, PM = 48, 32
    for k in range(16):
        A.ds_issue(f"ds_read_b128 {vr(TF+4*k,4)}, v{VTR} offset:{32*k}", ("TF", k))
    A.ds_issue(f"ds_read_b128 {vr(TF+64,4)}, v{VTX} offset:512", ("TF", 16))
    APA, APB = [8, 9, 10, 11], [12, 13, 14, 15]
    A.e(f"v_lshlrev_b32 v{T0}, 7, v{VC}")
    A.e(f"v_lshrrev_b32 v{T1}, 5, v{VL}")
    A.e(f"v_bfe_u32 v{T2_}, v{VL}, 1, 3")
    A.e(f"v_xor_b32 v{T2_}, v{T1}, v{T2_}")
    A.e(f"v_lshl_add_u32 v{T0}, v{T2_}, 4, v{T0}")
    A.e(f"v_add_u32 v{APA[0]}, s{sSlot[0]}, v{T0}")
    A.e(f"v_add_u32 v{APB[0]}, s{sSlot[2]}, v{T0}")
    for j in range(1, 4):
        A.e(f"v_xor_b32 v{APA[j]}, {j << 5}, v{APA[0]}")
        A.e(f"v_xor_b32 v{APB[j]}, {j << 5}, v{APB[0]}")
    A.e(f"s_cmp_ge_u32 s{S_WAVE}, 4")
    A.e(f"s_cselect_b32 s{sOutB}, {WS_BT >> 20}, {WS_AT >> 20}")
    A.e(f"s_cselect_b32 s{sMask}, 15, 31")
    A.e(f"s_lshl_b32 s{sMask}, 1, s{sMask}")
    A.e(f"s_lshl_b32 s{sOutB}, s{sOutB}, 20")
    A.e(f"s_mul_i32 s{sTmp}, s{sPE}, {AT_PE}")
    A.e(f"s_add_u32 s{sOutB}, s{sOutB}, s{sTmp}")
    A.e(f"s_lshl_b32 s{sTmp}, s{sQB}, 10")
    A.e(f"s_add_u32 s{sOutB}, s{sOutB}, s{sTmp}")
    VO, VOM, VOX, VXR, PXM = 16, 17, 18, 19, 26
    A.e(f"v_lshlrev_b32 v{VO}, 4, v{VL}")
    A.e(f"s_sub_u32 s{sTmp}, 256, s{sPE}")
    A.e(f"v_sub_u32 v{T0}, s{sTmp}, v{VC}")
    A.e(f"v_lshrrev_b32 v{T2_}, 5, v{T0}")
    A.e(f"v_mul_u32_u24 v{T2_}, {AT_BLK}, v{T2_}")
    A.e(f"v_and_b32 v{T0}, 31, v{T0}")
    A.e(f"v_lshl_add_u32 v{T0}, v{T0}, 4, v{T2_}")
    A.e(f"v_lshl_add_u32 v{VOM}, v{T1}, 9, v{T0}")
    A.e(f"v_mov_b32 v{T0}, {OOB}")
    A.e(f"v_add_u32 v{T2_}, {4*AT_BLK}, v{VO}")
    A.e(f"v_cndmask_b32 v{VOX}, v{T0}, v{T2_}, s[58:59]")
    A.e(f"s_lshl_b32 s{sTmp}, s{S_WAVE}, 10")
    A.e(f"s_add_u32 s{sTmp}, s{sTmp}, {L_XR}")
    A.e(f"v_lshl_add_u32 v{VXR}, v{T1}, 4, s{sTmp}")
    A.ds_drain()
    A.e("s_barrier")
    dma_slot(2, 0, ("D", 2))
    dma_slot(3, 0, ("D", 3))
    A.e(f"s_xor_b32 s{sSrc}, s{sSrc}, {32*4096}")
    A.e(f"s_lshl_b32 s{sTmp}, s{sQB}, 2")
    A.e(f"s_add_u32 s{sTmp}, s{sTmp}, s{S_WAVE}")
    A.e(f"s_cmp_lt_u32 s{sTmp}, 4")
    A.e(f"s_cbranch_scc1 L_k1s_dual")
    vm0 = list(A.vm)

    def mf(d, a, b, c):
        A.e(f"v_mfma_f32_32x32x16_bf16 {vr(d,16)}, {vr(a,4)}, {vr(b,4)}, {vr(c,16) if c is not None else 0}")

    def out(acc, va, so):
        for i in range(8):
            A.e(f"v_cvt_pk_bf16_f32 v{248+i}, v{acc+2*i}, v{acc+2*i+1}")
        A.e(f"s_add_u32 s{sTmp}, s{so}, {AT_TP}")
        A.vm_issue(f"buffer_store_dwordx4 {vr(248,4)}, v{va}, {sr(S_WS,4)}, s{so} offen{aux}", "O")
        A.vm_issue(f"buffer_store_dwordx4 {vr(252,4)}, v{va}, {sr(S_WS,4)}, s{sTmp} offen{aux}", "O")

    def outv(lst):
        A.e(f"v_cvt_pk_bf16_f32 v{T0}, v{ACC2}, v{ACC2+1}")
        A.e(f"s_mov_b64 exec, 0xffffffff")
        for hi, va, so in lst:
            A.e(f"s_add_u32 s{sTmp}, s{so}, {32*1024}")
            A.vm_issue(f"buffer_store_short{'_d16_hi' if hi else ''} v{T0}, v{va}, {sr(S_WS,4)}, s{sTmp} offen{aux}", "O")
        A.e(f"s_mov_b64 exec, -1")

    def block(dual, last):
        A.e(f"s_mul_i32 s{sTmp}, s{sBlk}, {AT_BLK}")
        A.e(f"s_add_u32 s{sOut}, s{sOutB}, s{sTmp}")
        A.e(f"s_sub_u32 s{sOutM}, s{sOutB}, s{sTmp}")
        A.e(f"s_xor_b32 s{sBlk}, s{sBlk}, 1")
        for i in range(4):
            A.e(f"v_xor_b32 v{PM+i}, s{sMask}, v{PX+i}")
        mf(ACC, TF+64, PX, None)
        mf(ACM, TF+64, PM, None)
        if dual:
            mf(ACC2, T2F+64, PX, None)
        for q in range(4):
            A.vm_need([("D", q)])
            ap = APA if q < 2 else APB
            for j in range(4):
                A.ds_issue(f"ds_read_b128 {vr(PF+4*j,4)}, v{ap[j]} offset:{(q & 1)*4096}", ("PF", j))
            for j in range(4):
                A.ds_need([("PF", j)])
                if j == 3 and not last:
                    dma_slot(q, 1, ("D", q))
                k = 4*q + j
                mf(ACC, TF+4*k, PF+4*j, ACC)
                for i in range(4):
                    A.e(f"v_xor_b32 v{PM+4*j+i}, s{sMask}, v{PF+4*j+i}")
                if dual:
                    mf(ACC2, T2F+4*k, PF+4*j, ACC2)
                mf(ACM, TF+4*k, PM+4*j, ACM)
        out(ACC, VO, sOut)
        out(ACM, VOM, sOutM)
        if dual:
            outv([(0, VO, sOut), (1, VOM, sOutM)])

    def extra(dual):
        mf(ACC, TF+64, PX, None)
        if dual:
            mf(ACC2, T2F+64, PX, None)
        for q in range(4):
            for j in range(4):
                A.ds_issue(f"ds_read_b128 {vr(PF+4*j,4)}, v{VXR} offset:{32*(4*q+j)}", ("PF", j))
            for j in range(4):
                A.ds_need([("PF", j)])
                k = 4*q + j
                mf(ACC, TF+4*k, PF+4*j, ACC)
                if dual:
                    mf(ACC2, T2F+4*k, PF+4*j, ACC2)
        out(ACC, VOX, sOutB)
        if dual:
            outv([(0, VOX, sOutB)])

    def gemm(dual):
        nm = "d" if dual else "s"
        A.vm = list(vm0)
        if dual:
            for k in range(16):
                A.ds_issue(f"ds_read_b128 {vr(T2F+4*k,4)}, v{VT2R} offset:{32*k}", ("T2F", k))
            A.ds_issue(f"ds_read_b128 {vr(T2F+64,4)}, v{VT2R+1} offset:512", ("T2F", 16))
            A.e(f"v_lshlrev_b32 v{T0}, 31, v{VL}")
            A.ds_drain()
            for i in range(68):
                A.e(f"v_xor_b32 v{T2F+i}, v{T0}, v{T2F+i}")
        A.e(f"s_and_b32 s{sTmp}, s{S_WAVE}, 3")
        A.e(f"s_cmp_lg_u32 s{sTmp}, 1")
        A.e(f"s_cbranch_scc1 L_k1s_nox{nm}")
        extra(dual)
        A.label(f"L_k1s_nox{nm}")
        A.vm = list(vm0)
        block(dual, False)
        block(dual, True)

    gemm(False)
    A.e("s_branch L_k1s_done")
    A.label("L_k1s_dual")
    gemm(True)
    A.label("L_k1s_done")
    A.vm = []
    stamp(A, 3, enable=dbg)
```

```python
from asmlib import *
from k1h import *

SLOT = 32768
NSL = 5
TOFF = 16384
ND, NH = 8, 28
S_C, S_W2, S_WS2, S_X2, S_O = 16, 20, 24, 28, 64
S_WAVE2, S_MT, S_NT, S_HALF, S_PAR, S_IDX = 32, 33, 34, 35, 36, 37


def mf(A, d, a, b, c):
    A.e(f"v_mfma_f32_32x32x16_bf16 {vr(d,16)}, {vr(a,4)}, {vr(b,4)}, {vr(c,16) if c is not None else 0}")


def mirror_idx(A, vc, vt):
    A.e(f"s_lshl_b32 s45, s{S_NT}, 7")
    A.e(f"v_add_u32 v{vc}, s45, v{vc}")
    A.e(f"v_sub_u32 v{vt}, 1024, v{vc}")
    A.e(f"v_min_u32 v{vc}, v{vc}, v{vt}")
    A.e(f"v_lshrrev_b32 v{vt}, 6, v{vc}")
    A.e(f"v_mul_u32_u24 v{vt}, {AT_BLK}, v{vt}")
    A.e(f"v_bfe_u32 v{vc}, v{vc}, 1, 5")
    A.e(f"v_lshl_add_u32 v{vc}, v{vc}, 4, v{vt}")


def k2_consumer(A, cfg):
    dbg = cfg.get("stamps", False)
    VL, T0, T1, T2_ = 1, 2, 3, 4
    ACC = 128
    DS_ = [64, 192]
    HS = [64, 96]
    XR = 240
    APD = [8, 9, 10, 11]
    ATD = 12
    AP, AT = 13, [14, 15]
    PX, TX, PC = 16, 20, 28
    VRO = 32
    sWM, sWN, sDelta, sCnt, sSlot = 43, 44, 40, 41, 42
    sC1, sC2 = 48, 50
    A.c("---- K2 consumer ----")
    if cfg.get("prio2", 1):
        A.e(f"s_setprio {cfg.get('prio2', 1)}")
    A.e(f"s_lshr_b32 s{sWM}, s{S_WAVE2}, 1")
    A.e(f"s_and_b32 s{sWN}, s{S_WAVE2}, 1")
    A.e(f"v_and_b32 v{T0}, 31, v{VL}")
    A.e(f"s_lshl_b32 s45, s{S_IDX}, 7")
    A.e(f"s_lshl_b32 s46, s{sWM}, 6")
    A.e(f"s_add_u32 s45, s45, s46")
    A.e(f"s_add_u32 s45, s45, s{S_PAR}")
    A.e(f"v_lshl_add_u32 v{T1}, v{T0}, 1, s45")
    A.e(f"v_lshrrev_b32 v{T2_}, 5, v{VL}")
    A.e(f"v_lshlrev_b32 v5, 12, v{T1}")
    A.e(f"v_lshl_add_u32 v5, v{T2_}, 30, v5")
    A.vm_issue(f"buffer_load_ushort v{PX}, v5, {sr(S_C,4)}, 0 offen offset:1024", "PX")
    A.e(f"v_and_b32 v5, 19, v{VL}")
    A.e(f"v_bfe_u32 v6, v{VL}, 2, 1")
    A.e(f"v_lshl_add_u32 v5, v6, 3, v5")
    A.e(f"v_bfe_u32 v6, v{VL}, 3, 1")
    A.e(f"v_lshl_add_u32 v5, v6, 2, v5")
    A.e(f"s_lshl_b32 s46, s{sWN}, 6")
    A.e(f"s_mul_i32 s47, s{S_HALF}, {WS_BT + AT_TP - WS_AT - 32*1024}")
    A.e(f"s_add_u32 s47, s47, {WS_AT + 32*1024}")
    for nl in range(2):
        A.e(f"v_add_u32 v33, s46, v5")
        if nl:
            A.e(f"v_add_u32 v33, 32, v33")
        mirror_idx(A, 33, 34)
        A.e(f"v_and_b32 v34, 1, v5")
        A.e(f"v_mul_u32_u24 v34, {AT_PE}, v34")
        A.e(f"v_add_u32 v33, v33, v34")
        A.vm_issue(f"buffer_load_ushort v{TX+4*nl}, v33, {sr(S_WS2,4)}, s47 offen", "TX")
    A.e(f"v_and_b32 v6, 1, v5")
    A.e(f"v_lshrrev_b32 v5, 1, v5")
    A.e(f"v_lshlrev_b32 v33, 3, v6")
    A.e(f"v_xor_b32 v5, v5, v33")
    A.e(f"v_lshlrev_b32 v5, 4, v5")
    A.e(f"v_lshl_add_u32 v5, v6, 12, v5")
    A.e(f"v_lshl_add_u32 v5, v{T2_}, 9, v5")
    A.e(f"s_lshl_b32 s46, s{sWN}, 13")
    A.e(f"s_add_u32 s46, s46, {TOFF}")
    A.e(f"v_add_u32 v{ATD}, s46, v5")
    A.e(f"v_sub_u32 v5, 2048, v{T1}")
    A.e(f"v_mov_b32 v6, 1024")
    A.e(f"v_cmp_eq_u32 vcc, 0, v{T1}")
    A.e(f"v_cndmask_b32 v5, v5, v6, vcc")
    A.e(f"v_mov_b32 v6, 0xc0000000")
    A.e(f"v_cndmask_b32 v{PC}, 0, v6, vcc")
    A.e(f"s_cmp_eq_u32 s{S_HALF}, 0")
    A.e(f"s_cselect_b64 vcc, -1, 0")
    A.e(f"v_cndmask_b32 v5, v5, v{T1}, vcc")
    A.e(f"v_lshlrev_b32 v5, 11, v5")
    A.e(f"v_lshl_add_u32 v5, v{T2_}, 4, v5")
    A.e(f"s_lshl_b32 s46, s{S_NT}, 8")
    A.e(f"s_lshl_b32 s47, s{sWN}, 7")
    A.e(f"s_add_u32 s46, s46, s47")
    A.e(f"v_add_u32 v{VRO}, s46, v5")
    for i in range(4):
        A.vm_issue(f"buffer_load_dwordx4 {vr(XR+4*i,4)}, v{VRO}, {sr(S_X2,4)}, 0 offen offset:{32*i}", "X")
    for i in range(1, 4):
        A.e(f"v_mov_b32 v{PC+i}, v{PC}")
        A.e(f"v_mov_b32 v{PX+i}, 0")
        A.e(f"v_mov_b32 v{TX+i}, 0")
        A.e(f"v_mov_b32 v{TX+4+i}, 0")
    A.e(f"s_lshr_b32 s46, s{S_NT}, 2")
    A.e(f"s_and_b32 s47, s46, s{S_HALF}")
    A.e(f"s_xor_b32 s46, s46, 1")
    A.e(f"s_and_b32 s46, s46, s{S_HALF}")
    A.e(f"s_lshl_b32 s46, s46, 31")
    A.e(f"s_lshl_b32 s47, s47, 31")
    A.e(f"s_or_b32 s{sC1}, s46, 1.0")
    A.e(f"s_or_b32 s{sC2}, s47, 1.0")
    A.e(f"s_mov_b32 s{sC1+1}, s{sC1}")
    A.e(f"s_mov_b32 s{sC2+1}, s{sC2}")
    A.e(f"v_lshlrev_b32 v5, 7, v{T0}")
    A.e(f"s_lshl_b32 s46, s{sWM}, 12")
    A.e(f"v_add_u32 v5, s46, v5")
    A.e(f"v_bfe_u32 v6, v{VL}, 1, 3")
    A.e(f"v_xor_b32 v6, v{T2_}, v6")
    A.e(f"v_lshl_add_u32 v{APD[0]}, v6, 4, v5")
    for j in range(1, 4):
        A.e(f"v_xor_b32 v{APD[j]}, {j << 5}, v{APD[0]}")
    H0 = (ND % NSL) * SLOT
    A.e(f"s_add_u32 s46, s46, {H0}")
    A.e(f"v_lshl_add_u32 v{AP}, v{VL}, 4, s46")
    A.e(f"v_bfe_u32 v6, v{VL}, 2, 2")
    A.e(f"v_lshl_add_u32 v5, v{T2_}, 3, v6")
    A.e(f"v_lshlrev_b32 v5, 8, v5")
    A.e(f"s_lshl_b32 s45, s{sWN}, 1")
    A.e(f"v_xor_b32 v6, s45, v6")
    A.e(f"v_lshl_add_u32 v5, v6, 6, v5")
    A.e(f"v_bfe_u32 v6, v{VL}, 4, 1")
    A.e(f"v_lshl_add_u32 v5, v6, 5, v5")
    A.e(f"v_and_b32 v6, 1, v{VL}")
    A.e(f"v_lshl_add_u32 v5, v6, 4, v5")
    A.e(f"v_bfe_u32 v6, v{VL}, 1, 1")
    A.e(f"v_lshl_add_u32 v5, v6, 3, v5")
    A.e(f"v_add_u32 v{AT[0]}, {H0 + TOFF}, v5")
    A.e(f"v_xor_b32 v{AT[1]}, 64, v{AT[0]}")
    for r in range(32):
        A.e(f"v_mov_b32 v{ACC + 32 + r}, 0")
    A.e(f"s_mov_b32 s{sSlot}, {ND % NSL}")
    A.e(f"s_mov_b32 s59, {SLOT}")

    def dreads(fs):
        b = DS_[fs]
        R = []
        for j in range(4):
            R.append((f"ds_read_b128 {vr(b + 12*j, 4)}, v{ATD} offset:{j*1024}", ("d", fs, j)))
            R.append((f"ds_read_b128 {vr(b + 12*j + 8, 4)}, v{APD[j]}", ("d", fs, j)))
            R.append((f"ds_read_b128 {vr(b + 12*j + 4, 4)}, v{ATD} offset:{j*1024 + 256}", ("d1", fs, j)))
        return R

    def hreads(sub, fs):
        b = HS[fs]
        R = []
        for jj in range(2):
            j = 2*sub + jj
            c = b + 16*jj
            for nl in range(2):
                for q in range(2):
                    R.append((f"ds_read_b64_tr_b16 {vr(c + nl*4 + q*2, 2)}, v{AT[nl]} offset:{j*4096 + q*1024}", (fs, "T", jj, nl)))
                R.append((f"ds_read_b128 {vr(c + 8 + nl*4, 4)}, v{AP} offset:{nl*8192 + j*1024}", (fs, "P", jj, nl)))
        return R

    def bar():
        A.ds_drain()
        A.e("s_barrier")

    A.vm_need(["PX", "TX"])
    for nl in range(2):
        mf(A, ACC + 16*nl, TX + 4*nl, PX, None)
    A.e("s_barrier")
    stamp(A, 1, enable=dbg)
    for t, tag in dreads(0):
        A.ds_issue(t, tag)
    A.e(f"s_or_b32 s45, s{S_MT}, s{S_HALF}")
    A.e(f"s_or_b32 s45, s45, s{sWM}")
    A.e(f"s_cmp_eq_u32 s45, 0")
    A.e(f"s_cbranch_scc1 L_k2c_corr")
    ds0 = list(A.ds)

    def dft(corr):
        A.ds = list(ds0)
        for s in range(ND):
            fs = s & 1
            b = DS_[fs]
            if s < ND - 1:
                d = SLOT if (s + 1) % NSL else -(NSL - 1) * SLOT
                for r in APD + [ATD]:
                    A.e(f"v_add_u32 v{r}, {d & 0xffffffff}, v{r}")
                rd = dreads(fs ^ 1)
            else:
                rd = hreads(0, 0)
            bar()
            g = 0
            for j in range(4):
                for nl in range(2):
                    mf(A, ACC + 16*nl, b + 12*j + 4*nl, b + 12*j + 8, ACC + 16*nl)
                    for _ in range(2):
                        if rd:
                            t, tag = rd.pop(0)
                            A.ds_issue(t, tag)
                    if corr:
                        mf(A, ACC + 32 + 16*nl, b + 12*j + 4*nl, PC, ACC + 32 + 16*nl)
            assert not rd

    dft(False)
    A.e("s_branch L_k2c_h")
    A.label("L_k2c_corr")
    dft(True)
    A.e("s_nop 7")
    A.e("s_nop 3")
    A.label("L_k2c_h")
    stamp(A, 2, enable=dbg)
    A.e("s_nop 7")
    A.e("s_nop 3")
    for i in range(0, 32, 2):
        A.e(f"v_pk_fma_f32 {vr(ACC+32+i,2)}, {vr(ACC+i,2)}, {sr(sC2,2)}, {vr(ACC+32+i,2)}")
    for i in range(0, 32, 2):
        A.e(f"v_pk_mul_f32 {vr(ACC+i,2)}, {vr(ACC+i,2)}, {sr(sC1,2)}")

    def substep(fs, rd, pre=None, barrier_at=None, per_gap=2):
        b = HS[fs]
        rd = list(rd)
        g = 0
        for jj in range(2):
            c = b + 16*jj
            for (mb, nl) in ((0, 0), (0, 1), (1, 1), (1, 0)):
                A.ds_need([(fs, "T", jj, nl), (fs, "P", jj, mb)])
                a = ACC + 32*mb + 16*nl
                mf(A, a, c + 4*nl, c + 8 + 4*mb, a)
                if pre and g in pre:
                    for t in pre[g]:
                        if t == "BAR":
                            bar()
                        else:
                            A.e(t)
                if barrier_at is None or g >= barrier_at:
                    for _ in range(per_gap):
                        if rd:
                            t, tag = rd.pop(0)
                            A.ds_issue(t, tag)
                g += 1
        assert not rd

    BA = cfg.get("bar2_at", 1)
    A.e(f"s_mov_b32 s{sCnt}, {NH - 1}")
    A.label("L_k2c_loop")
    entry = list(A.ds)
    pre = {0: [f"s_add_u32 s{sSlot}, s{sSlot}, 1", f"s_cmp_eq_u32 s{sSlot}, {NSL}",
               f"s_cselect_b32 s{sDelta}, {-(NSL-1)*SLOT & 0xffffffff}, s59", f"s_cselect_b32 s{sSlot}, 0, s{sSlot}"],
           7: [f"v_add_u32 v{r}, s{sDelta}, v{r}" for r in [AT[0], AT[1], AP]]}
    substep(0, hreads(1, 1), pre=pre)
    substep(1, hreads(0, 0), pre={BA: ["BAR"], 5: [f"s_sub_u32 s{sCnt}, s{sCnt}, 1"], 7: [f"s_cmp_lg_u32 s{sCnt}, 0"]}, barrier_at=BA)
    assert A.ds == entry, (A.ds, entry)
    A.e("s_cbranch_scc1 L_k2c_loop")
    sSend, sRecv, sFl = 52, 53, 54
    VE = 33
    pre = {0: [f"s_lshl_b32 s45, s{S_WAVE2}, 13", f"s_add_u32 s45, s45, {WS_PART}", f"s_lshl_b32 s46, s2, 15"],
           1: [f"s_add_u32 s{sSend}, s45, s46", f"s_xor_b32 s{sRecv}, s{sSend}, 32768", f"v_lshlrev_b32 v{VE}, 4, v{VL}"],
           2: [f"s_lshl_b32 s{sFl}, s2, 7", f"s_add_u32 s{sFl}, s{sFl}, {WS_FLAG}", f"s_add_u32 s55, s{sSend}, 4096", f"s_add_u32 s56, s{sRecv}, 4096"],
           3: [f"v_mov_b32 v34, 0", f"v_mov_b32 v35, 1"]}
    substep(0, hreads(1, 1), pre=pre)
    substep(1, [])
    stamp(A, 3, enable=dbg)
    RV = 64

    def tail(keep, send, nm):
        for i in range(8):
            A.vm_issue(f"buffer_store_dwordx4 {vr(send + 4*i, 4)}, v{VE}, {sr(S_WS2,4)}, s{sSend if i < 4 else 55} offen offset:{(i & 3)*1024} sc1", "S")
        A.vm_need(["X"])
        for i in range(16):
            A.e(f"v_lshlrev_b32 v{RV + 32 + 2*i}, 16, v{XR + i}")
            A.e(f"v_and_b32 v{RV + 33 + 2*i}, 0xffff0000, v{XR + i}")
        for i in range(0, 32, 2):
            A.e(f"v_pk_add_f32 {vr(keep+i,2)}, {vr(keep+i,2)}, {vr(RV+32+i,2)}")
        A.vm_drain()
        A.e("s_barrier")
        A.e(f"s_cmp_lg_u32 s{S_WAVE2}, 0")
        A.e(f"s_cbranch_scc1 L_k2c_nf{nm}")
        A.e("s_mov_b64 exec, 1")
        A.e(f"buffer_store_dword v35, v34, {sr(S_WS2,4)}, s{sFl} offen sc1")
        A.e("s_mov_b64 exec, -1")
        A.label(f"L_k2c_nf{nm}")
        A.e(f"s_xor_b32 s{sFl}, s{sFl}, 128")
        stamp(A, 5, enable=dbg)
        A.label(f"L_k2c_poll{nm}")
        A.e(f"buffer_load_dword v36, v34, {sr(S_WS2,4)}, s{sFl} offen sc1")
        A.e("s_waitcnt vmcnt(0)")
        A.e(f"v_readfirstlane_b32 s45, v36")
        A.e(f"s_cmp_eq_u32 s45, 0")
        A.e(f"s_cbranch_scc1 L_k2c_poll{nm}")
        stamp(A, 6, enable=dbg)
        for i in range(8):
            A.vm_issue(f"buffer_load_dwordx4 {vr(RV + 4*i, 4)}, v{VE}, {sr(S_WS2,4)}, s{sRecv if i < 4 else 56} offen offset:{(i & 3)*1024} sc1", ("R", i))
        aux = cfg.get("o_aux", "")
        for i in range(4):
            A.vm_need([("R", 2*i), ("R", 2*i+1)])
            for k in range(0, 8, 2):
                A.e(f"v_pk_add_f32 {vr(keep+8*i+k,2)}, {vr(keep+8*i+k,2)}, {vr(RV+8*i+k,2)}")
            for k in range(4):
                A.e(f"v_cvt_pk_bf16_f32 v{XR+4*i+k}, v{keep+8*i+2*k}, v{keep+8*i+2*k+1}")
            A.vm_issue(f"buffer_store_dwordx4 {vr(XR+4*i,4)}, v{VRO}, {sr(S_O,4)}, 0 offen offset:{32*i}{aux}", "O")
        A.vm = []

    vm0 = list(A.vm)
    A.e(f"s_cmp_eq_u32 s{S_HALF}, 0")
    A.e("s_nop 7")
    A.e("s_nop 1")
    A.e(f"s_cbranch_scc0 L_k2c_t1")
    tail(ACC, ACC + 32, 0)
    A.e("s_branch L_k2_fin")
    A.label("L_k2c_t1")
    A.vm = list(vm0)
    tail(ACC + 32, ACC, 1)


def k2_producer(A, cfg):
    dbg = cfg.get("stamps", False)
    VL, T0, T1, T2_ = 1, 2, 3, 4
    VC = [8, 9]
    VA = 10
    VH = 11
    VW = [12, 13, 14, 15]
    sPW, sL, sL2, sKH, sKW, sTmp, sCnt, sIs, sEnd, sBeg = 40, 41, 42, 43, 44, 45, 46, 47, 48, 49
    auxC, auxA, auxH, auxW = cfg.get("auxC", ""), cfg.get("auxA", ""), cfg.get("auxH", ""), cfg.get("auxW", "")
    A.c("---- K2 producer ----")
    A.e(f"s_sub_u32 s{sPW}, s{S_WAVE2}, 4")
    A.e(f"s_lshl_b32 s52, s{S_IDX}, 7")
    A.e(f"s_lshl_b32 s53, s{sPW}, 5")
    A.e(f"s_add_u32 s52, s52, s53")
    A.e(f"s_add_u32 s52, s52, s{S_PAR}")
    A.e(f"v_lshrrev_b32 v{T0}, 3, v{VL}")
    A.e(f"v_lshl_add_u32 v{T0}, v{T0}, 1, s52")
    A.e(f"v_lshlrev_b32 v{T0}, 12, v{T0}")
    A.e(f"v_and_b32 v{T1}, 7, v{VL}")
    A.e(f"v_lshrrev_b32 v{T2_}, 4, v{VL}")
    A.e(f"v_xor_b32 v{T1}, v{T1}, v{T2_}")
    A.e(f"v_lshl_add_u32 v{VC[0]}, v{T1}, 4, v{T0}")
    A.e(f"v_xor_b32 v{VC[1]}, 64, v{VC[0]}")
    A.e(f"v_add_u32 v{VC[1]}, {65536 - 1024}, v{VC[1]}")
    A.e(f"s_lshl_b32 s{sL}, s{sPW}, 12")
    A.e(f"s_lshl_b32 s{sL2}, s{sPW}, 11")
    A.e(f"s_and_b32 s52, s{sPW}, 1")
    A.e(f"s_lshl_b32 s53, s52, 3")
    A.e(f"v_and_b32 v{T0}, 31, v{VL}")
    A.e(f"v_xor_b32 v{T0}, s53, v{T0}")
    A.e(f"s_lshr_b32 s53, s{sPW}, 1")
    A.e(f"s_lshl_b32 s53, s53, 6")
    A.e(f"s_add_u32 s53, s53, s52")
    A.e(f"v_lshl_add_u32 v{T0}, v{T0}, 1, s53")
    mirror_idx(A, T0, T1)
    A.e(f"v_lshrrev_b32 v{T1}, 5, v{VL}")
    A.e(f"v_lshl_add_u32 v{T0}, v{T1}, 9, v{T0}")
    A.e(f"s_mul_i32 s52, s52, {AT_PE}")
    A.e(f"s_mul_i32 s53, s{S_PAR}, {AT_TP}")
    A.e(f"s_add_u32 s52, s52, s53")
    A.e(f"s_lshl_b32 s53, s{S_HALF}, 21")
    A.e(f"s_add_u32 s52, s52, s53")
    A.e(f"s_add_u32 s52, s52, {WS_AT}")
    A.e(f"v_add_u32 v{VA}, s52, v{T0}")
    assert WS_BT - WS_AT == 1 << 21

    def dft_stage(s):
        sl = (s % NSL) * SLOT
        A.e(f"s_add_u32 m0, s{sL}, {sl + TOFF}")
        A.e(f"s_mov_b32 s{sTmp}, {s*4096}")
        for j in range(4):
            A.vm_issue(f"buffer_load_dwordx4 v{VA}, {sr(S_WS2,4)}, s{sTmp} offen offset:{j*1024}{auxA} lds", ("st", s))
        A.e(f"s_add_u32 m0, s{sL2}, {sl}")
        A.e(f"s_mov_b32 s{sTmp}, {s*128}")
        for p in range(2):
            A.vm_issue(f"buffer_load_dwordx4 v{VC[p]}, {sr(S_C,4)}, s{sTmp} offen offset:{p*1024}{auxC} lds", ("st", s))

    for s in range(2):
        dft_stage(s)
    A.e(f"s_lshl_b32 s52, s{S_MT}, 2")
    A.e(f"s_add_u32 s52, s52, s{sPW}")
    A.e(f"s_mul_i32 s52, s52, {H_PB}")
    A.e(f"s_mul_i32 s53, s{S_HALF}, {112*1024}")
    A.e(f"s_add_u32 s52, s52, s53")
    if WS_H:
        A.e(f"s_add_u32 s52, s52, {WS_H}")
    A.e(f"v_lshl_add_u32 v{VH}, v{VL}, 4, s52")
    A.e(f"v_lshrrev_b32 v{T0}, 4, v{VL}")
    A.e(f"v_and_b32 v{T1}, 15, v{VL}")
    A.e(f"v_lshlrev_b32 v{T2_}, 2, v{T0}")
    A.e(f"v_xor_b32 v{T1}, v{T1}, v{T2_}")
    A.e(f"v_lshlrev_b32 v{T0}, 11, v{T0}")
    A.e(f"v_lshl_add_u32 v{T0}, v{T1}, 4, v{T0}")
    A.e(f"s_lshl_b32 s52, s{S_NT}, 8")
    A.e(f"s_lshl_b32 s53, s{sPW}, 15")
    A.e(f"s_add_u32 s52, s52, s53")
    A.e(f"s_mul_i32 s53, s{S_HALF}, {1792*2048}")
    A.e(f"s_add_u32 s52, s52, s53")
    A.e(f"v_add_u32 v{VW[0]}, s52, v{T0}")
    for q in range(1, 4):
        A.e(f"v_add_u32 v{VW[q]}, {q*7168}, v{VW[0]}")
    for s in range(2, 4):
        dft_stage(s)
    stamp(A, 1, enable=dbg)
    ROT = cfg.get("rot2", 0)
    if ROT:
        A.e(f"s_lshr_b32 s52, s2, 1")
        A.e(f"s_and_b32 s52, s52, 3")
        A.e(f"s_mul_i32 s{sKH}, s52, {ROT*4096}")
    else:
        A.e(f"s_mov_b32 s{sKH}, 0")
    A.e(f"s_mov_b32 s59, {SLOT}")

    def h_stage(tag, sl=None):
        A.e(f"s_lshl_b32 s{sKW}, s{sKH}, 5")
        if sl is None:
            A.e(f"s_add_u32 m0, s{sL}, {TOFF}")
        else:
            A.e(f"s_add_u32 m0, s{sL}, {sl + TOFF}")
        for q in range(4):
            A.vm_issue(f"buffer_load_dwordx4 v{VW[q]}, {sr(S_W2,4)}, s{sKW} offen offset:{q*1024}{auxW} lds", tag)
        if sl is None:
            A.e(f"s_mov_b32 m0, s{sL}")
        else:
            A.e(f"s_add_u32 m0, s{sL}, {sl}")
        for j in range(4):
            A.vm_issue(f"buffer_load_dwordx4 v{VH}, {sr(S_WS2,4)}, s{sKH} offen offset:{j*1024}{auxH} lds", tag)
        A.e(f"s_add_u32 s{sKH}, s{sKH}, 4096")
        A.e(f"s_cmp_eq_u32 s{sKH}, {NH*4096}")
        A.e(f"s_cselect_b32 s{sKH}, 0, s{sKH}")

    NT_ = ND + NH
    LOOP0 = ND
    for s in range(LOOP0):
        A.vm_need([("st", s)])
        A.e("s_barrier")
        if s + 4 < ND:
            dft_stage(s + 4)
        else:
            h_stage(("st", s + 4), ((s + 4) % NSL) * SLOT)
    stamp(A, 2, enable=dbg)
    A.e(f"s_add_u32 s{sL}, s{sL}, {((LOOP0 + 4) % NSL) * SLOT}")
    A.e(f"s_mov_b32 s{sIs}, {(LOOP0 + 4) % NSL}")
    A.e(f"s_mov_b32 s{sCnt}, {NT_ - 4 - LOOP0}")
    A.label("L_k2p_loop")
    A.e("s_waitcnt vmcnt(24)")
    A.e("s_barrier")
    h_stage("x")
    A.e(f"s_add_u32 s{sIs}, s{sIs}, 1")
    A.e(f"s_cmp_eq_u32 s{sIs}, {NSL}")
    A.e(f"s_cselect_b32 s{sTmp}, {-(NSL-1)*SLOT & 0xffffffff}, s59")
    A.e(f"s_cselect_b32 s{sIs}, 0, s{sIs}")
    A.e(f"s_add_u32 s{sL}, s{sL}, s{sTmp}")
    A.e(f"s_sub_u32 s{sCnt}, s{sCnt}, 1")
    A.e(f"s_cmp_lg_u32 s{sCnt}, 0")
    A.e("s_cbranch_scc1 L_k2p_loop")
    for n in (24, 16, 8, 0):
        A.e(f"s_waitcnt vmcnt({n})")
        A.e("s_barrier")
    A.vm = []
    stamp(A, 3, enable=dbg)


def k2(A, cfg):
    name = "k2_kernel"
    dbg = cfg.get("stamps", False)
    kernel_begin(A, name)
    A.e("s_cmp_ge_u32 s2, 256")
    A.e("s_cbranch_scc1 L_k2_end")
    A.e("s_load_dwordx2 s[4:5], s[0:1], 0")
    A.e("s_load_dwordx4 s[8:11], s[0:1], 8")
    A.e("s_load_dwordx4 s[12:15], s[0:1], 56")
    A.e("s_load_dwordx2 s[6:7], s[0:1], 80")
    A.e("v_lshrrev_b32 v1, 6, v0")
    A.e(f"s_and_b32 s{S_HALF}, s2, 1")
    A.e(f"v_readfirstlane_b32 s{S_WAVE2}, v1")
    A.e("v_and_b32 v1, 63, v0")
    if dbg:
        A.e(f"v_mov_b32 v{STAMP_V}, 0")
    A.e(f"s_and_b32 s{S_MT}, s2, 6")
    A.e(f"s_lshl_b32 s{S_MT}, s{S_MT}, 1")
    A.e(f"s_bfe_u32 s38, s2, 0x20003")
    A.e(f"s_add_u32 s{S_MT}, s{S_MT}, s38")
    A.e(f"s_lshr_b32 s{S_NT}, s2, 5")
    A.e(f"s_lshr_b32 s{S_PAR}, s{S_MT}, 3")
    A.e(f"s_and_b32 s{S_IDX}, s{S_MT}, 7")
    A.e(f"s_cmp_eq_u32 s{S_HALF}, 0")
    A.e("s_waitcnt lgkmcnt(0)")
    A.e(f"s_cselect_b32 s8, s8, s10")
    A.e(f"s_cselect_b32 s9, s9, s11")
    srd(A, S_C, 8, 2048*2048*2)
    srd(A, S_WS2, 6, WS_BYTES)
    srd(A, S_W2, 12, 3584*1024*2)
    srd(A, S_X2, 4, 2048*1024*2)
    srd(A, S_O, 14, 2048*1024*2)
    stamp(A, 0, enable=dbg)
    A.e(f"s_cmp_ge_u32 s{S_WAVE2}, 4")
    A.e("s_cbranch_scc1 L_k2_prod")
    k2_consumer(A, cfg)
    A.e("s_branch L_k2_fin")
    A.label("L_k2_prod")
    k2_producer(A, cfg)
    A.label("L_k2_fin")
    if dbg:
        A.e("s_waitcnt vmcnt(0)")
        stamp(A, 4, enable=True)
        A.e("s_getreg_b32 s61, hwreg(HW_REG_XCC_ID)")
        A.e(f"v_writelane_b32 v{STAMP_V}, s61, 7")
        A.e(f"s_lshl_b32 s60, s2, 3")
        A.e(f"s_add_u32 s60, s60, s{S_WAVE2}")
        A.e(f"s_lshl_b32 s60, s60, 8")
        A.e(f"s_add_u32 s60, s60, {WS_DBG + (1 << 20)}")
        A.e("v_and_b32 v1, 63, v0")
        A.e("v_lshlrev_b32 v1, 2, v1")
        A.e(f"buffer_store_dword v{STAMP_V}, v1, {sr(S_WS2,4)}, s60 offen")
    A.label("L_k2_end")
    A.e("s_endpgm")
    return name
```

```python
import sys
from asmlib import *
from k1h import *

def k1(A, cfg):
    name = "k1_kernel"
    kernel_begin(A, name)
    A.e("s_cmp_ge_u32 s2, 256")
    A.e("s_cbranch_scc1 L_k1_end")
    A.e("s_load_dwordx2 s[4:5], s[0:1], 0")
    A.e("s_load_dwordx2 s[6:7], s[0:1], 48")
    A.e("s_load_dwordx4 s[8:11], s[0:1], 72")
    A.e("s_load_dwordx4 s[12:15], s[0:1], 24")
    A.e("v_lshrrev_b32 v1, 6, v0")
    A.e(f"s_and_b32 s{S_XCD}, s2, 7")
    A.e(f"v_readfirstlane_b32 s{S_WAVE}, v1")
    A.e(f"s_lshr_b32 s{S_J}, s2, 3")
    A.e("v_and_b32 v1, 63, v0")
    if cfg.get("stamps"):
        A.e(f"v_mov_b32 v{STAMP_V}, 0")
    A.e(f"s_sub_u32 s37, s{S_J}, 4")
    A.e(f"s_and_b32 s{S_M}, s{S_XCD}, 6")
    A.e(f"s_and_b32 s38, s37, 1")
    A.e(f"s_add_u32 s{S_M}, s{S_M}, s38")
    A.e(f"s_and_b32 s38, s{S_XCD}, 1")
    A.e(f"s_mul_i32 s38, s38, 14")
    A.e(f"s_lshr_b32 s{S_F}, s37, 1")
    A.e(f"s_add_u32 s{S_F}, s{S_F}, s38")
    if cfg.get("map47"):
        A.e(f"s_and_b32 s{S_M}, s{S_XCD}, 4")
        A.e(f"s_and_b32 s38, s37, 3")
        A.e(f"s_add_u32 s{S_M}, s{S_M}, s38")
        A.e(f"s_and_b32 s38, s{S_XCD}, 3")
        A.e(f"s_mul_i32 s38, s38, 7")
        A.e(f"s_lshr_b32 s{S_F}, s37, 2")
        A.e(f"s_add_u32 s{S_F}, s{S_F}, s38")
    A.e("s_waitcnt lgkmcnt(0)")
    srd(A, S_X, 4, 2048*1024*2)
    srd(A, S_W, 6, 1024*3584*2)
    srd(A, S_WS, 10, WS_BYTES)
    srd(A, S_DBG, 8, 256)
    stamp(A, 0, enable=cfg.get("stamps"))
    A.e(f"s_cmp_lt_u32 s{S_J}, 4")
    A.e("s_cbranch_scc1 L_k1_special")
    A.e(f"s_cmp_ge_u32 s{S_WAVE}, 4")
    A.e("s_cbranch_scc1 L_k1_prod")
    k1h_consumer(A, cfg)
    A.e("s_branch L_k1_fin")
    A.label("L_k1_prod")
    k1h_producer(A, cfg)
    A.e("s_branch L_k1_fin")
    A.label("L_k1_special")
    if cfg.get("special", True):
        import k1s
        k1s.k1_special(A, cfg)
    A.label("L_k1_fin")
    if cfg.get("stamps"):
        A.e("s_waitcnt vmcnt(0)")
        stamp(A, 4, enable=True)
        A.e("s_getreg_b32 s61, hwreg(HW_REG_XCC_ID)")
        A.e(f"v_writelane_b32 v{STAMP_V}, s61, 7")
        A.e(f"s_lshl_b32 s60, s2, 3")
        A.e(f"s_add_u32 s60, s60, s{S_WAVE}")
        A.e(f"s_lshl_b32 s60, s60, 8")
        A.e(f"s_add_u32 s60, s60, {WS_DBG}")
        A.e("v_and_b32 v1, 63, v0")
        A.e("v_lshlrev_b32 v1, 2, v1")
        A.e(f"buffer_store_dword v{STAMP_V}, v1, {sr(S_WS,4)}, s60 offen")
    A.label("L_k1_end")
    A.e("s_endpgm")
    return name

HEADER = """; out = x + Re(DFT_seq(DFT_hid(LN x))) + relu(LN(x) w1) w2      (generated code)
; kernel 2: sequence-axis DFT + h w2 (K split over workgroup pairs), pair exchange, + x"""

def build(cfg):
    A = Asm()
    ks = cfg.get("kernels", ["k1"])
    if "k1" in ks:
        A.raw(f"; @launch kernel=k1_kernel grid=(256,1,1) block=(512,1,1) lds={cfg.get('k1_lds', 163840)}")
    if "k2" in ks:
        A.raw(f"; @launch kernel=k2_kernel grid=(256,1,1) block=(512,1,1) lds={cfg.get('k2_lds', 163840)}")
    for l in HEADER.split("\n"):
        A.raw(l)
    A.raw('.amdgcn_target "amdgcn-amd-amdhsa--gfx950"')
    A.raw(".text")
    names = []
    if "k1" in ks:
        names.append(k1(A, cfg))
    if "k2" in ks:
        import k2
        names.append(k2.k2(A, cfg))
    A.raw('.section .rodata,"a"')
    for n in names:
        descriptor(A, n)
    return A.text(cfg.get('hv', False))

if __name__ == "__main__":
    cfg = dict(special=True, stamps=("stamps" in sys.argv))
    for a in sys.argv[2:]:
        if "=" in a:
            k, v = a.split("=", 1)
            try:
                v = eval(v)
            except Exception:
                pass
            cfg[k] = v
    open(sys.argv[1], "w").write(build(cfg))
```

```python
from asmlib import *

WS_H = 0
H_PB = 224 * 1024
WS_AT = 16 << 20
WS_BT = 18 << 20
AT_BLK = 33 * 1024
AT_PE = 9 * AT_BLK
AT_TP = 2 * AT_PE
WS_ST = 20 << 20
WS_FLAG = (20 << 20) + 65536
WS_PART = 24 << 20
WS_DBG = 40 << 20
WS_BYTES = 268435456

STG = 49152
L_PM = 3 * STG
L_TM = L_PM + 4096
L_R = L_TM + 4096
L_CS = L_R + 1024
K1_LDS = L_CS + 8192
L_CS = 0
K1_LDS_H = L_R + 1024

S_X, S_W, S_WS, S_D = 16, 20, 24, 28
S_WAVE, S_XCD, S_J, S_M, S_F = 32, 33, 34, 35, 36
S_DBG = 64


def stamp(A, idx, sreg=90, enable=False):
    if not enable:
        return
    A.e(f"s_memtime s[{sreg}:{sreg+1}]")
    A.e("s_waitcnt lgkmcnt(0)")
    A.e(f"v_writelane_b32 v{STAMP_V}, s{sreg}, {idx}")
    if idx in (0, 4):
        A.e(f"s_memrealtime s[{sreg}:{sreg+1}]")
        A.e("s_waitcnt lgkmcnt(0)")
        A.e(f"v_writelane_b32 v{STAMP_V}, s{sreg}, {60 + (idx >> 2)}")


STAMP_V = 7


def k1h_consumer(A, cfg):
    dbg = cfg.get("stamps", False)
    ACC = 128
    FS = [64, 88]
    AP = [112, 113, 114, 115]
    AT = [116, 117]
    VL, VT0, VT1, VT2 = 1, 2, 3, 4
    sDelta, sCnt, sSlot = 40, 41, 42
    A.c("---- K1 h consumer ----")
    fine = cfg.get("fine", False)
    stp = [0]
    if cfg.get("prio", 1):
        A.e(f"s_setprio {cfg.get('prio', 1)}")
    A.e(f"s_lshr_b32 s43, s{S_WAVE}, 1")
    A.e(f"s_and_b32 s44, s{S_WAVE}, 1")
    A.e(f"v_and_b32 v{VT0}, 31, v{VL}")
    A.e(f"v_lshlrev_b32 v{VT0}, 7, v{VT0}")
    A.e(f"s_lshl_b32 s45, s43, 14")
    A.e(f"v_add_u32 v{VT0}, s45, v{VT0}")
    A.e(f"v_lshrrev_b32 v{VT1}, 5, v{VL}")
    A.e(f"v_bfe_u32 v{VT2}, v{VL}, 1, 3")
    A.e(f"v_xor_b32 v{VT1}, v{VT1}, v{VT2}")
    A.e(f"v_lshl_add_u32 v{AP[0]}, v{VT1}, 4, v{VT0}")
    for j in range(1, 4):
        A.e(f"v_xor_b32 v{AP[j]}, {j << 5}, v{AP[0]}")
    A.e(f"v_lshrrev_b32 v{VT0}, 5, v{VL}")
    A.e(f"v_bfe_u32 v{VT1}, v{VL}, 2, 2")
    A.e(f"v_lshl_add_u32 v{VT0}, v{VT0}, 3, v{VT1}")
    A.e(f"v_lshlrev_b32 v{VT0}, 8, v{VT0}")
    A.e(f"s_lshl_b32 s45, s44, 1")
    A.e(f"v_xor_b32 v{VT1}, s45, v{VT1}")
    A.e(f"v_lshl_add_u32 v{VT0}, v{VT1}, 6, v{VT0}")
    A.e(f"v_bfe_u32 v{VT1}, v{VL}, 4, 1")
    A.e(f"v_lshl_add_u32 v{VT0}, v{VT1}, 5, v{VT0}")
    A.e(f"v_and_b32 v{VT1}, 1, v{VL}")
    A.e(f"v_lshl_add_u32 v{VT0}, v{VT1}, 4, v{VT0}")
    A.e(f"v_bfe_u32 v{VT1}, v{VL}, 1, 1")
    A.e(f"v_lshl_add_u32 v{AT[0]}, v{VT1}, 3, v{VT0}")
    A.e(f"v_xor_b32 v{AT[1]}, 64, v{AT[0]}")
    PF = cfg.get("pf", 0)
    VPF, VDUM = 118, 119
    if PF:
        A.e(f"s_lshl_b32 s45, s{S_M}, 1")
        A.e(f"s_add_u32 s45, s45, s43")
        A.e(f"s_lshr_b32 s46, s45, 3")
        A.e(f"s_and_b32 s45, s45, 7")
        A.e(f"s_lshl_b32 s45, s45, 7")
        A.e(f"s_add_u32 s45, s45, s46")
        A.e(f"v_lshl_add_u32 v{VT0}, v{VL}, 1, s45")
        A.e(f"v_sub_u32 v{VT1}, 2048, v{VT0}")
        A.e(f"s_cmp_eq_u32 s44, 1")
        A.e(f"s_cselect_b64 vcc, -1, 0")
        A.e(f"v_cndmask_b32 v{VT0}, v{VT0}, v{VT1}, vcc")
        A.e(f"v_lshlrev_b32 v{VT0}, 11, v{VT0}")
        A.e(f"s_lshr_b32 s45, s37, 1")
        A.e(f"s_lshl_b32 s45, s45, 7")
        A.e(f"s_add_u32 s45, s45, 256")
        A.e(f"v_add_u32 v{VT0}, s45, v{VT0}")
        A.e(f"s_and_b32 s45, s{S_M}, 1")
        A.e(f"s_lshl_b32 s45, s45, 7")
        A.e(f"s_lshl_b32 s46, s{S_F}, 8")
        A.e(f"s_add_u32 s45, s45, s46")
        A.e(f"s_add_u32 s46, s{S_WAVE}, 2")
        A.e(f"s_mul_i32 s46, s46, {64*7168}")
        A.e(f"s_add_u32 s46, s46, s45")
        A.e(f"v_mul_u32_u24 v{VT1}, 7168, v{VL}")
        A.e(f"v_add_u32 v{VT1}, s46, v{VT1}")
        A.e(f"buffer_load_dword v{VDUM}, v{VT1}, {sr(S_W, 4)}, 0 offen")
        A.e(f"buffer_load_dword v{VDUM}, v{VT0}, {sr(S_X, 4)}, 0 offen")
        if PF == 2:
            for i in range(3):
                A.e(f"v_add_u32 v{VT1}, {4*64*7168}, v{VT1}")
                A.e(f"buffer_load_dword v{VDUM}, v{VT1}, {sr(S_W, 4)}, 0 offen")
        else:
            A.e(f"v_and_b32 v{VT1}, 15, v{VL}")
            A.e(f"s_lshl_b32 s46, s{S_WAVE}, 4")
            A.e(f"s_add_u32 s46, s46, {6*64}")
            A.e(f"v_add_u32 v{VT1}, s46, v{VT1}")
            A.e(f"v_mul_u32_u24 v{VT1}, 7168, v{VT1}")
            A.e(f"v_add_u32 v{VPF}, s45, v{VT1}")
    for r in range(128):
        A.e(f"v_mov_b32 v{ACC + r}, 0")
    A.e(f"s_mov_b32 s{sSlot}, 0")
    A.e(f"s_mov_b32 s59, {STG}")

    def reads(j, fs):
        b = FS[fs]
        R = []
        for nl in range(2):
            for q in range(2):
                R.append((f"ds_read_b64_tr_b16 {vr(b + nl*4 + q*2, 2)}, v{AT[nl]} offset:{32768 + j*4096 + q*1024}", (fs, "T", nl)))
        P = [(f"ds_read_b128 {vr(b + 8 + mb*4, 4)}, v{AP[j]} offset:{mb*4096}", (fs, "P", mb)) for mb in range(4)]
        X = [(f"ds_read_b128 {vr(16 + 4*(i % 8), 4)}, v{AP[j]} offset:{(i & 3)*4096}", (fs, "X", i)) for i in range(cfg.get("xr", 0))]
        return [R[0], R[1], P[0], R[2], R[3], P[1], P[2], P[3]] + X

    def mini_reads(fs):
        b = FS[fs]
        T = [(f"ds_read_b128 {vr(b + nl*4, 4)}, v{AT[0]} offset:{nl*512}", (fs, "T", nl)) for nl in range(2)]
        P = [(f"ds_read_b128 {vr(b + 8 + mb*4, 4)}, v{AP[0]} offset:{mb*512}", (fs, "P", mb)) for mb in range(4)]
        Rr = [(f"ds_read_b32 v{8 + 2*mb}, v{AP[1]} offset:{mb*128}", ("R", mb)) for mb in range(4)]
        return [T[0], P[0], T[1], P[1], P[2], P[3]] + Rr

    def substep(fs, rd, pre=None, barrier_at=None, per_gap=2):
        b = FS[fs]
        rd = list(rd)
        g = 0
        for mb in range(4):
            for nl in range(2):
                A.ds_need([(fs, "T", nl), (fs, "P", mb)])
                A.e(f"v_mfma_f32_32x32x16_bf16 {vr(ACC + (mb*2+nl)*16, 16)}, {vr(b + nl*4, 4)}, {vr(b + 8 + mb*4, 4)}, {vr(ACC + (mb*2+nl)*16, 16)}")
                if pre and g in pre:
                    for t in pre[g]:
                        if t == "BAR":
                            A.ds_drain()
                            if fine:
                                stamp(A, 8 + 2*stp[0], enable=True)
                            A.e("s_barrier")
                            if fine:
                                stamp(A, 9 + 2*stp[0], enable=True)
                                stp[0] += 1
                        else:
                            A.e(t)
                if barrier_at is None or g >= barrier_at:
                    for _ in range(per_gap):
                        if rd:
                            t, tag = rd.pop(0)
                            A.ds_issue(t, tag)
                g += 1
        assert not rd

    A.e("s_barrier")
    stamp(A, 1, enable=dbg)
    for t, tag in reads(0, 0):
        A.ds_issue(t, tag)
    A.e(f"s_mov_b32 s{sCnt}, 15")
    loop = A.newlabel("L_k1c_loop")
    A.label(loop)
    entry_ds = list(A.ds)
    BA = cfg.get("bar_at", 1)

    def body(last):
        pre0 = None
        if PF == 1 and not last:
            pre0 = {5: [f"buffer_load_dword v{VDUM}, v{VPF}, {sr(S_W, 4)}, 0 offen"], 7: [f"v_add_u32 v{VPF}, {64*7168}, v{VPF}"]}
        substep(0, reads(1, 1), pre=pre0)
        substep(1, reads(2, 0))
        if not last:
            pre = {0: [f"s_add_u32 s{sSlot}, s{sSlot}, 1", f"s_cmp_eq_u32 s{sSlot}, 3",
                       f"s_cselect_b32 s{sDelta}, {-2*STG & 0xffffffff}, s59", f"s_cselect_b32 s{sSlot}, 0, s{sSlot}"]}
            substep(0, reads(3, 1), pre=pre)
            upd = [f"v_add_u32 v{r}, s{sDelta}, v{r}" for r in [AT[0], AT[1], AP[0]]]
            upd2 = [f"v_add_u32 v{r}, s{sDelta}, v{r}" for r in AP[1:]]
            pre = {0: upd, 6: upd2}
            pre.setdefault(BA, [])
            pre[BA] = pre[BA] + ["BAR"]
            substep(1, reads(0, 0), pre=pre, barrier_at=BA)
        else:
            pre = {4: [f"v_and_b32 v{VT0}, 31, v{VL}", f"s_lshl_b32 s45, s43, 7", f"v_add_u32 v{VT0}, s45, v{VT0}"],
                   5: [f"v_and_b32 v{VT1}, 19, v{VL}", f"v_bfe_u32 v{VT2}, v{VL}, 2, 1", f"v_lshl_add_u32 v{VT1}, v{VT2}, 3, v{VT1}"],
                   6: [f"v_bfe_u32 v{VT2}, v{VL}, 3, 1", f"v_lshl_add_u32 v{VT1}, v{VT2}, 2, v{VT1}", f"s_lshl_b32 s45, s44, 6"],
                   7: [f"v_add_u32 v{VT1}, s45, v{VT1}", f"v_lshrrev_b32 v{VT2}, 5, v{VL}", f"v_lshl_add_u32 v{VT1}, v{VT2}, 7, v{VT1}"]}
            substep(0, reads(3, 1), pre=pre)
            pre = {0: [f"v_lshlrev_b32 v{AP[0]}, 4, v{VT0}", f"v_add_u32 v{AP[0]}, {L_PM}, v{AP[0]}",
                       f"v_lshlrev_b32 v{AP[1]}, 2, v{VT0}", f"v_add_u32 v{AP[1]}, {L_R}, v{AP[1]}"],
                   1: [f"v_lshlrev_b32 v{AT[0]}, 4, v{VT1}", f"v_add_u32 v{AT[0]}, {L_TM}, v{AT[0]}"]}
            BL = cfg.get("bar_last", 5)
            pre.setdefault(BL, [])
            pre[BL] = pre[BL] + ["BAR"]
            substep(1, mini_reads(0), pre=pre, barrier_at=BL, per_gap=4)
            substep(0, [])

    for _ in range(15 if fine else 1):
        body(False)
    assert A.ds == entry_ds, (A.ds, entry_ds)
    if not fine:
        A.e(f"s_sub_u32 s{sCnt}, s{sCnt}, 1")
        A.e(f"s_cmp_lg_u32 s{sCnt}, 0")
        A.e(f"s_cbranch_scc1 {loop}")
    body(True)
    A.ds_drain()
    stamp(A, 2, enable=dbg)
    A.e(f"s_lshl_b32 s45, s{S_M}, 3")
    A.e(f"s_lshl_b32 s46, s43, 2")
    A.e(f"s_add_u32 s45, s45, s46")
    A.e(f"s_mul_i32 s45, s45, {H_PB}")
    A.e(f"s_lshl_b32 s46, s{S_F}, 13")
    A.e(f"s_add_u32 s45, s45, s46")
    A.e(f"s_lshl_b32 s46, s44, 12")
    A.e(f"s_add_u32 s45, s45, s46")
    if WS_H:
        A.e(f"s_add_u32 s45, s45, {WS_H}")
    A.e(f"v_lshlrev_b32 v{VT0}, 4, v{VL}")
    aux = cfg.get("h_store_aux", "")
    OUT = 16
    k = 0
    for mb in range(4):
        for nl in range(2):
            a = ACC + (mb*2+nl)*16
            o = OUT + (k % 4) * 8
            k += 1
            for i in range(8):
                A.e(f"v_pk_mul_f32 {vr(a+2*i, 2)}, {vr(a+2*i, 2)}, {vr(8+2*mb, 2)} op_sel_hi:[1,0]")
            for i in range(8):
                A.e(f"v_cvt_pk_bf16_f32 v{o+i}, v{a+2*i}, v{a+2*i+1}")
            for i in range(8):
                A.e(f"v_pk_max_i16 v{o+i}, v{o+i}, 0")
            for b in range(2):
                A.e(f"buffer_store_dwordx4 {vr(o+4*b, 4)}, v{VT0}, {sr(S_WS, 4)}, s45 offen offset:{(nl*2+b)*1024}{aux}")
        if mb < 3:
            A.e(f"s_add_u32 s45, s45, {H_PB}")
    stamp(A, 3, enable=dbg)


def k1h_producer(A, cfg):
    dbg = cfg.get("stamps", False)
    VL, VT0, VT1, VT2 = 1, 2, 3, 4
    VP = list(range(8, 16))
    VT = 16
    VSP, VST = 17, 18
    VA = list(range(20, 28))
    SUM, SQ = [28, 29], [30, 31]
    CS = list(range(32, 40))
    DP = 64
    DT = 96
    sPW, sKP, sKT, sLP, sLT, sTmp, sCnt, sRd, sOne, sLo, sHi, sIs = 40, 41, 42, 43, 44, 45, 46, 47, 48, 49, 50, 51
    A.c("---- K1 h producer ----")
    fine = cfg.get("fine", False)
    stp = [0]
    A.e(f"s_sub_u32 s{sPW}, s{S_WAVE}, 4")
    A.e(f"s_lshr_b32 s52, s{sPW}, 1")
    A.e(f"s_lshl_b32 s53, s{S_M}, 1")
    A.e(f"s_add_u32 s52, s52, s53")
    A.e(f"s_lshr_b32 s53, s52, 3")
    A.e(f"s_and_b32 s52, s52, 7")
    A.e(f"s_lshl_b32 s52, s52, 7")
    A.e(f"s_add_u32 s52, s52, s53")
    A.e(f"s_mov_b32 s60, s52")
    A.e(f"s_and_b32 s54, s{sPW}, 1")
    A.e(f"s_cmp_eq_u32 s54, 1")
    A.e(f"s_cselect_b32 s55, -1, 1")
    A.e(f"s_cselect_b32 s56, {2048*2048}, 0")
    A.e(f"s_lshl_b32 s57, s55, 15")
    A.e(f"s_lshl_b32 s55, s55, 11")
    A.e(f"s_mov_b32 s59, {STG}")
    A.e(f"v_lshrrev_b32 v{VT0}, 3, v{VL}")
    A.e(f"v_lshl_add_u32 v{VT0}, v{VT0}, 1, s52")
    A.e(f"v_mul_lo_u32 v{VT0}, v{VT0}, s55")
    A.e(f"v_add_u32 v{VT0}, s56, v{VT0}")
    A.e(f"v_and_b32 v{VT1}, 7, v{VL}")
    A.e(f"v_lshrrev_b32 v{VT2}, 4, v{VL}")
    A.e(f"v_xor_b32 v{VT1}, v{VT1}, v{VT2}")
    A.e(f"v_lshlrev_b32 v{VT1}, 4, v{VT1}")
    A.e(f"v_xor_b32 v{VT2}, 64, v{VT1}")
    A.e(f"v_mov_b32 v5, {1024*2048}")
    A.e(f"v_cmp_eq_u32 vcc, {2048*2048}, v{VT0}")
    A.e(f"s_mov_b32 s58, 0")
    A.e("s_nop 0")
    A.e(f"v_cndmask_b32 v5, v{VT0}, v5, vcc")
    A.e(f"v_add_u32 v{VP[0]}, v5, v{VT1}")
    for p in range(1, 8):
        A.e(f"s_add_u32 s58, s58, s57")
        A.e(f"v_add3_u32 v{VP[p]}, v{VT0}, s58, v{VT2 if p & 1 else VT1}")
    A.e(f"v_lshrrev_b32 v{VT0}, 4, v{VL}")
    A.e(f"v_and_b32 v{VT1}, 15, v{VL}")
    A.e(f"v_lshlrev_b32 v{VT2}, 2, v{VT0}")
    A.e(f"v_xor_b32 v{VT1}, v{VT1}, v{VT2}")
    A.e(f"v_mul_u32_u24 v{VT0}, 7168, v{VT0}")
    A.e(f"v_lshl_add_u32 v{VT0}, v{VT1}, 4, v{VT0}")
    A.e(f"s_lshl_b32 s52, s{S_F}, 8")
    A.e(f"s_mul_i32 s53, s{sPW}, {16*7168}")
    A.e(f"s_add_u32 s52, s52, s53")
    A.e(f"v_add_u32 v{VT}, s52, v{VT0}")
    ROT = cfg.get("rot", 0)
    if ROT:
        if ROT == "mf":
            A.e(f"s_lshl_b32 s{sKP}, s{S_M}, 1")
            A.e(f"s_add_u32 s{sKP}, s{sKP}, s{S_F}")
            A.e(f"s_lshl_b32 s{sKP}, s{sKP}, 7")
        elif ROT == "m":
            A.e(f"s_lshl_b32 s{sKP}, s{S_M}, 8")
        else:
            A.e(f"s_mul_i32 s{sKP}, s{S_XCD}, {ROT*128}")
        A.e(f"s_and_b32 s{sKP}, s{sKP}, 2047")
        A.e(f"s_mul_i32 s{sKT}, s{sKP}, {64*7168//128}")
    else:
        A.e(f"s_mov_b32 s{sKP}, 0")
        A.e(f"s_mov_b32 s{sKT}, 0")
    A.e(f"s_lshl_b32 s{sLP}, s{sPW}, 13")
    A.e(f"s_lshl_b32 s{sLT}, s{sPW}, 12")
    A.e(f"s_add_u32 s{sLT}, s{sLT}, 32768")
    A.e(f"s_mov_b32 s{sIs}, 0")
    auxP, auxT = cfg.get("auxP", ""), cfg.get("auxT", "")

    def dma_list():
        D = []
        for q in range(4):
            D.append([f"s_add_u32 m0, s{sLT}, {q*1024}", f"s_add_u32 s{sTmp}, s{sKT}, {q*28672}",
                      f"buffer_load_dwordx4 v{VT}, {sr(S_W, 4)}, s{sTmp} offen{auxT} lds"])
            for p in (2*q, 2*q+1):
                D.append([f"s_add_u32 m0, s{sLP}, {p*1024}", "s_nop 0",
                          f"buffer_load_dwordx4 v{VP[p]}, {sr(S_X, 4)}, s{sKP} offen{auxP} lds"])
        adv = [f"s_add_u32 s{sKP}, s{sKP}, 128", f"s_and_b32 s{sKP}, s{sKP}, 2047", f"s_mul_i32 s{sKT}, s{sKP}, {64*7168//128}",
               f"s_add_u32 s{sIs}, s{sIs}, 1", f"s_cmp_eq_u32 s{sIs}, 3",
               f"s_cselect_b32 s{sTmp}, {-2*STG & 0xffffffff}, s59", f"s_cselect_b32 s{sIs}, 0, s{sIs}",
               f"s_add_u32 s{sLP}, s{sLP}, s{sTmp}", f"s_add_u32 s{sLT}, s{sLT}, s{sTmp}"]
        return D, adv

    for st in range(2):
        D, adv = dma_list()
        for d in D:
            for t in d:
                A.e(t)
        for t in adv:
            A.e(t)
    stamp(A, 1, enable=dbg)
    A.e(f"v_lshrrev_b32 v{VT0}, 2, v{VL}")
    A.e(f"v_and_b32 v{VT1}, 3, v{VT0}")
    A.e(f"v_xor_b32 v{VT1}, s{sPW}, v{VT1}")
    A.e(f"v_lshlrev_b32 v{VT0}, 8, v{VT0}")
    A.e(f"v_lshl_add_u32 v{VT0}, v{VT1}, 6, v{VT0}")
    A.e(f"v_and_b32 v{VT1}, 3, v{VL}")
    A.e(f"v_lshl_add_u32 v{VST}, v{VT1}, 4, v{VT0}")
    for r in CS:
        A.e(f"v_mov_b32 v{r}, 0")
    A.e(f"s_mov_b32 s{sRd}, 0")
    VFA, VFL, VSA, VSD = 20, 21, 22, 44
    A.e(f"v_and_b32 v{VFA}, 31, v{VL}")
    A.e(f"v_lshlrev_b32 v{VFA}, 2, v{VFA}")
    A.e(f"v_lshl_add_u32 v{VT0}, v{VL}, 1, s60")
    A.e(f"v_mul_lo_u32 v{VT0}, v{VT0}, s55")
    A.e(f"v_add_u32 v{VT0}, s56, v{VT0}")
    A.e(f"v_mov_b32 v5, {1024*2048}")
    A.e(f"v_cmp_eq_u32 vcc, {2048*2048}, v{VT0}")
    A.e(f"v_cndmask_b32 v{VT0}, v{VT0}, v5, vcc")
    A.e(f"v_lshrrev_b32 v{VSA}, 8, v{VT0}")
    A.e(f"s_mov_b32 s61, {WS_ST}")
    if cfg.get("zflag", True):
        A.e(f"s_lshl_b32 s52, s2, 7")
        A.e(f"s_add_u32 s52, s52, {WS_FLAG}")
        A.e(f"v_mov_b32 v5, 0")
        A.e(f"buffer_store_dword v5, v{VFA}, {sr(S_WS, 4)}, s52 offen")
    X0 = 1 if cfg.get("zflag", True) else 0

    def step(issue, vm, pre=None, post=None):
        if fine:
            stamp(A, 8 + 3*stp[0], enable=True)
        A.e(f"s_waitcnt vmcnt({vm})")
        if fine:
            stamp(A, 9 + 3*stp[0], enable=True)
        A.e("s_barrier")
        if fine:
            stamp(A, 10 + 3*stp[0], enable=True)
            stp[0] += 1
        for q in range(4):
            A.ds_issue(f"ds_read_b128 {vr(DT + 4*q, 4)}, v{VST} offset:{32768 + q*4096}", ("T", q))
        if pre:
            pre()
        D, adv = dma_list() if issue else ([], [])
        W = []
        for q in range(4):
            for hh in range(2):
                w = []
                for i in (2*hh, 2*hh+1):
                    w.append(f"v_lshlrev_b32 v{DP + 2*i}, 16, v{DT + 4*q + i}")
                    w.append(f"v_and_b32 v{DP + 2*i + 1}, 0xffff0000, v{DT + 4*q + i}")
                for i in (2*hh, 2*hh+1):
                    w.append(f"v_add_f32 v{CS[2*i]}, v{CS[2*i]}, v{DP + 2*i}")
                    w.append(f"v_add_f32 v{CS[2*i+1]}, v{CS[2*i+1]}, v{DP + 2*i + 1}")
                W.append((("T", q), w))
        if cfg.get("nostats"):
            W = [(t, []) for t, w in W]
        lead = cfg.get("dma_lead", 4)
        for _ in range(lead):
            if D:
                for t in D.pop(0):
                    A.e(t)
        for tag, w in W:
            A.ds_need([tag])
            for t in w:
                A.e(t)
            if D:
                for t in D.pop(0):
                    A.e(t)
        while D:
            for t in D.pop(0):
                A.e(t)
        for t in adv:
            A.e(t)
        if post:
            post()
        A.e(f"s_add_u32 s{sRd}, s{sRd}, 1")
        A.e(f"s_cmp_eq_u32 s{sRd}, 3")
        A.e(f"s_cselect_b32 s{sTmp}, {-2*STG & 0xffffffff}, s59")
        A.e(f"s_cselect_b32 s{sRd}, 0, s{sRd}")
        A.e(f"v_add_u32 v{VST}, s{sTmp}, v{VST}")

    def flag_load():
        A.e(f"buffer_load_dword v{VFL}, v{VFA}, {sr(S_DBG, 4)}, 0 offen sc1")

    def flag_check():
        A.label("L_k1p_poll")
        A.e(f"v_cmp_ne_u32 vcc, 0, v{VFL}")
        A.e(f"s_cmp_eq_u64 vcc, -1")
        A.e(f"s_cbranch_scc1 L_k1p_ok")
        A.e("s_sleep 8")
        flag_load()
        A.e("s_waitcnt vmcnt(0)")
        A.e("s_branch L_k1p_poll")
        A.label("L_k1p_ok")
        A.e(f"buffer_load_dwordx2 {vr(VSD, 2)}, v{VSA}, {sr(S_WS, 4)}, s61 offen sc1")

    def pm_write():
        A.e(f"s_lshl_b32 s53, s{sPW}, 6")
        A.e(f"v_add_u32 v5, s53, v{VL}")
        A.e(f"v_lshlrev_b32 v6, 4, v5")
        A.e(f"v_lshlrev_b32 v5, 2, v5")
        A.e(f"v_add_u32 v6, {L_PM}, v6")
        A.e(f"v_add_u32 v5, {L_R}, v5")
        A.e(f"v_mov_b32 v48, v{VSD}")
        A.e(f"v_and_b32 v49, 0xffff, v{VSD}")
        A.e(f"v_mov_b32 v50, 0")
        A.e(f"v_mov_b32 v51, 0")
        A.e(f"ds_write_b32 v5, v{VSD+1}")
        A.e(f"ds_write_b128 v6, v[48:51]")

    step(True, 12 + X0)
    NL = 9
    A.e(f"s_mov_b32 s{sCnt}, {NL}")
    loop = A.newlabel("L_k1p_loop")
    A.label(loop)
    for _ in range(NL if fine else 1):
        step(True, 12)
    if not fine:
        A.e(f"s_sub_u32 s{sCnt}, s{sCnt}, 1")
        A.e(f"s_cmp_lg_u32 s{sCnt}, 0")
        A.e(f"s_cbranch_scc1 {loop}")
    step(True, 12, post=flag_load)
    step(True, 13)
    step(True, 12, pre=flag_check)
    step(True, 13)
    step(False, 12, post=pm_write)
    step(False, 0)
    stamp(A, 2, enable=dbg)
    SCR = STG
    A.e(f"s_lshl_b32 s52, s{sPW}, 11")
    A.e(f"s_add_u32 s52, s52, {SCR}")
    A.e(f"v_lshlrev_b32 v{VT0}, 5, v{VL}")
    A.e(f"v_add_u32 v{VT0}, s52, v{VT0}")
    A.e(f"ds_write_b128 v{VT0}, {vr(CS[0], 4)}")
    A.e(f"ds_write_b128 v{VT0}, {vr(CS[4], 4)} offset:16")
    A.e(f"v_and_b32 v{VT1}, 31, v{VL}")
    A.e(f"v_lshrrev_b32 v{VT2}, 5, v{VL}")
    A.e(f"v_lshlrev_b32 v5, 2, v{VT1}")
    A.e(f"v_lshl_add_u32 v5, v{VT2}, 10, v5")
    A.e(f"v_add_u32 v5, s52, v5")
    A.e("s_waitcnt lgkmcnt(0)")
    for i in range(8):
        A.e(f"ds_read_b32 v{DT + i}, v5 offset:{i*128}")
    A.e(f"s_lshl_b32 s53, s{sPW}, 5")
    A.e(f"v_add_u32 v{VT1}, s53, v{VT1}")
    A.e(f"v_lshl_add_u32 v{VT1}, v{VT2}, 7, v{VT1}")
    A.e(f"v_lshlrev_b32 v{VT1}, 4, v{VT1}")
    A.e(f"v_add_u32 v{VT1}, {L_TM}, v{VT1}")
    A.e(f"v_mov_b32 v54, 0")
    A.e(f"v_mov_b32 v55, 0")
    A.e("s_waitcnt lgkmcnt(0)")
    for i in range(0, 8, 2):
        A.e(f"v_add_f32 v{DT + i}, v{DT + i}, v{DT + i + 1}")
    A.e(f"v_add_f32 v{DT}, v{DT}, v{DT + 2}")
    A.e(f"v_add_f32 v{DT + 4}, v{DT + 4}, v{DT + 6}")
    A.e(f"v_add_f32 v{DT}, v{DT}, v{DT + 4}")
    C0 = DT
    A.e(f"v_cvt_pk_bf16_f32 v48, -v{C0}, -v{C0}")
    A.e(f"v_and_b32 v48, 0xffff0000, v48")
    A.e(f"v_sub_f32 v49, -v{C0}, v48")
    A.e(f"v_cvt_pk_bf16_f32 v50, v49, v49")
    A.e(f"v_and_b32 v50, 0xffff0000, v50")
    A.e(f"v_sub_f32 v49, v49, v50")
    A.e(f"v_cvt_pk_bf16_f32 v53, v49, 0")
    A.e(f"v_lshrrev_b32 v48, 16, v48")
    A.e(f"v_or_b32 v52, v48, v50")
    A.e(f"ds_write_b128 v{VT1}, v[52:55]")
    A.e("s_waitcnt lgkmcnt(0)")
    A.e("s_barrier")
    stamp(A, 3, enable=dbg)
```

```python
from asmlib import *

WS_H = 0
H_PB = 224 * 1024
WS_AT = 16 << 20
WS_BT = 18 << 20
AT_BLK = 33 * 1024
AT_PE = 9 * AT_BLK
AT_TP = 2 * AT_PE
WS_ST = 20 << 20
WS_FLAG = (20 << 20) + 65536
WS_PART = 24 << 20
WS_DBG = 40 << 20
WS_BYTES = 268435456

STG = 49152
L_PM = 3 * STG
L_TM = L_PM + 4096
L_R = L_TM + 4096
L_CS = L_R + 1024
K1_LDS = L_CS + 8192
L_CS = 0
K1_LDS_H = L_R + 1024

S_X, S_W, S_WS, S_D = 16, 20, 24, 28
S_WAVE, S_XCD, S_J, S_M, S_F = 32, 33, 34, 35, 36
S_DBG = 64


def stamp(A, idx, sreg=90, enable=False):
    if not enable:
        return
    A.e(f"s_memtime s[{sreg}:{sreg+1}]")
    A.e("s_waitcnt lgkmcnt(0)")
    A.e(f"v_writelane_b32 v{STAMP_V}, s{sreg}, {idx}")
    if idx in (0, 4):
        A.e(f"s_memrealtime s[{sreg}:{sreg+1}]")
        A.e("s_waitcnt lgkmcnt(0)")
        A.e(f"v_writelane_b32 v{STAMP_V}, s{sreg}, {60 + (idx >> 2)}")


STAMP_V = 7


def k1h_consumer(A, cfg):
    dbg = cfg.get("stamps", False)
    ACC = 128
    FS = [64, 88]
    AP = [112, 113, 114, 115]
    AT = [116, 117]
    VL, VT0, VT1, VT2 = 1, 2, 3, 4
    sDelta, sCnt, sSlot = 40, 41, 42
    A.c("---- K1 h consumer ----")
    fine = cfg.get("fine", False)
    stp = [0]
    if cfg.get("prio", 1):
        A.e(f"s_setprio {cfg.get('prio', 1)}")
    A.e(f"s_lshr_b32 s43, s{S_WAVE}, 1")
    A.e(f"s_and_b32 s44, s{S_WAVE}, 1")
    A.e(f"v_and_b32 v{VT0}, 31, v{VL}")
    A.e(f"v_lshlrev_b32 v{VT0}, 7, v{VT0}")
    A.e(f"s_lshl_b32 s45, s43, 14")
    A.e(f"v_add_u32 v{VT0}, s45, v{VT0}")
    A.e(f"v_lshrrev_b32 v{VT1}, 5, v{VL}")
    A.e(f"v_bfe_u32 v{VT2}, v{VL}, 1, 3")
    A.e(f"v_xor_b32 v{VT1}, v{VT1}, v{VT2}")
    A.e(f"v_lshl_add_u32 v{AP[0]}, v{VT1}, 4, v{VT0}")
    for j in range(1, 4):
        A.e(f"v_xor_b32 v{AP[j]}, {j << 5}, v{AP[0]}")
    A.e(f"v_lshrrev_b32 v{VT0}, 5, v{VL}")
    A.e(f"v_bfe_u32 v{VT1}, v{VL}, 2, 2")
    A.e(f"v_lshl_add_u32 v{VT0}, v{VT0}, 3, v{VT1}")
    A.e(f"v_lshlrev_b32 v{VT0}, 8, v{VT0}")
    A.e(f"s_lshl_b32 s45, s44, 1")
    A.e(f"v_xor_b32 v{VT1}, s45, v{VT1}")
    A.e(f"v_lshl_add_u32 v{VT0}, v{VT1}, 6, v{VT0}")
    A.e(f"v_bfe_u32 v{VT1}, v{VL}, 4, 1")
    A.e(f"v_lshl_add_u32 v{VT0}, v{VT1}, 5, v{VT0}")
    A.e(f"v_and_b32 v{VT1}, 1, v{VL}")
    A.e(f"v_lshl_add_u32 v{VT0}, v{VT1}, 4, v{VT0}")
    A.e(f"v_bfe_u32 v{VT1}, v{VL}, 1, 1")
    A.e(f"v_lshl_add_u32 v{AT[0]}, v{VT1}, 3, v{VT0}")
    A.e(f"v_xor_b32 v{AT[1]}, 64, v{AT[0]}")
    PF = cfg.get("pf", 0)
    VPF, VDUM = 118, 119
    if PF:
        A.e(f"s_lshl_b32 s45, s{S_M}, 1")
        A.e(f"s_add_u32 s45, s45, s43")
        A.e(f"s_lshr_b32 s46, s45, 3")
        A.e(f"s_and_b32 s45, s45, 7")
        A.e(f"s_lshl_b32 s45, s45, 7")
        A.e(f"s_add_u32 s45, s45, s46")
        A.e(f"v_lshl_add_u32 v{VT0}, v{VL}, 1, s45")
        A.e(f"v_sub_u32 v{VT1}, 2048, v{VT0}")
        A.e(f"s_cmp_eq_u32 s44, 1")
        A.e(f"s_cselect_b64 vcc, -1, 0")
        A.e(f"v_cndmask_b32 v{VT0}, v{VT0}, v{VT1}, vcc")
        A.e(f"v_lshlrev_b32 v{VT0}, 11, v{VT0}")
        A.e(f"s_lshr_b32 s45, s37, 1")
        A.e(f"s_lshl_b32 s45, s45, 7")
        A.e(f"s_add_u32 s45, s45, 256")
        A.e(f"v_add_u32 v{VT0}, s45, v{VT0}")
        A.e(f"s_and_b32 s45, s{S_M}, 1")
        A.e(f"s_lshl_b32 s45, s45, 7")
        A.e(f"s_lshl_b32 s46, s{S_F}, 8")
        A.e(f"s_add_u32 s45, s45, s46")
        A.e(f"s_add_u32 s46, s{S_WAVE}, 2")
        A.e(f"s_mul_i32 s46, s46, {64*7168}")
        A.e(f"s_add_u32 s46, s46, s45")
        A.e(f"v_mul_u32_u24 v{VT1}, 7168, v{VL}")
        A.e(f"v_add_u32 v{VT1}, s46, v{VT1}")
        A.e(f"buffer_load_dword v{VDUM}, v{VT1}, {sr(S_W, 4)}, 0 offen")
        A.e(f"buffer_load_dword v{VDUM}, v{VT0}, {sr(S_X, 4)}, 0 offen")
        if PF == 2:
            for i in range(3):
                A.e(f"v_add_u32 v{VT1}, {4*64*7168}, v{VT1}")
                A.e(f"buffer_load_dword v{VDUM}, v{VT1}, {sr(S_W, 4)}, 0 offen")
        else:
            A.e(f"v_and_b32 v{VT1}, 15, v{VL}")
            A.e(f"s_lshl_b32 s46, s{S_WAVE}, 4")
            A.e(f"s_add_u32 s46, s46, {6*64}")
            A.e(f"v_add_u32 v{VT1}, s46, v{VT1}")
            A.e(f"v_mul_u32_u24 v{VT1}, 7168, v{VT1}")
            A.e(f"v_add_u32 v{VPF}, s45, v{VT1}")
    if cfg.get("cpf"):
        A.e(f"s_load_dwordx4 s[68:71], s[0:1], 8")
        A.e(f"s_load_dwordx2 s[72:73], s[0:1], 56")
        A.e(f"s_sub_u32 s52, s2, 32")
        A.e(f"s_lshl_b32 s52, s52, 2")
        A.e(f"s_add_u32 s52, s52, s{S_WAVE}")
        A.e(f"v_lshlrev_b32 v120, 6, v{VL}")
        A.e(f"s_lshl_b32 s53, s52, 13")
        A.e("s_waitcnt lgkmcnt(0)")
        srd(A, 76, 72, 3584*1024*2)
        A.e(f"s_bitcmp1_b32 s52, 8")
        A.e(f"s_cselect_b32 s68, s70, s68")
        A.e(f"s_cselect_b32 s69, s71, s69")
        srd(A, 80, 68, 2048*2048*2)
        A.e(f"s_add_u32 s54, s53, 4096")
        A.e(f"v_lshrrev_b32 v122, 4, v{VL}")
        A.e(f"v_and_b32 v121, 15, v{VL}")
        A.e(f"v_lshlrev_b32 v121, 6, v121")
        A.e(f"v_lshl_add_u32 v121, v122, 12, v121")
        A.e(f"s_and_b32 s55, s52, 255")
        A.e(f"s_lshl_b32 s55, s55, 14")
        A.e(f"s_lshr_b32 s52, s52, 9")
        A.e(f"s_lshl_b32 s52, s52, 30")
        A.e(f"v_add_u32 v121, s52, v121")
    for r in range(128):
        A.e(f"v_mov_b32 v{ACC + r}, 0")
    A.e(f"s_mov_b32 s{sSlot}, 0")
    A.e(f"s_mov_b32 s59, {STG}")

    def reads(j, fs):
        b = FS[fs]
        R = []
        for nl in range(2):
            for q in range(2):
                R.append((f"ds_read_b64_tr_b16 {vr(b + nl*4 + q*2, 2)}, v{AT[nl]} offset:{32768 + j*4096 + q*1024}", (fs, "T", nl)))
        P = [(f"ds_read_b128 {vr(b + 8 + mb*4, 4)}, v{AP[j]} offset:{mb*4096}", (fs, "P", mb)) for mb in range(4)]
        X = [(f"ds_read_b128 {vr(16 + 4*(i % 8), 4)}, v{AP[j]} offset:{(i & 3)*4096}", (fs, "X", i)) for i in range(cfg.get("xr", 0))]
        return [R[0], R[1], P[0], R[2], R[3], P[1], P[2], P[3]] + X

    def mini_reads(fs):
        b = FS[fs]
        T = [(f"ds_read_b128 {vr(b + nl*4, 4)}, v{AT[0]} offset:{nl*512}", (fs, "T", nl)) for nl in range(2)]
        P = [(f"ds_read_b128 {vr(b + 8 + mb*4, 4)}, v{AP[0]} offset:{mb*512}", (fs, "P", mb)) for mb in range(4)]
        Rr = [(f"ds_read_b32 v{8 + 2*mb}, v{AP[1]} offset:{mb*128}", ("R", mb)) for mb in range(4)]
        return [T[0], P[0], T[1], P[1], P[2], P[3]] + Rr

    def substep(fs, rd, pre=None, barrier_at=None, per_gap=2):
        b = FS[fs]
        rd = list(rd)
        g = 0
        for mb in range(4):
            for nl in range(2):
                A.ds_need([(fs, "T", nl), (fs, "P", mb)])
                if cfg.get("hack16"):
                    a0 = ACC + (mb*2+nl)*16 + 8*fs
                    A.e(f"v_mfma_f32_16x16x32_bf16 {vr(a0, 4)}, {vr(b + nl*4, 4)}, {vr(b + 8 + mb*4, 4)}, {vr(a0, 4)}")
                    A.e(f"v_mfma_f32_16x16x32_bf16 {vr(a0+4, 4)}, {vr(b + 8 + mb*4, 4)}, {vr(b + nl*4, 4)}, {vr(a0+4, 4)}")
                else:
                    A.e(f"v_mfma_f32_32x32x16_bf16 {vr(ACC + (mb*2+nl)*16, 16)}, {vr(b + nl*4, 4)}, {vr(b + 8 + mb*4, 4)}, {vr(ACC + (mb*2+nl)*16, 16)}")
                if pre and g in pre:
                    for t in pre[g]:
                        if t == "BAR":
                            A.ds_drain()
                            if fine:
                                stamp(A, 8 + 2*stp[0], enable=True)
                            A.e("s_barrier")
                            if fine:
                                stamp(A, 9 + 2*stp[0], enable=True)
                                stp[0] += 1
                        else:
                            A.e(t)
                if barrier_at is None or g >= barrier_at:
                    for _ in range(per_gap):
                        if rd:
                            t, tag = rd.pop(0)
                            A.ds_issue(t, tag)
                g += 1
        assert not rd

    A.e("s_barrier")
    stamp(A, 1, enable=dbg)
    for t, tag in reads(0, 0):
        A.ds_issue(t, tag)
    A.e(f"s_mov_b32 s{sCnt}, 15")
    loop = A.newlabel("L_k1c_loop")
    A.label(loop)
    entry_ds = list(A.ds)
    BA = cfg.get("bar_at", 1)

    def body(last):
        pre0 = None
        if PF == 1 and not last:
            pre0 = {5: [f"buffer_load_dword v{VDUM}, v{VPF}, {sr(S_W, 4)}, 0 offen"], 7: [f"v_add_u32 v{VPF}, {64*7168}, v{VPF}"]}
        substep(0, reads(1, 1), pre=pre0)
        substep(1, reads(2, 0))
        if not last:
            pre = {0: [f"s_add_u32 s{sSlot}, s{sSlot}, 1", f"s_cmp_eq_u32 s{sSlot}, 3",
                       f"s_cselect_b32 s{sDelta}, {-2*STG & 0xffffffff}, s59", f"s_cselect_b32 s{sSlot}, 0, s{sSlot}"]}
            substep(0, reads(3, 1), pre=pre)
            upd = [f"v_add_u32 v{r}, s{sDelta}, v{r}" for r in [AT[0], AT[1], AP[0]]]
            upd2 = [f"v_add_u32 v{r}, s{sDelta}, v{r}" for r in AP[1:]]
            pre = {0: upd, 6: upd2}
            pre.setdefault(BA, [])
            pre[BA] = pre[BA] + ["BAR"]
            substep(1, reads(0, 0), pre=pre, barrier_at=BA)
        else:
            pre = {4: [f"v_and_b32 v{VT0}, 31, v{VL}", f"s_lshl_b32 s45, s43, 7", f"v_add_u32 v{VT0}, s45, v{VT0}"],
                   5: [f"v_and_b32 v{VT1}, 19, v{VL}", f"v_bfe_u32 v{VT2}, v{VL}, 2, 1", f"v_lshl_add_u32 v{VT1}, v{VT2}, 3, v{VT1}"],
                   6: [f"v_bfe_u32 v{VT2}, v{VL}, 3, 1", f"v_lshl_add_u32 v{VT1}, v{VT2}, 2, v{VT1}", f"s_lshl_b32 s45, s44, 6"],
                   7: [f"v_add_u32 v{VT1}, s45, v{VT1}", f"v_lshrrev_b32 v{VT2}, 5, v{VL}", f"v_lshl_add_u32 v{VT1}, v{VT2}, 7, v{VT1}"]}
            substep(0, reads(3, 1), pre=pre)
            pre = {0: [f"v_lshlrev_b32 v{AP[0]}, 4, v{VT0}", f"v_add_u32 v{AP[0]}, {L_PM}, v{AP[0]}",
                       f"v_lshlrev_b32 v{AP[1]}, 2, v{VT0}", f"v_add_u32 v{AP[1]}, {L_R}, v{AP[1]}"],
                   1: [f"v_lshlrev_b32 v{AT[0]}, 4, v{VT1}", f"v_add_u32 v{AT[0]}, {L_TM}, v{AT[0]}"]}
            BL = cfg.get("bar_last", 5)
            pre.setdefault(BL, [])
            pre[BL] = pre[BL] + ["BAR"]
            substep(1, mini_reads(0), pre=pre, barrier_at=BL, per_gap=4)
            substep(0, [])

    for _ in range(15 if fine else 1):
        body(False)
    assert A.ds == entry_ds, (A.ds, entry_ds)
    CPF = cfg.get("cpf", None)
    if not fine:
        A.e(f"s_sub_u32 s{sCnt}, s{sCnt}, 1")
        if CPF:
            pa = cfg.get('pfaux', '')
            for i, at in enumerate(CPF):
                A.e(f"s_cmp_lg_u32 s{sCnt}, {15 - at}")
                A.e(f"s_cbranch_scc1 L_cpf{i}")
                if i == 0:
                    A.e(f"buffer_load_dword v{VDUM}, v120, s[76:79], s53 offen{pa}")
                elif i == 1:
                    A.e(f"buffer_load_dword v{VDUM}, v120, s[76:79], s54 offen{pa}")
                else:
                    A.e(f"buffer_load_dword v{VDUM}, v121, s[80:83], s55 offen{pa}")
                A.label(f"L_cpf{i}")
        A.e(f"s_cmp_lg_u32 s{sCnt}, 0")
        A.e(f"s_cbranch_scc1 {loop}")
    body(True)
    A.ds_drain()
    stamp(A, 2, enable=dbg)
    A.e(f"s_lshl_b32 s45, s{S_M}, 3")
    A.e(f"s_lshl_b32 s46, s43, 2")
    A.e(f"s_add_u32 s45, s45, s46")
    A.e(f"s_mul_i32 s45, s45, {H_PB}")
    A.e(f"s_lshl_b32 s46, s{S_F}, 13")
    A.e(f"s_add_u32 s45, s45, s46")
    A.e(f"s_lshl_b32 s46, s44, 12")
    A.e(f"s_add_u32 s45, s45, s46")
    if WS_H:
        A.e(f"s_add_u32 s45, s45, {WS_H}")
    A.e(f"v_lshlrev_b32 v{VT0}, 4, v{VL}")
    aux = cfg.get("h_store_aux", "")
    OUT = 16
    k = 0
    for mb in range(4):
        for nl in range(2):
            a = ACC + (mb*2+nl)*16
            o = OUT + (k % 4) * 8
            k += 1
            for i in range(8):
                A.e(f"v_pk_mul_f32 {vr(a+2*i, 2)}, {vr(a+2*i, 2)}, {vr(8+2*mb, 2)} op_sel_hi:[1,0]")
            for i in range(8):
                A.e(f"v_cvt_pk_bf16_f32 v{o+i}, v{a+2*i}, v{a+2*i+1}")
            for i in range(8):
                A.e(f"v_pk_max_i16 v{o+i}, v{o+i}, 0")
            for b in range(2):
                A.e(f"buffer_store_dwordx4 {vr(o+4*b, 4)}, v{VT0}, {sr(S_WS, 4)}, s45 offen offset:{(nl*2+b)*1024}{aux}")
        if mb < 3:
            A.e(f"s_add_u32 s45, s45, {H_PB}")
    stamp(A, 3, enable=dbg)


def k1h_producer(A, cfg):
    dbg = cfg.get("stamps", False)
    VL, VT0, VT1, VT2 = 1, 2, 3, 4
    VP = list(range(8, 16))
    VT = 16
    VSP, VST = 17, 18
    VA = list(range(20, 28))
    SUM, SQ = [28, 29], [30, 31]
    CS = list(range(32, 40))
    DP = 64
    DT = 96
    sPW, sKP, sKT, sLP, sLT, sTmp, sCnt, sRd, sOne, sLo, sHi, sIs = 40, 41, 42, 43, 44, 45, 46, 47, 48, 49, 50, 51
    A.c("---- K1 h producer ----")
    fine = cfg.get("fine", False)
    stp = [0]
    A.e(f"s_sub_u32 s{sPW}, s{S_WAVE}, 4")
    A.e(f"s_lshr_b32 s52, s{sPW}, 1")
    A.e(f"s_lshl_b32 s53, s{S_M}, 1")
    A.e(f"s_add_u32 s52, s52, s53")
    A.e(f"s_lshr_b32 s53, s52, 3")
    A.e(f"s_and_b32 s52, s52, 7")
    A.e(f"s_lshl_b32 s52, s52, 7")
    A.e(f"s_add_u32 s52, s52, s53")
    A.e(f"s_mov_b32 s60, s52")
    A.e(f"s_and_b32 s54, s{sPW}, 1")
    A.e(f"s_cmp_eq_u32 s54, 1")
    A.e(f"s_cselect_b32 s55, -1, 1")
    A.e(f"s_cselect_b32 s56, {2048*2048}, 0")
    A.e(f"s_lshl_b32 s57, s55, 15")
    A.e(f"s_lshl_b32 s55, s55, 11")
    A.e(f"s_mov_b32 s59, {STG}")
    A.e(f"v_lshrrev_b32 v{VT0}, 3, v{VL}")
    A.e(f"v_lshl_add_u32 v{VT0}, v{VT0}, 1, s52")
    A.e(f"v_mul_lo_u32 v{VT0}, v{VT0}, s55")
    A.e(f"v_add_u32 v{VT0}, s56, v{VT0}")
    A.e(f"v_and_b32 v{VT1}, 7, v{VL}")
    A.e(f"v_lshrrev_b32 v{VT2}, 4, v{VL}")
    A.e(f"v_xor_b32 v{VT1}, v{VT1}, v{VT2}")
    A.e(f"v_lshlrev_b32 v{VT1}, 4, v{VT1}")
    A.e(f"v_xor_b32 v{VT2}, 64, v{VT1}")
    A.e(f"v_mov_b32 v5, {1024*2048}")
    A.e(f"v_cmp_eq_u32 vcc, {2048*2048}, v{VT0}")
    A.e(f"s_mov_b32 s58, 0")
    A.e("s_nop 0")
    A.e(f"v_cndmask_b32 v5, v{VT0}, v5, vcc")
    A.e(f"v_add_u32 v{VP[0]}, v5, v{VT1}")
    for p in range(1, 8):
        A.e(f"s_add_u32 s58, s58, s57")
        A.e(f"v_add3_u32 v{VP[p]}, v{VT0}, s58, v{VT2 if p & 1 else VT1}")
    A.e(f"v_lshrrev_b32 v{VT0}, 4, v{VL}")
    A.e(f"v_and_b32 v{VT1}, 15, v{VL}")
    A.e(f"v_lshlrev_b32 v{VT2}, 2, v{VT0}")
    A.e(f"v_xor_b32 v{VT1}, v{VT1}, v{VT2}")
    A.e(f"v_mul_u32_u24 v{VT0}, 7168, v{VT0}")
    A.e(f"v_lshl_add_u32 v{VT0}, v{VT1}, 4, v{VT0}")
    A.e(f"s_lshl_b32 s52, s{S_F}, 8")
    A.e(f"s_mul_i32 s53, s{sPW}, {16*7168}")
    A.e(f"s_add_u32 s52, s52, s53")
    A.e(f"v_add_u32 v{VT}, s52, v{VT0}")
    ROT = cfg.get("rot", 0)
    if ROT:
        if ROT == "mf":
            A.e(f"s_lshl_b32 s{sKP}, s{S_M}, 1")
            A.e(f"s_add_u32 s{sKP}, s{sKP}, s{S_F}")
            A.e(f"s_lshl_b32 s{sKP}, s{sKP}, 7")
        elif ROT == "m":
            A.e(f"s_lshl_b32 s{sKP}, s{S_M}, 8")
        else:
            A.e(f"s_mul_i32 s{sKP}, s{S_XCD}, {ROT*128}")
        A.e(f"s_and_b32 s{sKP}, s{sKP}, 2047")
        A.e(f"s_mul_i32 s{sKT}, s{sKP}, {64*7168//128}")
    else:
        A.e(f"s_mov_b32 s{sKP}, 0")
        A.e(f"s_mov_b32 s{sKT}, 0")
    A.e(f"s_lshl_b32 s{sLP}, s{sPW}, 13")
    A.e(f"s_lshl_b32 s{sLT}, s{sPW}, 12")
    A.e(f"s_add_u32 s{sLT}, s{sLT}, 32768")
    A.e(f"s_mov_b32 s{sIs}, 0")
    auxP, auxT = cfg.get("auxP", ""), cfg.get("auxT", "")

    def dma_list():
        D = []
        for q in range(4):
            D.append([f"s_add_u32 m0, s{sLT}, {q*1024}", f"s_add_u32 s{sTmp}, s{sKT}, {q*28672}",
                      f"buffer_load_dwordx4 v{VT}, {sr(S_W, 4)}, s{sTmp} offen{auxT} lds"])
            for p in (2*q, 2*q+1):
                D.append([f"s_add_u32 m0, s{sLP}, {p*1024}", "s_nop 0",
                          f"buffer_load_dwordx4 v{VP[p]}, {sr(S_X, 4)}, s{sKP} offen{auxP} lds"])
        adv = [f"s_add_u32 s{sKP}, s{sKP}, 128", f"s_and_b32 s{sKP}, s{sKP}, 2047", f"s_mul_i32 s{sKT}, s{sKP}, {64*7168//128}",
               f"s_add_u32 s{sIs}, s{sIs}, 1", f"s_cmp_eq_u32 s{sIs}, 3",
               f"s_cselect_b32 s{sTmp}, {-2*STG & 0xffffffff}, s59", f"s_cselect_b32 s{sIs}, 0, s{sIs}",
               f"s_add_u32 s{sLP}, s{sLP}, s{sTmp}", f"s_add_u32 s{sLT}, s{sLT}, s{sTmp}"]
        return D, adv

    for st in range(2):
        D, adv = dma_list()
        for d in D:
            for t in d:
                A.e(t)
        for t in adv:
            A.e(t)
    stamp(A, 1, enable=dbg)
    A.e(f"v_lshrrev_b32 v{VT0}, 2, v{VL}")
    A.e(f"v_and_b32 v{VT1}, 3, v{VT0}")
    A.e(f"v_xor_b32 v{VT1}, s{sPW}, v{VT1}")
    A.e(f"v_lshlrev_b32 v{VT0}, 8, v{VT0}")
    A.e(f"v_lshl_add_u32 v{VT0}, v{VT1}, 6, v{VT0}")
    A.e(f"v_and_b32 v{VT1}, 3, v{VL}")
    A.e(f"v_lshl_add_u32 v{VST}, v{VT1}, 4, v{VT0}")
    for r in CS:
        A.e(f"v_mov_b32 v{r}, 0")
    A.e(f"s_mov_b32 s{sRd}, 0")
    VFA, VFL, VSA, VSD = 20, 21, 22, 44
    A.e(f"v_and_b32 v{VFA}, 31, v{VL}")
    A.e(f"v_lshlrev_b32 v{VFA}, 2, v{VFA}")
    A.e(f"v_lshl_add_u32 v{VT0}, v{VL}, 1, s60")
    A.e(f"v_mul_lo_u32 v{VT0}, v{VT0}, s55")
    A.e(f"v_add_u32 v{VT0}, s56, v{VT0}")
    A.e(f"v_mov_b32 v5, {1024*2048}")
    A.e(f"v_cmp_eq_u32 vcc, {2048*2048}, v{VT0}")
    A.e(f"v_cndmask_b32 v{VT0}, v{VT0}, v5, vcc")
    A.e(f"v_lshrrev_b32 v{VSA}, 8, v{VT0}")
    A.e(f"s_mov_b32 s61, {WS_ST}")
    if cfg.get("zflag", True):
        A.e(f"s_lshl_b32 s52, s2, 7")
        A.e(f"s_add_u32 s52, s52, {WS_FLAG}")
        A.e(f"v_mov_b32 v5, 0")
        A.e(f"buffer_store_dword v5, v{VFA}, {sr(S_WS, 4)}, s52 offen")
    X0 = 1 if cfg.get("zflag", True) else 0

    def step(issue, vm, pre=None, post=None):
        if fine:
            stamp(A, 8 + 3*stp[0], enable=True)
        A.e(f"s_waitcnt vmcnt({vm})")
        if fine:
            stamp(A, 9 + 3*stp[0], enable=True)
        A.e("s_barrier")
        if fine:
            stamp(A, 10 + 3*stp[0], enable=True)
            stp[0] += 1
        for q in range(4):
            A.ds_issue(f"ds_read_b128 {vr(DT + 4*q, 4)}, v{VST} offset:{32768 + q*4096}", ("T", q))
        if pre:
            pre()
        D, adv = dma_list() if issue else ([], [])
        W = []
        for q in range(4):
            for hh in range(2):
                w = []
                for i in (2*hh, 2*hh+1):
                    w.append(f"v_lshlrev_b32 v{DP + 2*i}, 16, v{DT + 4*q + i}")
                    w.append(f"v_and_b32 v{DP + 2*i + 1}, 0xffff0000, v{DT + 4*q + i}")
                for i in (2*hh, 2*hh+1):
                    w.append(f"v_add_f32 v{CS[2*i]}, v{CS[2*i]}, v{DP + 2*i}")
                    w.append(f"v_add_f32 v{CS[2*i+1]}, v{CS[2*i+1]}, v{DP + 2*i + 1}")
                W.append((("T", q), w))
        if cfg.get("nostats"):
            W = [(t, []) for t, w in W]
        lead = cfg.get("dma_lead", 4)
        for _ in range(lead):
            if D:
                for t in D.pop(0):
                    A.e(t)
        for tag, w in W:
            A.ds_need([tag])
            for t in w:
                A.e(t)
            if D:
                for t in D.pop(0):
                    A.e(t)
        while D:
            for t in D.pop(0):
                A.e(t)
        for t in adv:
            A.e(t)
        if post:
            post()
        A.e(f"s_add_u32 s{sRd}, s{sRd}, 1")
        A.e(f"s_cmp_eq_u32 s{sRd}, 3")
        A.e(f"s_cselect_b32 s{sTmp}, {-2*STG & 0xffffffff}, s59")
        A.e(f"s_cselect_b32 s{sRd}, 0, s{sRd}")
        A.e(f"v_add_u32 v{VST}, s{sTmp}, v{VST}")

    def flag_load():
        A.e(f"buffer_load_dword v{VFL}, v{VFA}, {sr(S_DBG, 4)}, 0 offen sc1")

    def flag_check():
        A.label("L_k1p_poll")
        A.e(f"v_cmp_ne_u32 vcc, 0, v{VFL}")
        A.e(f"s_cmp_eq_u64 vcc, -1")
        A.e(f"s_cbranch_scc1 L_k1p_ok")
        A.e("s_sleep 8")
        flag_load()
        A.e("s_waitcnt vmcnt(0)")
        A.e("s_branch L_k1p_poll")
        A.label("L_k1p_ok")
        A.e(f"buffer_load_dwordx2 {vr(VSD, 2)}, v{VSA}, {sr(S_WS, 4)}, s61 offen sc1")

    def pm_write():
        A.e(f"s_lshl_b32 s53, s{sPW}, 6")
        A.e(f"v_add_u32 v5, s53, v{VL}")
        A.e(f"v_lshlrev_b32 v6, 4, v5")
        A.e(f"v_lshlrev_b32 v5, 2, v5")
        A.e(f"v_add_u32 v6, {L_PM}, v6")
        A.e(f"v_add_u32 v5, {L_R}, v5")
        A.e(f"v_mov_b32 v48, v{VSD}")
        A.e(f"v_and_b32 v49, 0xffff, v{VSD}")
        A.e(f"v_mov_b32 v50, 0")
        A.e(f"v_mov_b32 v51, 0")
        A.e(f"ds_write_b32 v5, v{VSD+1}")
        A.e(f"ds_write_b128 v6, v[48:51]")

    PFW = cfg.get("pfw", None)
    def pfw():
        A.e(f"s_load_dwordx4 s[68:71], s[0:1], 8")
        A.e(f"s_load_dwordx2 s[72:73], s[0:1], 56")
        A.e(f"s_sub_u32 s52, s2, 32")
        A.e(f"s_lshl_b32 s52, s52, 2")
        A.e(f"s_add_u32 s52, s52, s{sPW}")
        A.e(f"v_lshlrev_b32 v46, 6, v{VL}")
        A.e(f"s_lshl_b32 s53, s52, 13")
        A.e("s_waitcnt lgkmcnt(0)")
        A.ds = []
        srd(A, 76, 72, 3584*1024*2)
        A.e(f"s_bitcmp1_b32 s52, 8")
        A.e(f"s_cselect_b32 s68, s70, s68")
        A.e(f"s_cselect_b32 s69, s71, s69")
        srd(A, 80, 68, 2048*2048*2)
        A.e(f"buffer_load_dword v47, v46, s[76:79], s53 offen{cfg.get('pfaux','')}")
        A.e(f"s_add_u32 s54, s53, 4096")
        A.e(f"buffer_load_dword v47, v46, s[76:79], s54 offen{cfg.get('pfaux','')}")
        A.e(f"v_lshrrev_b32 v47, 4, v{VL}")
        A.e(f"v_and_b32 v46, 15, v{VL}")
        A.e(f"v_lshlrev_b32 v46, 6, v46")
        A.e(f"v_lshl_add_u32 v46, v47, 12, v46")
        A.e(f"s_and_b32 s53, s52, 255")
        A.e(f"s_lshl_b32 s53, s53, 14")
        A.e(f"s_lshr_b32 s52, s52, 9")
        A.e(f"s_lshl_b32 s52, s52, 30")
        A.e(f"v_add_u32 v46, s52, v46")
        A.e(f"buffer_load_dword v47, v46, s[80:83], s53 offen{cfg.get('pfaux','')}")
    step(True, 12 + X0, post=pfw if PFW == 0 else None)
    NL = 9
    if PFW == 0:
        step(True, 15)
        NL = 8
    A.e(f"s_mov_b32 s{sCnt}, {NL}")
    loop = A.newlabel("L_k1p_loop")
    A.label(loop)
    for _ in range(NL if fine else 1):
        step(True, 12)
    if not fine:
        A.e(f"s_sub_u32 s{sCnt}, s{sCnt}, 1")
        A.e(f"s_cmp_lg_u32 s{sCnt}, 0")
        A.e(f"s_cbranch_scc1 {loop}")
    if PFW == 10:
        step(True, 12, post=lambda: (pfw(), flag_load()))
        step(True, 16)
    else:
        step(True, 12, post=flag_load)
        step(True, 13)
    step(True, 12, pre=flag_check)
    step(True, 13)
    step(False, 12, post=pm_write)
    step(False, 0)
    stamp(A, 2, enable=dbg)
    SCR = STG
    A.e(f"s_lshl_b32 s52, s{sPW}, 11")
    A.e(f"s_add_u32 s52, s52, {SCR}")
    A.e(f"v_lshlrev_b32 v{VT0}, 5, v{VL}")
    A.e(f"v_add_u32 v{VT0}, s52, v{VT0}")
    A.e(f"ds_write_b128 v{VT0}, {vr(CS[0], 4)}")
    A.e(f"ds_write_b128 v{VT0}, {vr(CS[4], 4)} offset:16")
    A.e(f"v_and_b32 v{VT1}, 31, v{VL}")
    A.e(f"v_lshrrev_b32 v{VT2}, 5, v{VL}")
    A.e(f"v_lshlrev_b32 v5, 2, v{VT1}")
    A.e(f"v_lshl_add_u32 v5, v{VT2}, 10, v5")
    A.e(f"v_add_u32 v5, s52, v5")
    A.e("s_waitcnt lgkmcnt(0)")
    for i in range(8):
        A.e(f"ds_read_b32 v{DT + i}, v5 offset:{i*128}")
    A.e(f"s_lshl_b32 s53, s{sPW}, 5")
    A.e(f"v_add_u32 v{VT1}, s53, v{VT1}")
    A.e(f"v_lshl_add_u32 v{VT1}, v{VT2}, 7, v{VT1}")
    A.e(f"v_lshlrev_b32 v{VT1}, 4, v{VT1}")
    A.e(f"v_add_u32 v{VT1}, {L_TM}, v{VT1}")
    A.e(f"v_mov_b32 v54, 0")
    A.e(f"v_mov_b32 v55, 0")
    A.e("s_waitcnt lgkmcnt(0)")
    for i in range(0, 8, 2):
        A.e(f"v_add_f32 v{DT + i}, v{DT + i}, v{DT + i + 1}")
    A.e(f"v_add_f32 v{DT}, v{DT}, v{DT + 2}")
    A.e(f"v_add_f32 v{DT + 4}, v{DT + 4}, v{DT + 6}")
    A.e(f"v_add_f32 v{DT}, v{DT}, v{DT + 4}")
    C0 = DT
    A.e(f"v_cvt_pk_bf16_f32 v48, -v{C0}, -v{C0}")
    A.e(f"v_and_b32 v48, 0xffff0000, v48")
    A.e(f"v_sub_f32 v49, -v{C0}, v48")
    A.e(f"v_cvt_pk_bf16_f32 v50, v49, v49")
    A.e(f"v_and_b32 v50, 0xffff0000, v50")
    A.e(f"v_sub_f32 v49, v49, v50")
    A.e(f"v_cvt_pk_bf16_f32 v53, v49, 0")
    A.e(f"v_lshrrev_b32 v48, 16, v48")
    A.e(f"v_or_b32 v52, v48, v50")
    A.e(f"ds_write_b128 v{VT1}, v[52:55]")
    A.e("s_waitcnt lgkmcnt(0)")
    A.e("s_barrier")
    stamp(A, 3, enable=dbg)
```

```python
from asmlib import *
from k1h import *

SLOT = 32768
NSL = 5
TOFF = 16384
ND, NH = 8, 28
S_C, S_W2, S_WS2, S_X2, S_O = 16, 20, 24, 28, 64
S_WAVE2, S_MT, S_NT, S_HALF, S_PAR, S_IDX = 32, 33, 34, 35, 36, 37


def mf(A, d, a, b, c):
    A.e(f"v_mfma_f32_32x32x16_bf16 {vr(d,16)}, {vr(a,4)}, {vr(b,4)}, {vr(c,16) if c is not None else 0}")


def mirror_idx(A, vc, vt):
    A.e(f"s_lshl_b32 s45, s{S_NT}, 7")
    A.e(f"v_add_u32 v{vc}, s45, v{vc}")
    A.e(f"v_sub_u32 v{vt}, 1024, v{vc}")
    A.e(f"v_min_u32 v{vc}, v{vc}, v{vt}")
    A.e(f"v_lshrrev_b32 v{vt}, 6, v{vc}")
    A.e(f"v_mul_u32_u24 v{vt}, {AT_BLK}, v{vt}")
    A.e(f"v_bfe_u32 v{vc}, v{vc}, 1, 5")
    A.e(f"v_lshl_add_u32 v{vc}, v{vc}, 4, v{vt}")


def k2_consumer(A, cfg):
    dbg = cfg.get("stamps", False)
    VL, T0, T1, T2_ = 1, 2, 3, 4
    ACC = 128
    DS_ = [64, 192]
    HS = [64, 96]
    XR = 240
    APD = [8, 9, 10, 11]
    ATD = 12
    AP, AT = 13, [14, 15]
    PX, TX, PC = 16, 20, 28
    VRO = 32
    sWM, sWN, sDelta, sCnt, sSlot = 43, 44, 40, 41, 42
    sC1, sC2 = 48, 50
    A.c("---- K2 consumer ----")
    if cfg.get("prio2", 1):
        A.e(f"s_setprio {cfg.get('prio2', 1)}")
    A.e(f"s_lshr_b32 s{sWM}, s{S_WAVE2}, 1")
    A.e(f"s_and_b32 s{sWN}, s{S_WAVE2}, 1")
    A.e(f"v_and_b32 v{T0}, 31, v{VL}")
    A.e(f"s_lshl_b32 s45, s{S_IDX}, 7")
    A.e(f"s_lshl_b32 s46, s{sWM}, 6")
    A.e(f"s_add_u32 s45, s45, s46")
    A.e(f"s_add_u32 s45, s45, s{S_PAR}")
    A.e(f"v_lshl_add_u32 v{T1}, v{T0}, 1, s45")
    A.e(f"v_lshrrev_b32 v{T2_}, 5, v{VL}")
    A.e(f"v_lshlrev_b32 v5, 12, v{T1}")
    A.e(f"v_lshl_add_u32 v5, v{T2_}, 30, v5")
    A.vm_issue(f"buffer_load_ushort v{PX}, v5, {sr(S_C,4)}, 0 offen offset:1024", "PX")
    A.e(f"v_and_b32 v5, 19, v{VL}")
    A.e(f"v_bfe_u32 v6, v{VL}, 2, 1")
    A.e(f"v_lshl_add_u32 v5, v6, 3, v5")
    A.e(f"v_bfe_u32 v6, v{VL}, 3, 1")
    A.e(f"v_lshl_add_u32 v5, v6, 2, v5")
    A.e(f"s_lshl_b32 s46, s{sWN}, 6")
    A.e(f"s_mul_i32 s47, s{S_HALF}, {WS_BT + AT_TP - WS_AT - 32*1024}")
    A.e(f"s_add_u32 s47, s47, {WS_AT + 32*1024}")
    for nl in range(2):
        A.e(f"v_add_u32 v33, s46, v5")
        if nl:
            A.e(f"v_add_u32 v33, 32, v33")
        mirror_idx(A, 33, 34)
        A.e(f"v_and_b32 v34, 1, v5")
        A.e(f"v_mul_u32_u24 v34, {AT_PE}, v34")
        A.e(f"v_add_u32 v33, v33, v34")
        A.vm_issue(f"buffer_load_ushort v{TX+4*nl}, v33, {sr(S_WS2,4)}, s47 offen", "TX")
    A.e(f"v_and_b32 v6, 1, v5")
    A.e(f"v_lshrrev_b32 v5, 1, v5")
    A.e(f"v_lshlrev_b32 v33, 3, v6")
    A.e(f"v_xor_b32 v5, v5, v33")
    A.e(f"v_lshlrev_b32 v5, 4, v5")
    A.e(f"v_lshl_add_u32 v5, v6, 12, v5")
    A.e(f"v_lshl_add_u32 v5, v{T2_}, 9, v5")
    A.e(f"s_lshl_b32 s46, s{sWN}, 13")
    A.e(f"s_add_u32 s46, s46, {TOFF}")
    A.e(f"v_add_u32 v{ATD}, s46, v5")
    A.e(f"v_sub_u32 v5, 2048, v{T1}")
    A.e(f"v_mov_b32 v6, 1024")
    A.e(f"v_cmp_eq_u32 vcc, 0, v{T1}")
    A.e(f"v_cndmask_b32 v5, v5, v6, vcc")
    A.e(f"v_mov_b32 v6, 0xc0000000")
    A.e(f"v_cndmask_b32 v{PC}, 0, v6, vcc")
    A.e(f"s_cmp_eq_u32 s{S_HALF}, 0")
    A.e(f"s_cselect_b64 vcc, -1, 0")
    A.e(f"v_cndmask_b32 v5, v5, v{T1}, vcc")
    A.e(f"v_lshlrev_b32 v5, 11, v5")
    A.e(f"v_lshl_add_u32 v5, v{T2_}, 4, v5")
    A.e(f"s_lshl_b32 s46, s{S_NT}, 8")
    A.e(f"s_lshl_b32 s47, s{sWN}, 7")
    A.e(f"s_add_u32 s46, s46, s47")
    A.e(f"v_add_u32 v{VRO}, s46, v5")
    for i in range(4):
        A.vm_issue(f"buffer_load_dwordx4 {vr(XR+4*i,4)}, v{VRO}, {sr(S_X2,4)}, 0 offen offset:{32*i}", "X")
    for i in range(1, 4):
        A.e(f"v_mov_b32 v{PC+i}, v{PC}")
        A.e(f"v_mov_b32 v{PX+i}, 0")
        A.e(f"v_mov_b32 v{TX+i}, 0")
        A.e(f"v_mov_b32 v{TX+4+i}, 0")
    A.e(f"s_lshr_b32 s46, s{S_NT}, 2")
    A.e(f"s_and_b32 s47, s46, s{S_HALF}")
    A.e(f"s_xor_b32 s46, s46, 1")
    A.e(f"s_and_b32 s46, s46, s{S_HALF}")
    A.e(f"s_lshl_b32 s46, s46, 31")
    A.e(f"s_lshl_b32 s47, s47, 31")
    A.e(f"s_or_b32 s{sC1}, s46, 1.0")
    A.e(f"s_or_b32 s{sC2}, s47, 1.0")
    A.e(f"s_mov_b32 s{sC1+1}, s{sC1}")
    A.e(f"s_mov_b32 s{sC2+1}, s{sC2}")
    A.e(f"v_lshlrev_b32 v5, 7, v{T0}")
    A.e(f"s_lshl_b32 s46, s{sWM}, 12")
    A.e(f"v_add_u32 v5, s46, v5")
    A.e(f"v_bfe_u32 v6, v{VL}, 1, 3")
    A.e(f"v_xor_b32 v6, v{T2_}, v6")
    A.e(f"v_lshl_add_u32 v{APD[0]}, v6, 4, v5")
    for j in range(1, 4):
        A.e(f"v_xor_b32 v{APD[j]}, {j << 5}, v{APD[0]}")
    H0 = (ND % NSL) * SLOT
    A.e(f"s_add_u32 s46, s46, {H0}")
    A.e(f"v_lshl_add_u32 v{AP}, v{VL}, 4, s46")
    A.e(f"v_bfe_u32 v6, v{VL}, 2, 2")
    A.e(f"v_lshl_add_u32 v5, v{T2_}, 3, v6")
    A.e(f"v_lshlrev_b32 v5, 8, v5")
    A.e(f"s_lshl_b32 s45, s{sWN}, 1")
    A.e(f"v_xor_b32 v6, s45, v6")
    A.e(f"v_lshl_add_u32 v5, v6, 6, v5")
    A.e(f"v_bfe_u32 v6, v{VL}, 4, 1")
    A.e(f"v_lshl_add_u32 v5, v6, 5, v5")
    A.e(f"v_and_b32 v6, 1, v{VL}")
    A.e(f"v_lshl_add_u32 v5, v6, 4, v5")
    A.e(f"v_bfe_u32 v6, v{VL}, 1, 1")
    A.e(f"v_lshl_add_u32 v5, v6, 3, v5")
    A.e(f"v_add_u32 v{AT[0]}, {H0 + TOFF}, v5")
    A.e(f"v_xor_b32 v{AT[1]}, 64, v{AT[0]}")
    for r in range(32):
        A.e(f"v_mov_b32 v{ACC + 32 + r}, 0")
    A.e(f"s_mov_b32 s{sSlot}, {ND % NSL}")
    A.e(f"s_mov_b32 s59, {SLOT}")

    def dreads(fs):
        b = DS_[fs]
        R = []
        for j in range(4):
            R.append((f"ds_read_b128 {vr(b + 12*j, 4)}, v{ATD} offset:{j*1024}", ("d", fs, j)))
            R.append((f"ds_read_b128 {vr(b + 12*j + 8, 4)}, v{APD[j]}", ("d", fs, j)))
            R.append((f"ds_read_b128 {vr(b + 12*j + 4, 4)}, v{ATD} offset:{j*1024 + 256}", ("d1", fs, j)))
        return R

    def hreads(sub, fs):
        b = HS[fs]
        R = []
        for jj in range(2):
            j = 2*sub + jj
            c = b + 16*jj
            for nl in range(2):
                for q in range(2):
                    R.append((f"ds_read_b64_tr_b16 {vr(c + nl*4 + q*2, 2)}, v{AT[nl]} offset:{j*4096 + q*1024}", (fs, "T", jj, nl)))
                R.append((f"ds_read_b128 {vr(c + 8 + nl*4, 4)}, v{AP} offset:{nl*8192 + j*1024}", (fs, "P", jj, nl)))
        return R

    def bar():
        A.ds_drain()
        A.e("s_barrier")

    A.vm_need(["PX", "TX"])
    for nl in range(2):
        mf(A, ACC + 16*nl, TX + 4*nl, PX, None)
    A.e("s_barrier")
    stamp(A, 1, enable=dbg)
    for t, tag in dreads(0):
        A.ds_issue(t, tag)
    A.e(f"s_or_b32 s45, s{S_MT}, s{S_HALF}")
    A.e(f"s_or_b32 s45, s45, s{sWM}")
    A.e(f"s_cmp_eq_u32 s45, 0")
    A.e(f"s_cbranch_scc1 L_k2c_corr")
    ds0 = list(A.ds)

    def dft(corr):
        A.ds = list(ds0)
        for s in range(ND):
            fs = s & 1
            b = DS_[fs]
            if s < ND - 1:
                d = SLOT if (s + 1) % NSL else -(NSL - 1) * SLOT
                for r in APD + [ATD]:
                    A.e(f"v_add_u32 v{r}, {d & 0xffffffff}, v{r}")
                rd = dreads(fs ^ 1)
            else:
                rd = hreads(0, 0)
            bar()
            g = 0
            for j in range(4):
                for nl in range(2):
                    mf(A, ACC + 16*nl, b + 12*j + 4*nl, b + 12*j + 8, ACC + 16*nl)
                    for _ in range(2):
                        if rd:
                            t, tag = rd.pop(0)
                            A.ds_issue(t, tag)
                    if corr:
                        mf(A, ACC + 32 + 16*nl, b + 12*j + 4*nl, PC, ACC + 32 + 16*nl)
            assert not rd

    dft(False)
    A.e("s_branch L_k2c_h")
    A.label("L_k2c_corr")
    dft(True)
    A.e("s_nop 7")
    A.e("s_nop 3")
    A.label("L_k2c_h")
    stamp(A, 2, enable=dbg)
    A.e("s_nop 7")
    A.e("s_nop 3")
    for i in range(0, 32, 2):
        A.e(f"v_pk_fma_f32 {vr(ACC+32+i,2)}, {vr(ACC+i,2)}, {sr(sC2,2)}, {vr(ACC+32+i,2)}")
    for i in range(0, 32, 2):
        A.e(f"v_pk_mul_f32 {vr(ACC+i,2)}, {vr(ACC+i,2)}, {sr(sC1,2)}")

    def substep(fs, rd, pre=None, barrier_at=None, per_gap=2):
        b = HS[fs]
        rd = list(rd)
        g = 0
        for jj in range(2):
            c = b + 16*jj
            for (mb, nl) in ((0, 0), (0, 1), (1, 1), (1, 0)):
                A.ds_need([(fs, "T", jj, nl), (fs, "P", jj, mb)])
                a = ACC + 32*mb + 16*nl
                if cfg.get("hack16"):
                    a0 = a + 8*jj
                    A.e(f"v_mfma_f32_16x16x32_bf16 {vr(a0, 4)}, {vr(c + 4*nl, 4)}, {vr(c + 8 + 4*mb, 4)}, {vr(a0, 4)}")
                    A.e(f"v_mfma_f32_16x16x32_bf16 {vr(a0+4, 4)}, {vr(c + 8 + 4*mb, 4)}, {vr(c + 4*nl, 4)}, {vr(a0+4, 4)}")
                else:
                    mf(A, a, c + 4*nl, c + 8 + 4*mb, a)
                if pre and g in pre:
                    for t in pre[g]:
                        if t == "BAR":
                            bar()
                        else:
                            A.e(t)
                if barrier_at is None or g >= barrier_at:
                    for _ in range(per_gap):
                        if rd:
                            t, tag = rd.pop(0)
                            A.ds_issue(t, tag)
                g += 1
        assert not rd

    BA = cfg.get("bar2_at", 1)
    A.e(f"s_mov_b32 s{sCnt}, {NH - 1}")
    A.label("L_k2c_loop")
    entry = list(A.ds)
    pre = {0: [f"s_add_u32 s{sSlot}, s{sSlot}, 1", f"s_cmp_eq_u32 s{sSlot}, {NSL}",
               f"s_cselect_b32 s{sDelta}, {-(NSL-1)*SLOT & 0xffffffff}, s59", f"s_cselect_b32 s{sSlot}, 0, s{sSlot}"],
           7: [f"v_add_u32 v{r}, s{sDelta}, v{r}" for r in [AT[0], AT[1], AP]]}
    substep(0, hreads(1, 1), pre=pre)
    substep(1, hreads(0, 0), pre={BA: ["BAR"], 5: [f"s_sub_u32 s{sCnt}, s{sCnt}, 1"], 7: [f"s_cmp_lg_u32 s{sCnt}, 0"]}, barrier_at=BA)
    assert A.ds == entry, (A.ds, entry)
    A.e("s_cbranch_scc1 L_k2c_loop")
    sSend, sRecv, sFl = 52, 53, 54
    VE = 33
    pre = {0: [f"s_lshl_b32 s45, s{S_WAVE2}, 13", f"s_add_u32 s45, s45, {WS_PART}", f"s_lshl_b32 s46, s2, 15"],
           1: [f"s_add_u32 s{sSend}, s45, s46", f"s_xor_b32 s{sRecv}, s{sSend}, 32768", f"v_lshlrev_b32 v{VE}, 4, v{VL}"],
           2: [f"s_lshl_b32 s{sFl}, s2, 7", f"s_add_u32 s{sFl}, s{sFl}, {WS_FLAG}", f"s_add_u32 s55, s{sSend}, 4096", f"s_add_u32 s56, s{sRecv}, 4096"],
           3: [f"v_mov_b32 v34, 0", f"v_mov_b32 v35, 1"]}
    substep(0, hreads(1, 1), pre=pre)
    substep(1, [])
    stamp(A, 3, enable=dbg)
    RV = 64

    def tail(keep, send, nm):
        for i in range(8):
            A.vm_issue(f"buffer_store_dwordx4 {vr(send + 4*i, 4)}, v{VE}, {sr(S_WS2,4)}, s{sSend if i < 4 else 55} offen offset:{(i & 3)*1024} sc1", "S")
        A.vm_need(["X"])
        for i in range(16):
            A.e(f"v_lshlrev_b32 v{RV + 32 + 2*i}, 16, v{XR + i}")
            A.e(f"v_and_b32 v{RV + 33 + 2*i}, 0xffff0000, v{XR + i}")
        for i in range(0, 32, 2):
            A.e(f"v_pk_add_f32 {vr(keep+i,2)}, {vr(keep+i,2)}, {vr(RV+32+i,2)}")
        A.vm_drain()
        A.e("s_barrier")
        A.e(f"s_cmp_lg_u32 s{S_WAVE2}, 0")
        A.e(f"s_cbranch_scc1 L_k2c_nf{nm}")
        A.e("s_mov_b64 exec, 1")
        A.e(f"buffer_store_dword v35, v34, {sr(S_WS2,4)}, s{sFl} offen sc1")
        A.e("s_mov_b64 exec, -1")
        A.label(f"L_k2c_nf{nm}")
        A.e(f"s_xor_b32 s{sFl}, s{sFl}, 128")
        stamp(A, 5, enable=dbg)
        A.label(f"L_k2c_poll{nm}")
        A.e(f"buffer_load_dword v36, v34, {sr(S_WS2,4)}, s{sFl} offen sc1")
        A.e("s_waitcnt vmcnt(0)")
        A.e(f"v_readfirstlane_b32 s45, v36")
        A.e(f"s_cmp_eq_u32 s45, 0")
        A.e(f"s_cbranch_scc1 L_k2c_poll{nm}")
        stamp(A, 6, enable=dbg)
        for i in range(8):
            A.vm_issue(f"buffer_load_dwordx4 {vr(RV + 4*i, 4)}, v{VE}, {sr(S_WS2,4)}, s{sRecv if i < 4 else 56} offen offset:{(i & 3)*1024} sc1", ("R", i))
        aux = cfg.get("o_aux", "")
        for i in range(4):
            A.vm_need([("R", 2*i), ("R", 2*i+1)])
            for k in range(0, 8, 2):
                A.e(f"v_pk_add_f32 {vr(keep+8*i+k,2)}, {vr(keep+8*i+k,2)}, {vr(RV+8*i+k,2)}")
            for k in range(4):
                A.e(f"v_cvt_pk_bf16_f32 v{XR+4*i+k}, v{keep+8*i+2*k}, v{keep+8*i+2*k+1}")
            A.vm_issue(f"buffer_store_dwordx4 {vr(XR+4*i,4)}, v{VRO}, {sr(S_O,4)}, 0 offen offset:{32*i}{aux}", "O")
        A.vm = []

    vm0 = list(A.vm)
    A.e(f"s_cmp_eq_u32 s{S_HALF}, 0")
    A.e("s_nop 7")
    A.e("s_nop 1")
    A.e(f"s_cbranch_scc0 L_k2c_t1")
    tail(ACC, ACC + 32, 0)
    A.e("s_branch L_k2_fin")
    A.label("L_k2c_t1")
    A.vm = list(vm0)
    tail(ACC + 32, ACC, 1)


def k2_producer(A, cfg):
    dbg = cfg.get("stamps", False)
    VL, T0, T1, T2_ = 1, 2, 3, 4
    VC = [8, 9]
    VA = 10
    VH = 11
    VW = [12, 13, 14, 15]
    sPW, sL, sL2, sKH, sKW, sTmp, sCnt, sIs, sEnd, sBeg = 40, 41, 42, 43, 44, 45, 46, 47, 48, 49
    auxC, auxA, auxH, auxW = cfg.get("auxC", ""), cfg.get("auxA", ""), cfg.get("auxH", ""), cfg.get("auxW", "")
    A.c("---- K2 producer ----")
    A.e(f"s_sub_u32 s{sPW}, s{S_WAVE2}, 4")
    A.e(f"s_lshl_b32 s52, s{S_IDX}, 7")
    A.e(f"s_lshl_b32 s53, s{sPW}, 5")
    A.e(f"s_add_u32 s52, s52, s53")
    A.e(f"s_add_u32 s52, s52, s{S_PAR}")
    A.e(f"v_lshrrev_b32 v{T0}, 3, v{VL}")
    A.e(f"v_lshl_add_u32 v{T0}, v{T0}, 1, s52")
    A.e(f"v_lshlrev_b32 v{T0}, 12, v{T0}")
    A.e(f"v_and_b32 v{T1}, 7, v{VL}")
    A.e(f"v_lshrrev_b32 v{T2_}, 4, v{VL}")
    A.e(f"v_xor_b32 v{T1}, v{T1}, v{T2_}")
    A.e(f"v_lshl_add_u32 v{VC[0]}, v{T1}, 4, v{T0}")
    A.e(f"v_xor_b32 v{VC[1]}, 64, v{VC[0]}")
    A.e(f"v_add_u32 v{VC[1]}, {65536 - 1024}, v{VC[1]}")
    A.e(f"s_lshl_b32 s{sL}, s{sPW}, 12")
    A.e(f"s_lshl_b32 s{sL2}, s{sPW}, 11")
    A.e(f"s_and_b32 s52, s{sPW}, 1")
    A.e(f"s_lshl_b32 s53, s52, 3")
    A.e(f"v_and_b32 v{T0}, 31, v{VL}")
    A.e(f"v_xor_b32 v{T0}, s53, v{T0}")
    A.e(f"s_lshr_b32 s53, s{sPW}, 1")
    A.e(f"s_lshl_b32 s53, s53, 6")
    A.e(f"s_add_u32 s53, s53, s52")
    A.e(f"v_lshl_add_u32 v{T0}, v{T0}, 1, s53")
    mirror_idx(A, T0, T1)
    A.e(f"v_lshrrev_b32 v{T1}, 5, v{VL}")
    A.e(f"v_lshl_add_u32 v{T0}, v{T1}, 9, v{T0}")
    A.e(f"s_mul_i32 s52, s52, {AT_PE}")
    A.e(f"s_mul_i32 s53, s{S_PAR}, {AT_TP}")
    A.e(f"s_add_u32 s52, s52, s53")
    A.e(f"s_lshl_b32 s53, s{S_HALF}, 21")
    A.e(f"s_add_u32 s52, s52, s53")
    A.e(f"s_add_u32 s52, s52, {WS_AT}")
    A.e(f"v_add_u32 v{VA}, s52, v{T0}")
    assert WS_BT - WS_AT == 1 << 21

    def dft_stage(s):
        sl = (s % NSL) * SLOT
        A.e(f"s_add_u32 m0, s{sL}, {sl + TOFF}")
        A.e(f"s_mov_b32 s{sTmp}, {s*4096}")
        for j in range(4):
            A.vm_issue(f"buffer_load_dwordx4 v{VA}, {sr(S_WS2,4)}, s{sTmp} offen offset:{j*1024}{auxA} lds", ("st", s))
        A.e(f"s_add_u32 m0, s{sL2}, {sl}")
        A.e(f"s_mov_b32 s{sTmp}, {s*128}")
        for p in range(2):
            A.vm_issue(f"buffer_load_dwordx4 v{VC[p]}, {sr(S_C,4)}, s{sTmp} offen offset:{p*1024}{auxC} lds", ("st", s))

    for s in range(2):
        dft_stage(s)
    A.e(f"s_lshl_b32 s52, s{S_MT}, 2")
    A.e(f"s_add_u32 s52, s52, s{sPW}")
    A.e(f"s_mul_i32 s52, s52, {H_PB}")
    A.e(f"s_mul_i32 s53, s{S_HALF}, {112*1024}")
    A.e(f"s_add_u32 s52, s52, s53")
    if WS_H:
        A.e(f"s_add_u32 s52, s52, {WS_H}")
    A.e(f"v_lshl_add_u32 v{VH}, v{VL}, 4, s52")
    A.e(f"v_lshrrev_b32 v{T0}, 4, v{VL}")
    A.e(f"v_and_b32 v{T1}, 15, v{VL}")
    A.e(f"v_lshlrev_b32 v{T2_}, 2, v{T0}")
    A.e(f"v_xor_b32 v{T1}, v{T1}, v{T2_}")
    A.e(f"v_lshlrev_b32 v{T0}, 11, v{T0}")
    A.e(f"v_lshl_add_u32 v{T0}, v{T1}, 4, v{T0}")
    A.e(f"s_lshl_b32 s52, s{S_NT}, 8")
    A.e(f"s_lshl_b32 s53, s{sPW}, 15")
    A.e(f"s_add_u32 s52, s52, s53")
    A.e(f"s_mul_i32 s53, s{S_HALF}, {1792*2048}")
    A.e(f"s_add_u32 s52, s52, s53")
    A.e(f"v_add_u32 v{VW[0]}, s52, v{T0}")
    for q in range(1, 4):
        A.e(f"v_add_u32 v{VW[q]}, {q*7168}, v{VW[0]}")
    for s in range(2, 4):
        dft_stage(s)
    stamp(A, 1, enable=dbg)
    ROT = cfg.get("rot2", 0)
    if ROT:
        A.e(f"s_lshr_b32 s52, s2, 1")
        A.e(f"s_and_b32 s52, s52, 3")
        A.e(f"s_mul_i32 s{sKH}, s52, {ROT*4096}")
    else:
        A.e(f"s_mov_b32 s{sKH}, 0")
    A.e(f"s_mov_b32 s59, {SLOT}")

    def h_stage(tag, sl=None):
        A.e(f"s_lshl_b32 s{sKW}, s{sKH}, 5")
        if sl is None:
            A.e(f"s_add_u32 m0, s{sL}, {TOFF}")
        else:
            A.e(f"s_add_u32 m0, s{sL}, {sl + TOFF}")
        for q in range(4):
            A.vm_issue(f"buffer_load_dwordx4 v{VW[q]}, {sr(S_W2,4)}, s{sKW} offen offset:{q*1024}{auxW} lds", tag)
        if sl is None:
            A.e(f"s_mov_b32 m0, s{sL}")
        else:
            A.e(f"s_add_u32 m0, s{sL}, {sl}")
        for j in range(4):
            A.vm_issue(f"buffer_load_dwordx4 v{VH}, {sr(S_WS2,4)}, s{sKH} offen offset:{j*1024}{auxH} lds", tag)
        A.e(f"s_add_u32 s{sKH}, s{sKH}, 4096")
        A.e(f"s_cmp_eq_u32 s{sKH}, {NH*4096}")
        A.e(f"s_cselect_b32 s{sKH}, 0, s{sKH}")

    NT_ = ND + NH
    LOOP0 = ND
    for s in range(LOOP0):
        A.vm_need([("st", s)])
        A.e("s_barrier")
        if s + 4 < ND:
            dft_stage(s + 4)
        else:
            h_stage(("st", s + 4), ((s + 4) % NSL) * SLOT)
    stamp(A, 2, enable=dbg)
    A.e(f"s_add_u32 s{sL}, s{sL}, {((LOOP0 + 4) % NSL) * SLOT}")
    A.e(f"s_mov_b32 s{sIs}, {(LOOP0 + 4) % NSL}")
    A.e(f"s_mov_b32 s{sCnt}, {NT_ - 4 - LOOP0}")
    A.label("L_k2p_loop")
    A.e("s_waitcnt vmcnt(24)")
    A.e("s_barrier")
    h_stage("x")
    A.e(f"s_add_u32 s{sIs}, s{sIs}, 1")
    A.e(f"s_cmp_eq_u32 s{sIs}, {NSL}")
    A.e(f"s_cselect_b32 s{sTmp}, {-(NSL-1)*SLOT & 0xffffffff}, s59")
    A.e(f"s_cselect_b32 s{sIs}, 0, s{sIs}")
    A.e(f"s_add_u32 s{sL}, s{sL}, s{sTmp}")
    A.e(f"s_sub_u32 s{sCnt}, s{sCnt}, 1")
    A.e(f"s_cmp_lg_u32 s{sCnt}, 0")
    A.e("s_cbranch_scc1 L_k2p_loop")
    for n in (24, 16, 8, 0):
        A.e(f"s_waitcnt vmcnt({n})")
        A.e("s_barrier")
    A.vm = []
    stamp(A, 3, enable=dbg)


def k2(A, cfg):
    name = "k2_kernel"
    dbg = cfg.get("stamps", False)
    kernel_begin(A, name)
    A.e("s_cmp_ge_u32 s2, 256")
    A.e("s_cbranch_scc1 L_k2_end")
    A.e("s_load_dwordx2 s[4:5], s[0:1], 0")
    A.e("s_load_dwordx4 s[8:11], s[0:1], 8")
    A.e("s_load_dwordx4 s[12:15], s[0:1], 56")
    A.e("s_load_dwordx2 s[6:7], s[0:1], 80")
    A.e("v_lshrrev_b32 v1, 6, v0")
    A.e(f"s_and_b32 s{S_HALF}, s2, 1")
    A.e(f"v_readfirstlane_b32 s{S_WAVE2}, v1")
    A.e("v_and_b32 v1, 63, v0")
    if dbg:
        A.e(f"v_mov_b32 v{STAMP_V}, 0")
    A.e(f"s_and_b32 s{S_MT}, s2, 6")
    A.e(f"s_lshl_b32 s{S_MT}, s{S_MT}, 1")
    A.e(f"s_bfe_u32 s38, s2, 0x20003")
    A.e(f"s_add_u32 s{S_MT}, s{S_MT}, s38")
    A.e(f"s_lshr_b32 s{S_NT}, s2, 5")
    A.e(f"s_lshr_b32 s{S_PAR}, s{S_MT}, 3")
    A.e(f"s_and_b32 s{S_IDX}, s{S_MT}, 7")
    A.e(f"s_cmp_eq_u32 s{S_HALF}, 0")
    A.e("s_waitcnt lgkmcnt(0)")
    A.e(f"s_cselect_b32 s8, s8, s10")
    A.e(f"s_cselect_b32 s9, s9, s11")
    srd(A, S_C, 8, 2048*2048*2)
    srd(A, S_WS2, 6, WS_BYTES)
    srd(A, S_W2, 12, 3584*1024*2)
    srd(A, S_X2, 4, 2048*1024*2)
    srd(A, S_O, 14, 2048*1024*2)
    stamp(A, 0, enable=dbg)
    A.e(f"s_cmp_ge_u32 s{S_WAVE2}, 4")
    A.e("s_cbranch_scc1 L_k2_prod")
    k2_consumer(A, cfg)
    A.e("s_branch L_k2_fin")
    A.label("L_k2_prod")
    k2_producer(A, cfg)
    A.label("L_k2_fin")
    if dbg:
        A.e("s_waitcnt vmcnt(0)")
        stamp(A, 4, enable=True)
        A.e("s_getreg_b32 s61, hwreg(HW_REG_XCC_ID)")
        A.e(f"v_writelane_b32 v{STAMP_V}, s61, 7")
        A.e(f"s_lshl_b32 s60, s2, 3")
        A.e(f"s_add_u32 s60, s60, s{S_WAVE2}")
        A.e(f"s_lshl_b32 s60, s60, 8")
        A.e(f"s_add_u32 s60, s60, {WS_DBG + (1 << 20)}")
        A.e("v_and_b32 v1, 63, v0")
        A.e("v_lshlrev_b32 v1, 2, v1")
        A.e(f"buffer_store_dword v{STAMP_V}, v1, {sr(S_WS2,4)}, s60 offen")
    A.label("L_k2_end")
    A.e("s_endpgm")
    return name
```

```python
from asmlib import *
from k1h import *

KSTR = 32 * 528
L_T2 = 4 * KSTR
L_RA = 69888
L_XR = L_RA + 65536
OOB = 0x40000000


def k1_special(A, cfg):
    dbg = cfg.get("stamps", False)
    aux = cfg.get("s_store_aux", "")
    VL, T0, T1, T2_, T3 = 1, 2, 3, 4, 5
    VC = 6
    RO = [8, 9, 10, 11]
    Q = 64
    SH = 12
    VP = [20, 21]
    sQB, sKind, sPE, sHB, sTmp, sTmp2, sNB, sSrc, sOut = 40, 41, 42, 43, 44, 45, 46, 47, 48
    sSlot = [50, 51, 52, 53]
    sOne = 54
    A.c("---- K1 special ----")
    A.e(f"s_mov_b32 s{sQB}, s2")
    A.e(f"s_lshr_b32 s{sKind}, s{S_WAVE}, 1")
    A.e(f"s_and_b32 s{sPE}, s{sKind}, 1")
    A.e(f"s_and_b32 s{sHB}, s{S_WAVE}, 1")
    A.e(f"s_cmp_ge_u32 s{S_WAVE}, 4")
    A.e(f"s_cselect_b32 s12, s14, s12")
    A.e(f"s_cselect_b32 s13, s15, s13")
    srd(A, S_D, 12, 1024 * 1024 * 2)
    A.e(f"v_and_b32 v{VC}, 31, v{VL}")
    A.e(f"v_lshrrev_b32 v{T0}, 5, v{VL}")
    A.e(f"s_lshl_b32 s{sTmp}, s{sQB}, 4")
    A.e(f"s_lshl_b32 s{sTmp2}, s{S_WAVE}, 1")
    A.e(f"s_add_u32 s{sTmp}, s{sTmp}, s{sTmp2}")
    A.e(f"v_add_u32 v{T0}, s{sTmp}, v{T0}")
    A.e(f"v_lshlrev_b32 v{RO[0]}, 11, v{T0}")
    A.e(f"v_cmp_eq_u32 s[56:57], 0, v{T0}")
    A.e(f"v_sub_u32 v{RO[1]}, {2048*2048}, v{RO[0]}")
    A.e(f"v_sub_u32 v{RO[2]}, {1024*2048}, v{RO[0]}")
    A.e(f"v_add_u32 v{RO[3]}, {1024*2048}, v{RO[0]}")
    A.e(f"v_mov_b32 v{T1}, {512*2048}")
    A.e(f"v_mov_b32 v{T2_}, {1536*2048}")
    A.e(f"v_cndmask_b32 v{RO[1]}, v{RO[1]}, v{T1}, s[56:57]")
    A.e(f"v_cndmask_b32 v{RO[3]}, v{RO[3]}, v{T2_}, s[56:57]")
    A.e(f"v_lshlrev_b32 v{T0}, 4, v{VC}")
    A.e(f"v_sub_u32 v{T1}, 1008, v{T0}")
    A.e(f"v_cmp_eq_u32 s[58:59], 0, v{VC}")
    A.e(f"v_mov_b32 v{T2_}, {OOB}")
    A.e(f"v_cndmask_b32 v{T2_}, v{T1}, v{T2_}, s[58:59]")
    for i in range(8):
        A.e(f"v_mov_b32 v{SH+i}, 0")
    for r in range(4):
        a, b = 22 + 2*(r & 1), 23 + 2*(r & 1)
        A.e(f"v_add_u32 v{a}, v{RO[r]}, v{T0}")
        A.e(f"v_add_u32 v{b}, v{RO[r]}, v{T1}")
        A.vm_issue(f"buffer_load_dwordx4 {vr(Q+16*r+0, 4)}, v{a}, {sr(S_X,4)}, 0 offen", ("Q", r))
        A.vm_issue(f"buffer_load_dwordx4 {vr(Q+16*r+8, 4)}, v{b}, {sr(S_X,4)}, 0 offen", ("Q", r))
        A.vm_issue(f"buffer_load_dwordx4 {vr(Q+16*r+12, 4)}, v{a}, {sr(S_X,4)}, 0 offen offset:1024", ("Q", r))
        A.vm_issue(f"buffer_load_dwordx4 {vr(Q+16*r+4, 4)}, v{b}, {sr(S_X,4)}, 0 offen offset:1024", ("Q", r))
    for r in range(4):
        a = 22 + (r & 1)
        A.e(f"v_add_u32 v{a}, v{RO[r]}, v{T2_}")
        A.vm_issue(f"buffer_load_short_d16_hi v{SH+2*r}, v{a}, {sr(S_X,4)}, 0 offen offset:1040", ("SH", r))
        A.vm_issue(f"buffer_load_short_d16_hi v{SH+2*r+1}, v{a}, {sr(S_X,4)}, 0 offen offset:16", ("SH", r))
    A.e(f"v_lshrrev_b32 v{T0}, 3, v{VL}")
    A.e(f"v_lshlrev_b32 v{T0}, 12, v{T0}")
    A.e(f"v_and_b32 v{T1}, 7, v{VL}")
    A.e(f"v_lshrrev_b32 v{T2_}, 4, v{VL}")
    A.e(f"v_xor_b32 v{T1}, v{T1}, v{T2_}")
    A.e(f"v_lshl_add_u32 v{VP[0]}, v{T1}, 4, v{T0}")
    A.e(f"v_xor_b32 v{VP[1]}, 64, v{VP[0]}")
    A.e(f"v_add_u32 v{VP[1]}, {8*4096}, v{VP[1]}")
    sBlk, sOutB, sOutM, sMask = 62, 55, 63, 49
    A.e(f"s_bfe_u32 s{sBlk}, s{sQB}, 0x10003")
    A.e(f"s_lshl1_add_u32 s{sBlk}, s{sHB}, s{sBlk}")
    A.e(f"s_lshl_b32 s{sSrc}, s{sBlk}, 6")
    A.e(f"s_add_u32 s{sSrc}, s{sSrc}, s{sPE}")
    A.e(f"s_lshl_b32 s{sSrc}, s{sSrc}, 11")
    A.e(f"s_lshl_b32 s{sTmp}, s{S_WAVE}, 13")
    A.e(f"s_add_u32 s{sSlot[0]}, s{sTmp}, {L_RA}")
    A.e(f"s_add_u32 s{sSlot[1]}, s{sTmp}, {L_RA + 4096}")
    A.e(f"s_mov_b32 s{sSlot[2]}, s{sTmp}")
    A.e(f"s_add_u32 s{sSlot[3]}, s{sTmp}, 4096")

    def dma_slot(q, nxt, tag):
        for p in range(4):
            A.e(f"s_add_u32 m0, s{sSlot[q]}, {p*1024}")
            A.e(f"s_add_u32 s{sTmp}, s{sSrc}, {(p >> 1)*16*4096 + q*128}")
            A.vm_issue(f"buffer_load_dwordx4 v{VP[p & 1]}, {sr(S_D,4)}, s{sTmp} offen{cfg.get('auxD', '')} lds", tag)

    PX = 28
    A.e(f"v_lshlrev_b32 v{T0}, 12, v{VC}")
    A.e(f"v_lshrrev_b32 v{T1}, 5, v{VL}")
    A.e(f"v_lshl_add_u32 v{T0}, v{T1}, 30, v{T0}")
    A.e(f"s_lshl_b32 s{sTmp}, s{sPE}, 11")
    A.vm_issue(f"buffer_load_ushort v{PX}, v{T0}, {sr(S_D,4)}, s{sTmp} offen offset:512", "PX")
    for i in range(1, 4):
        A.e(f"v_mov_b32 v{PX+i}, 0")
    A.e(f"s_lshl_b32 s{sTmp}, s{S_WAVE}, 10")
    A.e(f"s_add_u32 m0, s{sTmp}, {L_XR}")
    A.e(f"v_lshlrev_b32 v{T0}, 4, v{VL}")
    A.e(f"s_mov_b32 s{sTmp}, {256*2048}")
    A.vm_issue(f"buffer_load_dwordx4 v{T0}, {sr(S_D,4)}, s{sTmp} offen lds", "XR")
    stamp(A, 8 + 1, enable=dbg)
    ST = 32
    A.e(f"s_mov_b32 s{sOne}, 0x3f803f80")
    for i in range(8):
        A.e(f"v_mov_b32 v{ST+i}, 0")
    for r in range(0, 4, 2):
        A.vm_need([("Q", r), ("Q", r+1)])
        dma_slot(r >> 1, 0, ("D", r >> 1))
        for i in range(16):
            for rr in (r, r+1):
                A.e(f"v_dot2c_f32_bf16 v{ST+2*rr}, s{sOne}, v{Q+16*rr+i}")
                A.e(f"v_dot2c_f32_bf16 v{ST+2*rr+1}, v{Q+16*rr+i}, v{Q+16*rr+i}")
    for sh in (8, 4, 2, 1):
        for i in range(8):
            A.e(f"v_add_f32_dpp v{ST+i}, v{ST+i}, v{ST+i} row_ror:{sh} row_mask:0xf bank_mask:0xf")
    for i in range(8):
        A.e(f"v_mov_b32 v{ST+8+i}, v{ST+i}")
    for i in range(8):
        A.e(f"v_permlane16_swap_b32 v{ST+i}, v{ST+8+i}")
    for i in range(8):
        A.e(f"v_add_f32 v{ST+i}, v{ST+i}, v{ST+8+i}")
    PUB, MB = 40, 48
    for r in range(4):
        A.e(f"v_mul_f32 v{ST+2*r}, {1.0/1024}, v{ST+2*r}")
        A.e(f"v_mul_f32 v{ST+2*r+1}, {1.0/1024}, v{ST+2*r+1}")
    for r in range(4):
        A.e(f"v_fma_f32 v{ST+2*r+1}, -v{ST+2*r}, v{ST+2*r}, v{ST+2*r+1}")
    for r in range(4):
        A.e(f"v_max_f32 v{ST+2*r+1}, 0, v{ST+2*r+1}")
    for r in range(4):
        A.e(f"v_cvt_pk_bf16_f32 v{ST+2*r+1}, v{ST+2*r+1}, v{ST+2*r+1}")
    for r in range(4):
        A.e(f"v_and_b32 v{ST+2*r+1}, 0xffff0000, v{ST+2*r+1}")
    for r in range(4):
        A.e(f"v_add_f32 v{ST+2*r+1}, 0x3727c5ac, v{ST+2*r+1}")
    for r in range(4):
        A.e(f"v_cvt_pk_bf16_f32 v{ST+2*r+1}, v{ST+2*r+1}, v{ST+2*r+1}")
    for r in range(4):
        A.e(f"v_and_b32 v{ST+2*r+1}, 0xffff0000, v{ST+2*r+1}")
    for r in range(4):
        A.e(f"v_sqrt_f32 v{ST+2*r+1}, v{ST+2*r+1}")
    for r in range(4):
        A.e(f"v_cvt_pk_bf16_f32 v{PUB+2*r}, v{ST+2*r}, v{ST+2*r}")
    for r in range(4):
        A.e(f"v_cvt_pk_bf16_f32 v{ST+2*r+1}, v{ST+2*r+1}, v{ST+2*r+1}")
    for r in range(4):
        A.e(f"v_and_b32 v{ST+2*r+1}, 0xffff0000, v{ST+2*r+1}")
    for r in range(4):
        A.e(f"v_rcp_f32 v{PUB+2*r+1}, v{ST+2*r+1}")
    for r in range(4):
        A.e(f"v_and_b32 v{MB+r}, 0xffff0000, v{PUB+2*r}")
        A.e(f"v_lshrrev_b32 v{RO[r]}, 8, v{RO[r]}")
    A.e(f"s_mov_b32 s{sTmp2}, {WS_ST}")
    A.e(f"s_mov_b64 exec, s[58:59]")
    for r in range(4):
        A.vm_issue(f"buffer_store_dwordx2 {vr(PUB+2*r, 2)}, v{RO[r]}, {sr(S_WS,4)}, s{sTmp2} offen sc1", "ST")
    A.e(f"s_mov_b64 exec, -1")
    WA, WB = 52, 56
    Rr = [PUB + 2*r + 1 for r in range(4)]
    A.e(f"v_mov_b32 v{WA}, v{Rr[0]}")
    A.e(f"v_cndmask_b32 v{WA+1}, v{Rr[1]}, 0, s[56:57]")
    A.e(f"v_mov_b32 v{WA+2}, v{Rr[2]}")
    A.e(f"v_cndmask_b32 v{WA+3}, v{Rr[3]}, 0, s[56:57]")
    A.e(f"v_cndmask_b32 v{WB}, v{Rr[0]}, 0, s[56:57]")
    A.e(f"v_cndmask_b32 v{WB+1}, -v{Rr[1]}, v{Rr[1]}, s[56:57]")
    A.e(f"v_cndmask_b32 v{WB+2}, v{Rr[2]}, 0, s[56:57]")
    A.e(f"v_xor_b32 v{WB+3}, 0x80000000, v{Rr[3]}")
    KG, KH, KT = 32, 34, 36
    A.e(f"v_mul_f32 v{KG+1}, v{WA}, v{MB}")
    A.e(f"v_mul_f32 v{KH+1}, v{WA+2}, v{MB+2}")
    A.e(f"v_mul_f32 v{KT+1}, v{Rr[1]}, v{MB+1}")
    A.e(f"v_fmac_f32 v{KG+1}, v{WA+1}, v{MB+1}")
    A.e(f"v_fmac_f32 v{KH+1}, v{WA+3}, v{MB+3}")
    A.e(f"v_fmac_f32 v{KT+1}, v{Rr[3]}, v{MB+3}")
    G8A, H8A, T8, G8B, H8B = 60, 61, 62, 38, 39
    A.e(f"v_mul_f32 v{G8A}, -2.0, v{KG+1}")
    A.e(f"v_mul_f32 v{H8A}, -2.0, v{KH+1}")
    A.e(f"v_mul_f32 v{T8}, -2.0, v{KT+1}")
    A.e(f"v_mov_b32 v{G8B}, 0")
    A.e(f"v_mov_b32 v{H8B}, 0")
    for K, E in ((KG, G8A), (KH, H8A), (KT, T8)):
        A.e(f"v_mul_f32 v{K+1}, -4.0, v{K+1}")
    for K, E in ((KG, G8A), (KH, H8A), (KT, T8)):
        A.e(f"v_cndmask_b32 v{K}, v{K+1}, v{E}, s[58:59]")
    U0, U1, U2, U3 = 128, 136, 146, 156
    G, H, TT = 164, 196, 228
    PA = 244

    def bc(reg):
        b = reg & ~1
        return vr(b, 2), reg & 1

    def flag():
        A.e(f"s_cmp_lg_u32 s{S_WAVE}, 0")
        A.e(f"s_cbranch_scc1 L_k1s_noflag")
        A.e(f"s_lshl_b32 s{sTmp}, s{sQB}, 2")
        A.e(f"v_mov_b32 v{T0}, s{sTmp}")
        A.e(f"v_mov_b32 v{T1}, 1")
        A.e(f"s_mov_b64 exec, 1")
        A.e(f"buffer_store_dword v{T1}, v{T0}, {sr(S_DBG,4)}, 0 offen sc1")
        if cfg.get("zflag", True):
            A.e(f"s_lshl_b32 s{sTmp}, s{sQB}, 7")
            A.e(f"s_add_u32 s{sTmp}, s{sTmp}, {WS_FLAG}")
            A.e(f"v_mov_b32 v{T2_}, 0")
            A.e(f"buffer_store_dword v{T2_}, v{T2_}, {sr(S_WS,4)}, s{sTmp} offen")
        A.e(f"s_mov_b64 exec, -1")
        if not cfg.get("early"):
            A.e("s_waitcnt vmcnt(0)")
        A.label("L_k1s_noflag")

    for r in range(4):
        q = Q + 16*r
        if r == cfg.get("early_r", 1) and cfg.get("early"):
            A.vm_drain()
            A.e("s_barrier")
            stamp(A, 8 + 5, enable=dbg)
            flag()
            for t in cfg.get("hook", []):
                A.raw(t) if t.endswith(":") else A.e(t)
        A.vm_need([("SH", r)])
        for k in range(8):
            op = f"v_and_b32 v{{}}, 0xffff0000, v{{}}" if k & 1 else f"v_lshlrev_b32 v{{}}, 16, v{{}}"
            A.e(op.format(U0 + k, q + (k >> 1)))
            A.e(op.format(U3 + k, q + 12 + (k >> 1)))
            A.e(op.format(U1 + 8 - k, q + 4 + (k >> 1)))
            A.e(op.format(U2 + 8 - k, q + 8 + (k >> 1)))
        A.e(f"v_mov_b32 v{U1}, v{SH+2*r}")
        A.e(f"v_mov_b32 v{U2}, v{SH+2*r+1}")
        ACC = G if r < 2 else H
        first = (r & 1) == 0
        wa, sa = bc(WA + r)
        wb, sb = bc(WB + r)
        wt, st_ = bc(Rr[r])
        K = KG if r < 2 else KH
        for j in range(0, 8, 2):
            p, u, m_, w = PA, PA+2, PA+4, PA+6
            A.e(f"v_pk_add_f32 {vr(p,2)}, {vr(U0+j,2)}, {vr(U1+j,2)}")
            A.e(f"v_pk_add_f32 {vr(u,2)}, {vr(U2+j,2)}, {vr(U3+j,2)}")
            A.e(f"v_pk_add_f32 {vr(m_,2)}, {vr(U0+j,2)}, {vr(U1+j,2)} neg_lo:[0,1] neg_hi:[0,1]")
            A.e(f"v_pk_add_f32 {vr(w,2)}, {vr(U2+j,2)}, {vr(U3+j,2)} neg_lo:[0,1] neg_hi:[0,1]")
            A.e(f"v_pk_add_f32 {vr(U0+j,2)}, {vr(p,2)}, {vr(u,2)}")
            A.e(f"v_pk_add_f32 {vr(U1+j,2)}, {vr(p,2)}, {vr(u,2)} neg_lo:[0,1] neg_hi:[0,1]")
            A.e(f"v_pk_add_f32 {vr(U2+j,2)}, {vr(m_,2)}, {vr(w,2)} neg_lo:[0,1] neg_hi:[0,1]")
            A.e(f"v_pk_add_f32 {vr(U3+j,2)}, {vr(m_,2)}, {vr(w,2)}")
            for kind, U in enumerate((U0, U1, U2, U3)):
                wv, sv = (wa, sa) if kind < 2 else (wb, sb)
                d = vr(ACC + 8*kind + j, 2)
                if first and kind == 0:
                    k0 = 0 if j == 0 else 1
                    A.e(f"v_pk_fma_f32 {d}, {vr(U+j,2)}, {wv}, {vr(K,2)} op_sel:[0,{sv},{k0}] op_sel_hi:[1,{sv},1]")
                elif first:
                    A.e(f"v_pk_mul_f32 {d}, {vr(U+j,2)}, {wv} op_sel:[0,{sv}] op_sel_hi:[1,{sv}]")
                else:
                    A.e(f"v_pk_fma_f32 {d}, {vr(U+j,2)}, {wv}, {d} op_sel:[0,{sv},0] op_sel_hi:[1,{sv},1]")
            if not first:
                for kind, U in enumerate((U0, U1)):
                    d = vr(TT + 8*kind + j, 2)
                    if r == 1 and kind == 0:
                        k0 = 0 if j == 0 else 1
                        A.e(f"v_pk_fma_f32 {d}, {vr(U+j,2)}, {wt}, {vr(KT,2)} op_sel:[0,{st_},{k0}] op_sel_hi:[1,{st_},1]")
                    elif r == 1:
                        A.e(f"v_pk_mul_f32 {d}, {vr(U+j,2)}, {wt} op_sel:[0,{st_}] op_sel_hi:[1,{st_}]")
                    else:
                        A.e(f"v_pk_fma_f32 {d}, {vr(U+j,2)}, {wt}, {d} op_sel:[0,{st_},0] op_sel_hi:[1,{st_},1]")
        A.e(f"v_add_f32 v{PA}, v{U2+8}, v{U1+8}")
        A.e(f"v_sub_f32 v{PA+1}, v{U2+8}, v{U1+8}")
        A.e(f"v_fmac_f32 v{G8A if r < 2 else H8A}, v{WA+r}, v{PA}")
        A.e(f"v_fmac_f32 v{G8B if r < 2 else H8B}, v{WB+r}, v{PA+1}")
        if not first:
            A.e(f"v_fmac_f32 v{T8}, v{Rr[r]}, v{PA}")
    VTW = 22
    A.e(f"v_lshrrev_b32 v{T0}, 5, v{VL}")
    A.e(f"s_lshl_b32 s{sTmp}, s{S_WAVE}, 1")
    A.e(f"v_add_u32 v{T1}, s{sTmp}, v{T0}")
    A.e(f"v_mul_u32_u24 v{T1}, 528, v{T1}")
    A.e(f"v_lshl_add_u32 v{VTW}, v{VC}, 4, v{T1}")
    A.e(f"v_mul_u32_u24 v{T0}, 528, v{T0}")
    A.e(f"v_lshl_add_u32 v{VTW+1}, v{VC}, 4, v{T0}")
    A.e(f"v_add_u32 v{VTW+1}, {L_T2}, v{VTW+1}")
    O = Q
    n = 0
    for kind in range(4):
        for tp in range(2):
            neg = (tp == 1) if kind < 2 else (tp == 0)
            t = U0 + 8*(n & 1)
            o = O + 4*n
            n += 1
            for j in range(0, 8, 2):
                A.e(f"v_pk_add_f32 {vr(t+j,2)}, {vr(G+8*kind+j,2)}, {vr(H+8*kind+j,2)}" + (" neg_lo:[0,1] neg_hi:[0,1]" if neg else ""))
            for j in range(0, 8, 2):
                A.e(f"v_cvt_pk_bf16_f32 v{o + j//2}, v{t+j}, v{t+j+1}")
            A.e(f"ds_write_b128 v{VTW}, {vr(o,4)} offset:{kind*KSTR + tp*16*528}")
    Z = 96
    for i in range(20):
        if i & 3:
            A.e(f"v_mov_b32 v{Z+i}, 0")
    A.e(f"v_add_f32 v{PA}, v{G8A}, v{H8A}")
    A.e(f"v_sub_f32 v{PA+1}, v{G8A}, v{H8A}")
    A.e(f"v_sub_f32 v{PA+2}, v{G8B}, v{H8B}")
    A.e(f"v_add_f32 v{PA+3}, v{G8B}, v{H8B}")
    for i in range(4):
        A.e(f"v_cvt_pk_bf16_f32 v{Z+4*i}, v{PA+i}, 0")
    A.e(f"v_cvt_pk_bf16_f32 v{Z+16}, v{T8}, 0")
    for kind in range(2):
        for j in range(0, 8, 2):
            A.e(f"v_cvt_pk_bf16_f32 v{116 + 4*kind + j//2}, v{TT+8*kind+j}, v{TT+8*kind+j+1}")
    A.e(f"s_mov_b32 s60, 0x80000000")
    A.e(f"s_mov_b32 s61, 0x80000000")
    A.e(f"s_cmp_lg_u32 s{S_WAVE}, 0")
    A.e(f"s_cbranch_scc1 L_k1s_not2")
    for kind in range(2):
        A.e(f"ds_write_b128 v{VTW+1}, {vr(116+4*kind,4)} offset:{kind*1056}")
    A.e(f"s_mov_b64 exec, s[60:61]")
    for kind in range(2):
        A.e(f"ds_write_b128 v{VTW+1}, {vr(Z+16,4)} offset:{kind*1056 + 16}")
    A.label("L_k1s_not2")
    A.e(f"s_mov_b64 exec, s[60:61]")
    for kind in range(4):
        for tp in range(2):
            A.e(f"ds_write_b128 v{VTW}, {vr(Z + 4*((kind >> 1)*2 + tp), 4)} offset:{kind*KSTR + tp*16*528 + 16}")
    A.e(f"s_mov_b64 exec, -1")
    VTR, VTX, VT2R = 22, 23, 24
    A.e(f"v_and_b32 v{T0}, 19, v{VL}")
    A.e(f"v_bfe_u32 v{T1}, v{VL}, 2, 1")
    A.e(f"v_lshl_add_u32 v{T0}, v{T1}, 3, v{T0}")
    A.e(f"v_bfe_u32 v{T1}, v{VL}, 3, 1")
    A.e(f"v_lshl_add_u32 v{T0}, v{T1}, 2, v{T0}")
    A.e(f"v_mul_u32_u24 v{T0}, 528, v{T0}")
    A.e(f"s_mul_i32 s{sTmp}, s{sKind}, {KSTR}")
    A.e(f"v_lshrrev_b32 v{T1}, 5, v{VL}")
    A.e(f"s_mul_i32 s{sTmp2}, s{sPE}, 1056")
    A.e(f"s_add_u32 s{sTmp2}, s{sTmp2}, {L_T2}")
    A.e("s_waitcnt lgkmcnt(0)")
    A.e(f"v_add_u32 v{VTX}, s{sTmp}, v{T0}")
    A.e(f"v_lshl_add_u32 v{VTR}, v{T1}, 4, v{VTX}")
    A.e(f"v_lshlrev_b32 v{VT2R}, 4, v{T1}")
    A.e(f"v_add_u32 v{VT2R}, s{sTmp2}, v{VT2R}")
    A.e(f"v_mov_b32 v{VT2R+1}, s{sTmp2}")
    A.vm_drain()
    A.e("s_barrier")
    stamp(A, 8 + 2, enable=dbg)
    if not cfg.get("early"):
        flag()
    TF, T2F = 64, 132
    ACC, ACM, ACC2 = 200, 216, 232
    PF, PM = 48, 32
    for k in range(16):
        A.ds_issue(f"ds_read_b128 {vr(TF+4*k,4)}, v{VTR} offset:{32*k}", ("TF", k))
    A.ds_issue(f"ds_read_b128 {vr(TF+64,4)}, v{VTX} offset:512", ("TF", 16))
    APA, APB = [8, 9, 10, 11], [12, 13, 14, 15]
    A.e(f"v_lshlrev_b32 v{T0}, 7, v{VC}")
    A.e(f"v_lshrrev_b32 v{T1}, 5, v{VL}")
    A.e(f"v_bfe_u32 v{T2_}, v{VL}, 1, 3")
    A.e(f"v_xor_b32 v{T2_}, v{T1}, v{T2_}")
    A.e(f"v_lshl_add_u32 v{T0}, v{T2_}, 4, v{T0}")
    A.e(f"v_add_u32 v{APA[0]}, s{sSlot[0]}, v{T0}")
    A.e(f"v_add_u32 v{APB[0]}, s{sSlot[2]}, v{T0}")
    for j in range(1, 4):
        A.e(f"v_xor_b32 v{APA[j]}, {j << 5}, v{APA[0]}")
        A.e(f"v_xor_b32 v{APB[j]}, {j << 5}, v{APB[0]}")
    A.e(f"s_cmp_ge_u32 s{S_WAVE}, 4")
    A.e(f"s_cselect_b32 s{sOutB}, {WS_BT >> 20}, {WS_AT >> 20}")
    A.e(f"s_cselect_b32 s{sMask}, 15, 31")
    A.e(f"s_lshl_b32 s{sMask}, 1, s{sMask}")
    A.e(f"s_lshl_b32 s{sOutB}, s{sOutB}, 20")
    A.e(f"s_mul_i32 s{sTmp}, s{sPE}, {AT_PE}")
    A.e(f"s_add_u32 s{sOutB}, s{sOutB}, s{sTmp}")
    A.e(f"s_lshl_b32 s{sTmp}, s{sQB}, 10")
    A.e(f"s_add_u32 s{sOutB}, s{sOutB}, s{sTmp}")
    VO, VOM, VOX, VXR, PXM = 16, 17, 18, 19, 26
    A.e(f"v_lshlrev_b32 v{VO}, 4, v{VL}")
    A.e(f"s_sub_u32 s{sTmp}, 256, s{sPE}")
    A.e(f"v_sub_u32 v{T0}, s{sTmp}, v{VC}")
    A.e(f"v_lshrrev_b32 v{T2_}, 5, v{T0}")
    A.e(f"v_mul_u32_u24 v{T2_}, {AT_BLK}, v{T2_}")
    A.e(f"v_and_b32 v{T0}, 31, v{T0}")
    A.e(f"v_lshl_add_u32 v{T0}, v{T0}, 4, v{T2_}")
    A.e(f"v_lshl_add_u32 v{VOM}, v{T1}, 9, v{T0}")
    A.e(f"v_mov_b32 v{T0}, {OOB}")
    A.e(f"v_add_u32 v{T2_}, {4*AT_BLK}, v{VO}")
    A.e(f"v_cndmask_b32 v{VOX}, v{T0}, v{T2_}, s[58:59]")
    A.e(f"s_lshl_b32 s{sTmp}, s{S_WAVE}, 10")
    A.e(f"s_add_u32 s{sTmp}, s{sTmp}, {L_XR}")
    A.e(f"v_lshl_add_u32 v{VXR}, v{T1}, 4, s{sTmp}")
    A.ds_drain()
    A.e("s_barrier")
    dma_slot(2, 0, ("D", 2))
    dma_slot(3, 0, ("D", 3))
    A.e(f"s_xor_b32 s{sSrc}, s{sSrc}, {32*4096}")
    A.e(f"s_lshl_b32 s{sTmp}, s{sQB}, 2")
    A.e(f"s_add_u32 s{sTmp}, s{sTmp}, s{S_WAVE}")
    A.e(f"s_cmp_lt_u32 s{sTmp}, 4")
    A.e(f"s_cbranch_scc1 L_k1s_dual")
    vm0 = list(A.vm)

    def mf(d, a, b, c):
        A.e(f"v_mfma_f32_32x32x16_bf16 {vr(d,16)}, {vr(a,4)}, {vr(b,4)}, {vr(c,16) if c is not None else 0}")

    def out(acc, va, so):
        for i in range(8):
            A.e(f"v_cvt_pk_bf16_f32 v{248+i}, v{acc+2*i}, v{acc+2*i+1}")
        A.e(f"s_add_u32 s{sTmp}, s{so}, {AT_TP}")
        A.vm_issue(f"buffer_store_dwordx4 {vr(248,4)}, v{va}, {sr(S_WS,4)}, s{so} offen{aux}", "O")
        A.vm_issue(f"buffer_store_dwordx4 {vr(252,4)}, v{va}, {sr(S_WS,4)}, s{sTmp} offen{aux}", "O")

    def outv(lst):
        A.e(f"v_cvt_pk_bf16_f32 v{T0}, v{ACC2}, v{ACC2+1}")
        A.e(f"s_mov_b64 exec, 0xffffffff")
        for hi, va, so in lst:
            A.e(f"s_add_u32 s{sTmp}, s{so}, {32*1024}")
            A.vm_issue(f"buffer_store_short{'_d16_hi' if hi else ''} v{T0}, v{va}, {sr(S_WS,4)}, s{sTmp} offen{aux}", "O")
        A.e(f"s_mov_b64 exec, -1")

    def block(dual, last):
        A.e(f"s_mul_i32 s{sTmp}, s{sBlk}, {AT_BLK}")
        A.e(f"s_add_u32 s{sOut}, s{sOutB}, s{sTmp}")
        A.e(f"s_sub_u32 s{sOutM}, s{sOutB}, s{sTmp}")
        A.e(f"s_xor_b32 s{sBlk}, s{sBlk}, 1")
        for i in range(4):
            A.e(f"v_xor_b32 v{PM+i}, s{sMask}, v{PX+i}")
        mf(ACC, TF+64, PX, None)
        mf(ACM, TF+64, PM, None)
        if dual:
            mf(ACC2, T2F+64, PX, None)
        for q in range(4):
            A.vm_need([("D", q)])
            ap = APA if q < 2 else APB
            for j in range(4):
                A.ds_issue(f"ds_read_b128 {vr(PF+4*j,4)}, v{ap[j]} offset:{(q & 1)*4096}", ("PF", j))
            for j in range(4):
                A.ds_need([("PF", j)])
                if j == 3 and not last:
                    dma_slot(q, 1, ("D", q))
                k = 4*q + j
                mf(ACC, TF+4*k, PF+4*j, ACC)
                for i in range(4):
                    A.e(f"v_xor_b32 v{PM+4*j+i}, s{sMask}, v{PF+4*j+i}")
                if dual:
                    mf(ACC2, T2F+4*k, PF+4*j, ACC2)
                mf(ACM, TF+4*k, PM+4*j, ACM)
        out(ACC, VO, sOut)
        out(ACM, VOM, sOutM)
        if dual:
            outv([(0, VO, sOut), (1, VOM, sOutM)])

    def extra(dual):
        mf(ACC, TF+64, PX, None)
        if dual:
            mf(ACC2, T2F+64, PX, None)
        for q in range(4):
            for j in range(4):
                A.ds_issue(f"ds_read_b128 {vr(PF+4*j,4)}, v{VXR} offset:{32*(4*q+j)}", ("PF", j))
            for j in range(4):
                A.ds_need([("PF", j)])
                k = 4*q + j
                mf(ACC, TF+4*k, PF+4*j, ACC)
                if dual:
                    mf(ACC2, T2F+4*k, PF+4*j, ACC2)
        out(ACC, VOX, sOutB)
        if dual:
            outv([(0, VOX, sOutB)])

    def gemm(dual):
        nm = "d" if dual else "s"
        A.vm = list(vm0)
        if dual:
            for k in range(16):
                A.ds_issue(f"ds_read_b128 {vr(T2F+4*k,4)}, v{VT2R} offset:{32*k}", ("T2F", k))
            A.ds_issue(f"ds_read_b128 {vr(T2F+64,4)}, v{VT2R+1} offset:512", ("T2F", 16))
            A.e(f"v_lshlrev_b32 v{T0}, 31, v{VL}")
            A.ds_drain()
            for i in range(68):
                A.e(f"v_xor_b32 v{T2F+i}, v{T0}, v{T2F+i}")
        A.e(f"s_and_b32 s{sTmp}, s{S_WAVE}, 3")
        A.e(f"s_cmp_lg_u32 s{sTmp}, 1")
        A.e(f"s_cbranch_scc1 L_k1s_nox{nm}")
        extra(dual)
        A.label(f"L_k1s_nox{nm}")
        A.vm = list(vm0)
        block(dual, False)
        block(dual, True)

    gemm(False)
    A.e("s_branch L_k1s_done")
    A.label("L_k1s_dual")
    gemm(True)
    A.label("L_k1s_done")
    A.vm = []
    stamp(A, 8 + 3, enable=dbg)
```

```python
import sys
from asmlib import *
from k1h import WS_H, WS_AT, WS_BT, AT_BLK, AT_PE, AT_TP, WS_ST, WS_FLAG, WS_PART, WS_DBG, WS_BYTES, STAMP_V
import k1h

U = 16384
NS = 9
L_PM = NS * U
L_TM = L_PM + 4096
OOB = 0x40000000
WS_CS = 21 << 20
S_X, S_W1, S_WS, S_CS, S_DBG, S_W2, S_O, S_CR, S_CI = 16, 20, 24, 28, 64, 68, 72, 76, 80
S_WAVE, S_Q, S_PAR, S_MLO, S_NT, S_G = 32, 33, 34, 35, 36, 37
S_T0, S_T1, S_T2, S_T3 = 38, 39, 84, 85
S_CNT, S_TO, S_QB = 86, 87, 3
VL = 1
MF = "v_mfma_f32_16x16x32_bf16"


class St(Asm):
    def __init__(self):
        super().__init__()
        self.bidx = [0]
        self.ool = {}

    def block(self):
        self.bidx.append(len(self.L))

    def blocks(self):
        b = self.bidx + [len(self.L)]
        return [self.L[b[i]:b[i + 1]] for i in range(len(b) - 1)]


def stamp(A, idx, cfg):
    k1h.stamp(A, idx, enable=cfg.get("stamps", False))
    if cfg.get("stamps", False):
        A.ds = []


def roll(blocks, name, enable=True):
    out = []
    i = 0
    n = len(blocks)
    nl = 0
    while i < n:
        best = None
        if enable:
            for p in range(1, 13):
                k = 1
                while i + (k + 1) * p <= n and blocks[i + k * p:i + (k + 1) * p] == blocks[i:i + p]:
                    k += 1
                if k >= 2:
                    sav = (k - 1) * sum(len(b) for b in blocks[i:i + p])
                    if sav > 40 and (best is None or sav > best[0]):
                        best = (sav, p, k)
        if best:
            _, p, k = best
            nl += 1
            lab = f"L_{name}_r{nl}"
            out.append(f"    s_mov_b32 s{S_CNT}, {k - 1}")
            out.append(lab + ":")
            for b in blocks[i:i + p]:
                out += b
            out.append(f"    s_sub_u32 s{S_CNT}, s{S_CNT}, 1")
            out.append(f"    s_cbranch_scc0 {lab}")
            i += p * k
        else:
            out += blocks[i]
            i += 1
    return out


def make_sched(cfg):
    b1, b2 = cfg.get("b1", [1] * 8 + [(8, 4)]), cfg.get("b2", [(8, 4)] + [1] * 2 + [4])
    b1, b2 = [[(b, b) if isinstance(b, int) else b for b in bl] for bl in (b1, b2)]
    assert sum(b[0] for b in b1) == 16 and sum(b[0] for b in b2) == 14
    HS = []
    UT = []

    def unit(h):
        UT.append(dict(first=h, last=h))
        return len(UT) - 1

    for ph, bl in ((1, b1), (2, b2)):
        k = 0
        for s_, keep in bl:
            ds = []
            for i in range(s_):
                h = len(HS)
                ds.append(unit(h))
                HS.append(dict(kind="g", ph=ph, S=0, j=k + i, d=ds[i], ld=True, newd=True, r=unit(h)))
            for i in list(range(s_ - keep, s_)) + list(range(s_ - keep)):
                h = len(HS)
                kept = i >= s_ - keep
                if kept and s_ > 1:
                    UT[ds[i]]["last"] = h
                HS.append(dict(kind="g", ph=ph, S=1, j=k + i, d=ds[i] if kept else unit(h), ld=not kept, newd=s_ > 1, r=unit(h)))
            k += s_
    for kd in range(8):
        h = len(HS)
        HS.append(dict(kind="dft", ph=3, d=unit(h), ld=True, r=unit(h), kd=kd))
    free = [(-99, i, i) for i in range(NS)]
    for u in UT:
        u["need"] = u["first"] - 2
    for e in HS:
        e["own"] = e["ph"] == 2 and e["j"] < 2 and cfg.get("ownl", False)
        if e["own"]:
            UT[e["r"]]["need"] = max(h for h, f in enumerate(HS) if f["ph"] == 1 and f["S"] == e["S"])
    for n_, u in enumerate(sorted(UT, key=lambda u: u["need"] + (cfg.get("ownlate", 0) if u["need"] != u["first"] - 2 else 0))):
        free.sort()
        fb, _, sl = free.pop(0)
        u["slot"], u["fb"] = sl, fb
        assert fb <= u["need"], (n_, u)
        free.append((u["last"], NS + n_, sl))
    K = {}
    K["UT"] = UT
    LA = [h for h, e in enumerate(HS) if e["ph"] == 1 and e["S"] == 0]
    K["LA"] = LA
    K["aend"] = LA[-1] + 1
    K["cs"] = cfg.get("cs", LA[-1] - 1)
    K["p2"] = 32
    K["dft"] = 60
    K["a2end"] = max(h for h, e in enumerate(HS) if e["ph"] == 2 and e["S"] == 0)
    K["H"] = len(HS)
    fa = min(h for h, e in enumerate(HS) if e["ph"] == 2 and e["S"] == 0 and e["j"] >= 2)
    ob = min(h for h, e in enumerate(HS) if e["ph"] == 2 and e["S"] == 1)
    fb = min(h for h, e in enumerate(HS) if e["ph"] == 2 and e["S"] == 1 and e["j"] >= 2)
    K["drA"] = cfg.get("drA", min(K["aend"] + 4, 30))
    K["pA"] = cfg.get("pA", fa - 3)
    K["drB"] = cfg.get("drB", min(35, ob - 2))
    K["pB"] = cfg.get("pB", fb - 3)
    K["pAT"] = cfg.get("pAT", 50)
    K["drT"] = cfg.get("drT", 33)
    K["pX"] = cfg.get("pX", K["a2end"] - 1)
    K["scr"] = cfg.get("scr", 3)
    return HS, K


PF, TF, TMF, PC = 64, 96, 48, 44
ACC = [128, 192]
AXR, AH, AAT, ATT, APM, ATM, VST = [8, 9], 10, 11, [12, 13, 14, 15], 18, 19, 20
ATU = [24, 25, 26, 27]
GRP = {"X": AXR, "H": [AH], "A": [AAT], "T": ATT, "U": ATU}
VPA, VPV, VPA2, VPV2 = 21, 22, 23, 40
VO = [[24, 25], [26, 27]]
VR = [[28, 29], [30, 31]]
PXR, TXR = 32, 48
XR = 96
sWM, sWN, sHS, sXS, sXR, sFL, sSG, sLO, sHI = 40, 41, 42, 43, 44, 45, 46, 47, 48
sCT, sCB = 53, 54
VCA, SEN, MR, CSR = 16, 28, 32, 48


def acc(S, rb, cb):
    return ACC[S] + rb * 16 + cb * 4


def t_of(A, vd, vi, tmp):
    A.e(f"s_lshr_b32 s{tmp}, s{S_Q}, 1")
    A.e(f"s_lshl_b32 s{tmp}, s{tmp}, 6")
    A.e(f"v_xor_b32 v{vd}, s{tmp}, v{vi}")
    A.e(f"s_lshl_b32 s{tmp}, s{S_MLO}, 8")
    A.e(f"s_add_u32 s{tmp}, s{tmp}, s{S_PAR}")
    A.e(f"v_lshl_add_u32 v{vd}, v{vd}, 1, s{tmp}")


def mirror_t(A, vd, vs, vt):
    A.e(f"v_sub_u32 v{vd}, 2048, v{vs}")
    A.e(f"v_mov_b32 v{vt}, 1024")
    A.e(f"v_cmp_eq_u32 vcc, 0, v{vs}")
    A.e(f"v_cndmask_b32 v{vd}, v{vd}, v{vt}, vcc")


def mirror_e(L, vc, vt):
    L.append(f"v_sub_u32 v{vt}, 1024, v{vc}")
    L.append(f"v_min_u32 v{vc}, v{vc}, v{vt}")
    L.append(f"v_lshrrev_b32 v{vt}, 6, v{vc}")
    L.append(f"v_mul_u32_u24 v{vt}, {AT_BLK}, v{vt}")
    L.append(f"v_and_b32 v6, 1, v{vc}")
    L.append(f"v_mad_u32_u24 v{vt}, v6, s{S_T3}, v{vt}")
    L.append(f"v_bfe_u32 v{vc}, v{vc}, 1, 5")
    L.append(f"v_lshl_add_u32 v{vc}, v{vc}, 4, v{vt}")


VPF = 43


def pf_addr(cfg, vd, pitch, rows):
    return [f"s_and_b32 s{S_T2}, s{S_WAVE}, 3", f"s_lshl2_add_u32 s{S_T2}, s{S_MLO}, s{S_T2}", f"s_lshl1_add_u32 s{S_T2}, s{S_T2}, s{S_PAR}",
            f"s_mul_i32 s{S_T2}, s{S_T2}, {rows}", f"v_lshrrev_b32 v2, 1, v{VL}", f"v_add_u32 v2, s{S_T2}, v2", f"v_mul_u32_u24 v2, {pitch}, v2",
            f"v_and_b32 v3, 1, v{VL}", f"v_lshl_add_u32 v2, v3, 7, v2",
            f"v_add_u32 v3, {64 - 2 * rows}, v{VL}", f"v_lshrrev_b32 v3, 6, v3", f"v_lshl_add_u32 v{vd}, v3, 30, v2"]


def pf_w1(cfg, va, s, ns):
    L = pf_addr(cfg, va, 7168, 2 * ns)
    L += [f"s_mul_i32 s{s}, s{S_Q}, {cfg.get('rot', 0) * 64}",
          f"s_mul_i32 s{S_T3}, s{S_Q}, 7", f"s_add_u32 s{S_T3}, s{S_T3}, s{S_NT}", f"s_sub_u32 s{S_T3}, s{S_T3}, 1", f"s_lshl_b32 s{S_T3}, s{S_T3}, 8",
          f"v_add_u32 v{va}, s{S_T3}, v{va}"]
    assert cfg.get('rot', 0) % ns == 0 and cfg.get('rotp', 0) == 0
    return L, [f"s_and_b32 s{s}, s{s}, 1023", f"s_mul_i32 s{S_T3}, s{s}, 7168", f"s_add_u32 s{s}, s{s}, {64 * ns}",
               ("vm", f"buffer_load_dword v{VPF}, v{va}, {sr(S_W1, 4)}, s{S_T3} offen{cfg.get('pfaux', '')}", "PF")]


def pf_x(cfg, va, s, ns):
    nw = cfg.get("pfxw", 112)
    L = [f"s_sub_u32 s{S_T2}, s{S_NT}, 1"] + ([f"s_lshl2_add_u32 s{S_T2}, s{S_T2}, s{S_Q}"] if nw == 112 else []) + [f"s_lshl2_add_u32 s{S_T2}, s{S_T2}, s{S_WAVE}",
         f"v_lshrrev_b32 v2, {ns.bit_length() - 1}, v{VL}", f"v_mul_u32_u24 v2, {nw}, v2", f"v_add_u32 v4, s{S_T2}, v2", f"v_and_b32 v2, 127, v4",
         f"s_lshl_b32 s{S_T3}, s{S_MLO}, 8", f"s_add_u32 s{S_T3}, s{S_T3}, s{S_PAR}", f"v_lshl_add_u32 v2, v2, 1, s{S_T3}",
         f"v_sub_u32 v3, 2048, v2", f"v_and_b32 v3, 2047, v3",
         ("atom", [f"v_cmp_lt_u32 vcc, 127, v4", "v_cndmask_b32 v2, v2, v3, vcc"]),
         f"v_and_b32 v3, {ns - 1}, v{VL}", f"v_lshlrev_b32 v3, 7, v3", f"v_lshl_add_u32 v2, v2, 11, v3",
         f"v_lshrrev_b32 v3, 8, v4", f"v_min_u32 v3, 1, v3", f"v_lshl_add_u32 v{va}, v3, 30, v2",
         f"s_mul_i32 s{s}, s{S_Q}, {cfg.get('rot', 0) * 128 if nw != 112 else 0}"]
    assert (256 + nw - 1) // nw * ns <= 64
    return L, [f"s_and_b32 s{s}, s{s}, 2047", ("vm", f"buffer_load_dword v{VPF}, v{va}, {sr(S_X, 4)}, s{s} offen{cfg.get('pfaux', '')}", "PF"), f"s_add_u32 s{s}, s{s}, {128 * ns}"]


def pf_d(cfg):
    return [("atom", [f"s_cmp_eq_u32 s{sWM}, 1", f"s_cselect_b32 s{S_CS}, s14, s12", f"s_cselect_b32 s{S_CS + 1}, s15, s13"]),
            f"s_and_b32 s{S_CS + 1}, s{S_CS + 1}, 0xffff", f"s_mov_b32 s{S_CS + 2}, {1024 * 2048}", f"s_mov_b32 s{S_CS + 3}, 0x00020000",
            f"s_lshr_b32 s{S_T2}, s2, 3", f"s_sub_u32 s{S_T2}, s{S_T2}, 4", f"s_lshl1_add_u32 s{S_T2}, s{S_T2}, s{sWN}",
            f"v_lshrrev_b32 v2, 2, v{VL}", f"v_mul_u32_u24 v2, 56, v2", f"v_add_u32 v2, s{S_T2}, v2",
            f"v_and_b32 v3, 3, v{VL}", f"v_lshlrev_b32 v3, 7, v3", f"v_lshl_add_u32 v3, v2, 11, v3",
            f"v_lshrrev_b32 v2, 8, v2", f"v_min_u32 v2, 1, v2", f"v_lshl_add_u32 v2, v2, 30, v3",
            ("vm", f"buffer_load_dword v{VPF}, v2, {sr(S_CS, 4)}, 0 offen", "PF")]


def pf_w2(cfg, va, vd=VPF):
    L = pf_addr(cfg, va, 2048, 28)
    L += [f"s_mul_i32 s{S_T3}, s{S_Q}, {896 * 8}", f"s_add_u32 s{S_T3}, s{S_T3}, s{S_NT}", f"s_lshl_b32 s{S_T3}, s{S_T3}, 8"]
    return L + [("vm", f"buffer_load_dword v{vd}, v{va}, {sr(S_W2, 4)}, s{S_T3} offen{cfg.get('pfaux', '')}", "PF")]


def pf_c(cfg):
    L = [("atom", [f"s_cmp_eq_u32 s{sWM}, 1", f"s_cselect_b32 s{S_CS}, s{S_CI}, s{S_CR}", f"s_cselect_b32 s{S_CS + 1}, s{S_CI + 1}, s{S_CR + 1}"]),
         f"s_mov_b32 s{S_CS + 2}, s{S_CR + 2}", f"s_mov_b32 s{S_CS + 3}, s{S_CR + 3}",
         f"s_lshl1_add_u32 s{S_T2}, s{S_NT}, s{sWN}", f"s_lshl_b32 s{S_T2}, s{S_T2}, 2", f"v_lshrrev_b32 v2, 4, v{VL}", f"v_add_u32 v2, s{S_T2}, v2",
         f"s_lshr_b32 s{S_T2}, s{S_Q}, 1", f"s_lshl_b32 s{S_T2}, s{S_T2}, 6", f"v_xor_b32 v2, s{S_T2}, v2",
         f"s_lshl_b32 s{S_T2}, s{S_MLO}, 8", f"s_add_u32 s{S_T2}, s{S_T2}, s{S_PAR}", f"v_lshl_add_u32 v2, v2, 1, s{S_T2}",
         f"v_and_b32 v3, 15, v{VL}", f"v_lshlrev_b32 v3, 6, v3", f"v_lshl_add_u32 v2, v2, 12, v3",
         ("vm", f"buffer_load_dword v{VPF}, v2, {sr(S_CS, 4)}, 0 offen{cfg.get('pfaux', '')}", "PF")]
    return L


def check_poll(A, name, load, vreg, tag):
    A.e(f"s_mov_b32 s{S_TO}, 0x40000")
    A.vm_need([tag])
    A.label("L_pl@")
    A.e(f"v_cmp_ne_u32 vcc, 0, v{vreg}")
    A.e("s_cmp_eq_u64 vcc, -1")
    A.e("s_cbranch_scc1 L_ok@")
    A.e(load)
    A.e("s_waitcnt vmcnt(0)")
    A.e(f"s_sub_u32 s{S_TO}, s{S_TO}, 1")
    A.e("s_cbranch_scc0 L_pl@")
    A.label("L_ok@")


def consumer(cfg, HS, K, h0, h1, fused):
    A = St()
    main = h0 == 0
    sc = " sc1" if fused else ""
    A.e(f"s_setprio {cfg.get('prio', 1)}")
    A.e(f"s_lshr_b32 s{sWM}, s{S_WAVE}, 1")
    A.e(f"s_and_b32 s{sWN}, s{S_WAVE}, 1")
    A.e(f"v_and_b32 v2, 15, v{VL}")
    A.e(f"v_lshrrev_b32 v3, 4, v{VL}")
    A.e(f"s_lshl_b32 s{S_T0}, s{sWM}, 12")
    A.e(f"s_lshl_b32 s{S_T1}, s{sWN}, 12")
    A.e(f"v_lshlrev_b32 v{VST}, 4, v{VL}")
    base = {"X": 0, "H": 0, "A": 0, "T": 0, "U": 0}
    A.e(f"v_bfe_u32 v4, v{VL}, 2, 2")
    A.e(f"v_lshl_add_u32 v5, v3, 3, v4")
    A.e(f"v_lshlrev_b32 v5, 8, v5")
    A.e(f"v_and_b32 v6, 1, v3")
    A.e(f"v_lshl_add_u32 v4, v6, 2, v4")
    A.e(f"s_lshl_b32 s{S_T2}, s{sWN}, 1")
    A.e(f"v_xor_b32 v4, s{S_T2}, v4")
    A.e(f"v_lshl_add_u32 v5, v4, 5, v5")
    A.e(f"v_and_b32 v4, 3, v{VL}")
    A.e(f"v_lshl_add_u32 v{ATT[0]}, v4, 3, v5")
    for cb in range(1, 4):
        A.e(f"v_xor_b32 v{ATT[cb]}, {(cb >> 1) * 128 + (cb & 1) * 32}, v{ATT[0]}")
    A.e(f"v_lshrrev_b32 v4, 1, v2")
    A.e(f"v_xor_b32 v4, v3, v4")
    A.e(f"v_lshl_add_u32 v5, v2, 7, s{S_T0}")
    if fused and not main:
        base["X"] = K["xbase"]
        A.e(f"v_add_u32 v5, {base['X'] * U}, v5")
    A.e(f"v_lshl_add_u32 v{AXR[0]}, v4, 4, v5")
    A.e(f"v_xor_b32 v{AXR[1]}, 64, v{AXR[0]}")
    A.e(f"v_add_u32 v{AH}, s{S_T0}, v{VST}")
    A.e(f"v_add_u32 v{AAT}, s{S_T1}, v{VST}")
    if main:
        A.e(f"s_lshl_b32 s{S_T2}, s{sWM}, 9")
        A.e(f"s_add_u32 s{S_T2}, s{S_T2}, {L_PM}")
        A.e(f"v_lshl_add_u32 v{APM}, v2, 5, s{S_T2}")
        A.e(f"s_lshl_b32 s{S_T2}, s{S_WAVE}, 11")
        A.e(f"v_and_b32 v4, 7, v{VL}")
        A.e(f"v_lshl_add_u32 v4, v3, 3, v4")
        A.e(f"v_lshl_add_u32 v4, v4, 4, s{S_T2}")
        A.e(f"v_xor_b32 v{VCA}, 4096, v4")
        A.e(f"v_add_u32 v{ATM}, {L_TM}, v4")
        A.e(f"v_add_u32 v{VCA}, {L_TM}, v{VCA}")
        for i in range(4):
            A.e(f"v_mov_b32 v{PC + i}, 0x3f803f80")
        A.e(f"s_lshl_b32 s{sCT}, s{sWM}, 13")
        A.e(f"s_lshl_b32 s{sCB}, s{sWM}, 6")

        def swap():
            for r in ATT:
                A.e(f"v_xor_b32 v{r}, s{sCT}, v{r}")
            for r in AXR:
                A.e(f"v_xor_b32 v{r}, s{sCB}, v{r}")
        swap()
        for cb in range(4):
            A.e(f"v_xor_b32 v{ATU[cb]}, 8192, v{ATT[cb]}")
        A.e(f"s_lshl_b32 s{S_T2}, s{S_PAR}, 2")
        A.e(f"s_add_u32 s{S_T2}, s{S_T2}, s{S_MLO}")
        A.e(f"s_mul_i32 s{S_T2}, s{S_T2}, 56")
        A.e(f"s_mul_i32 s{S_T3}, s{S_Q}, 7")
        A.e(f"s_add_u32 s{S_T2}, s{S_T2}, s{S_T3}")
        A.e(f"s_add_u32 s{S_T2}, s{S_T2}, s{S_NT}")
        A.e(f"s_sub_u32 s{S_T2}, s{S_T2}, 1")
        A.e(f"s_lshl_b32 s{sHS}, s{S_T2}, 15")
        A.e(f"s_add_u32 s{sHS}, s{sHS}, s{S_T0}")
        A.e(f"s_lshl_b32 s{S_T2}, s{sWN}, 10")
        A.e(f"s_add_u32 s{sHS}, s{sHS}, s{S_T2}")
        assert WS_H == 0
    A.e(f"s_lshl_b32 s{sFL}, s{S_G}, 7")
    A.e(f"s_add_u32 s{sFL}, s{sFL}, {WS_FLAG}")
    A.e(f"v_and_b32 v{VPA}, 7, v{VL}")
    A.e(f"v_lshlrev_b32 v{VPA}, 2, v{VPA}")

    vals = {}
    groups = []
    cur_t = None

    def val(key, reg, reads, pub, unit=None, grp=None):
        vals[key] = dict(key=key, reg=reg, reads=reads, pub=pub, slot=None if unit is None else K["UT"][unit]["slot"], grp=grp, first=None, last=None)
        return key

    for h in range(h0, h1):
        e = HS[h]
        if e["kind"] == "g":
            if e["newd"]:
                cur_t = {}
                for k32 in range(2):
                    for cb in range(4):
                        rg = TF + 4 * (4 * k32 + cb)
                        alt = k32 and e["ph"] == 1
                        cur_t[k32, cb] = val(("T", h, k32, cb), rg,
                                             [(f"ds_read_b64_tr_b16 {vr(rg + 2 * u, 2)}, v{(ATU if alt else ATT)[cb]}", (0 if alt else k32 * 8192) + u * 1024) for u in range(2)],
                                             h - 1, e["d"], "U" if alt else "T")
            for k32 in range(2):
                for rb in range(4):
                    rg = PF + 4 * (4 * k32 + rb)
                    o = (rb >> 1) * 8192 + (rb & 1) * 2048
                    rd = (f"ds_read_b128 {vr(rg, 4)}, v{AXR[k32]}", o) if e["ph"] == 1 else (f"ds_read_b128 {vr(rg, 4)}, v{AH}", o + k32 * 1024)
                    p = val(("P", h, k32, rb), rg, [rd], h - 1, e["r"], "X" if e["ph"] == 1 else "H")
                    groups.append((h, [(acc(e["S"], rb, cb), cur_t[k32, cb], p) for cb in range(4)]))
                    if h in K["LA"] and rb == 0 and (k32 == 0 or h >= K["LA"][-2]):
                        groups.append((h, [(CSR + 4 * cb, cur_t[k32, cb], "PC") for cb in range(4)]))
        else:
            for k32 in range(2):
                for kind in range(2):
                    t = []
                    for cb2 in range(2):
                        rg = TF + 4 * (4 * k32 + 2 * kind + cb2)
                        t.append(val(("AT", h, k32, kind, cb2), rg, [(f"ds_read_b128 {vr(rg, 4)}, v{AAT}", kind * 8192 + cb2 * 2048 + k32 * 1024)], h - 1, e["r"], "A"))
                    for rb2 in range(2):
                        rg = PF + 4 * (4 * k32 + 2 * kind + rb2)
                        p = val(("C", h, k32, kind, rb2), rg, [(f"ds_read_b128 {vr(rg, 4)}, v{AXR[k32]}", kind * 8192 + rb2 * 2048)], h - 1, e["d"], "X")
                        ms = [(acc(0, 2 + rb2, 2 * kind + cb2), t[cb2], p) for cb2 in range(2)]
                        if kind == 0 and rb2 == 0:
                            ms += [(acc(0, 0, 2 + cb2), t[cb2], "PC") for cb2 in range(2)]
                        groups.append((h, ms))
    seq = []
    cnt = {}
    for h, ms in groups:
        for mf in ms:
            i = cnt.get(h, 0)
            cnt[h] = i + 1
            seq.append((h, i, mf))
    for n_, (h, i, (a, t, p)) in enumerate(seq):
        for k in (t, p):
            if k in vals:
                v = vals[k]
                if v["first"] is None:
                    v["first"] = n_
                v["last"] = n_
    order = sorted(vals.values(), key=lambda v: v["first"])
    prev = {}
    for v in order:
        v["prev"] = prev.get(v["reg"])
        prev[v["reg"]] = v
        v["q"] = list(v["reads"])
    pend = list(order)

    extras = []
    prebar = {}

    def X(at, items, dl=None):
        extras.append(dict(at=at, items=list(items), dl=dl))

    def PB(h, fn):
        prebar.setdefault(h, []).append(fn)

    H = K["H"]
    hp2, hd = K["p2"], K["dft"]
    haux = cfg.get("h_aux", " sc1")
    PST = cfg.get("pst", 3 * U)

    def ep_items(S, rb):
        L = []
        for rel in range(2):
            a = acc(S, rb, 2 * rel)
            if rb & 1 == 0 or True:
                L.append(f"s_add_u32 s{S_T0 + rel}, s{sHS}, {S * 56 * U + rel * U + (rb >> 1) * 8192}")
            L += [f"v_cvt_pk_bf16_f32 v{a + i}, v{a + 2 * i}, v{a + 2 * i + 1}" for i in range(4)]
            L += [f"v_pk_max_i16 v{a + i}, v{a + i}, 0" for i in range(4)]
            L.append(("vm", f"buffer_store_dwordx4 {vr(a, 4)}, v{VST}, {sr(S_WS, 4)}, s{S_T0 + rel} offen offset:{(rb & 1) * 2048}{haux}", ("H", S)))
            if cfg.get("ownl"):
                L.append(("ds", f"ds_write_b128 v{VPA + rel}, {vr(a, 4)} offset:{(rb >> 1) * 8192 + (rb & 1) * 2048}", ("HW", S)))
        return L

    def send_items(S, rb):
        L = []
        for relc in range(2):
            d = 2 * (rb >> 1) + relc
            if d == 0:
                continue
            a = acc(S, rb, 2 * relc)
            L += [f"v_cvt_pk_bf16_f32 v{a + i}, v{a + 2 * i}, v{a + 2 * i + 1}" for i in range(4)]
            L.append(("vm", f"buffer_store_dwordx4 {vr(a, 4)}, v{VST}, {sr(S_WS, 4)}, s{49 + d} offen offset:{(S * 2 + (rb & 1)) * 1024}{cfg.get('snd_aux', ' sc1')}", "SND"))
        return L

    RV = [acc(1, 0, 2), acc(1, 0, 3), acc(1, 1, 2), acc(1, 1, 3)] + [acc(1, 2, 0) + 4 * i for i in range(8)]

    def rvr(S, rb2, d):
        return RV[(S * 2 + rb2) * 3 + d]

    def rcv(S, rb2, d):
        return f"buffer_load_dwordx4 {vr(rvr(S, rb2, d), 4)}, v{VST}, {sr(S_WS, 4)}, s{50 + d} offen offset:{(S * 2 + rb2) * 1024} sc1"

    def lastpos(S, rb, hmax):
        best = None
        for n_, (h, i, (a, t, p)) in enumerate(seq):
            if h < hmax and acc(S, rb, 0) <= a < acc(S, rb, 0) + 16:
                best = n_
        return best

    def at_after(n_, d=3):
        n_ = n_ + d
        if n_ >= len(seq):
            return (h1, 0)
        return seq[n_][:2]

    def uses(S, rb):
        return [n_ for n_, (h, i, (a, t, p)) in enumerate(seq) if acc(S, rb, 0) <= a < acc(S, rb, 0) + 16]

    BA = cfg.get("bar_at", 7)

    def inv():
        A.e(f"s_cmp_lg_u32 s{S_WAVE}, 0")
        A.e("s_cbranch_scc1 L_iv@")
        A.e("buffer_inv sc1")
        A.label("L_iv@")

    def drain0():
        A.vm = []
        A.e("s_waitcnt vmcnt(0)")

    if main:
        l3, l2, l1 = K["LA"][-3:]
        X((l3, 12), [("ds", f"ds_write_b128 v{ATM}, {vr(CSR + 4 * cb, 4)} offset:{512 * cb}", "CW") for cb in range(4)], dl=(l3, 30))
        PB(l3 + 1, lambda: A.ds_need(["CW"]))
        for i in range(2):
            X((l3 + 1, BA + 12 * i), [("ds", f"ds_read_b128 {vr(MR + 4 * c2, 4)}, v{VCA} offset:{512 * (2 * i + c2)}", "CR") for c2 in range(2)], dl=(l3 + 1, BA + 12 * i + 4))
            X((l3 + 1, BA + 12 * i + 8), [("need", "CR")] + [f"v_add_f32 v{CSR + 8 * i + k}, v{CSR + 8 * i + k}, v{MR + k}" for k in range(8)], dl=(l3 + 1, BA + 12 * i + 12))
        hc = K["cs"]
        assert hc <= l1
        X(max((hc, BA), (l3 + 2, 0)), [("ds", f"ds_read_b128 {vr(MR + 4 * S, 4)}, v{APM} offset:{16 * S}", "M") for S in range(2)], dl=(l1, 30))
        for S in range(2):
            for rb in range(4):
                at = max(at_after(lastpos(S, rb, hp2)), (l1, 31))
                osel = ("op_sel:[0,1,0] op_sel_hi:[1,1,1]" if rb & 1 else "op_sel_hi:[1,0,1]") + " neg_lo:[0,1,0] neg_hi:[0,1,0]"
                L = [("need", "M"), f"v_and_b32 v{MR + 4 * S + rb}, 0xffff0000, v{MR + 4 * S + rb}"] + [f"v_pk_fma_f32 {vr(acc(S, rb, 0) + k, 2)}, {vr(CSR + k, 2)}, {vr(MR + 4 * S + (rb & 2), 2)}, {vr(acc(S, rb, 0) + k, 2)} {osel}" for k in range(0, 16, 2)]
                if rb == 0 and cfg.get("ownl"):
                    oh = [h for h, e in enumerate(HS) if e["own"] and e["S"] == S]
                    L0 = [f"s_lshl_b32 s{S_T2}, s{sWM}, 12", f"s_lshl_b32 s{S_T3}, s{sWN}, 10", f"s_add_u32 s{S_T2}, s{S_T2}, s{S_T3}"]
                    for rel in range(2):
                        L0 += [f"s_add_u32 s{S_T3}, s{S_T2}, {K['UT'][HS[oh[rel]]['r']]['slot'] * U}", f"v_add_u32 v{VPA + rel}, s{S_T3}, v{VST}"]
                    L = L0 + L
                    PB(oh[0] - 1, lambda S=S: A.ds_need([("HW", S)]))
                X(at, L + ep_items(S, rb), dl=(K["drB" if S else "drA"] - cfg.get("epl", 1), 0))
        if h1 > hp2:
            PB(hp2 - 1, swap)
        extras.sort(key=lambda x: x["at"])
    if main:
        p1, px, p2 = cfg.get("pf1", [-1, -1, 2, 2]), cfg.get("pfx", [-1, -1, 2, 2]), cfg.get("pf2", 12)
        LL = [pf_w1(cfg, 28, 55, 16 // len(p1)), pf_x(cfg, 30, 57, 16 // len(px))]
        for i_ in range(max(len(p1), len(px))):
            for (L0, L1), pp in zip(LL, (p1, px)):
                if i_ == 0:
                    X((-1, 0), L0, dl=(-1, 0))
                if i_ < len(pp):
                    h = pp[i_]
                    X((-1 if h is None else h, 10 if h and h >= 0 else 0), L1 if h is not None else [t for t in L1 if isinstance(t, str)], dl=(-1 if h is None else h, 30))
        if p2:
            X((p2, 2), pf_w2(cfg, 29), dl=(p2, 30))
        if cfg.get("pfd") is not None:
            X((cfg["pfd"], 1), pf_d(cfg), dl=(cfg["pfd"], 30))
    if h1 == H and cfg.get("pfc", 45):
        X((cfg.get("pfc", 45), 10), pf_c(cfg), dl=(cfg.get("pfc", 45), 30))
    extras.sort(key=lambda x: x["at"])
    pollA = f"buffer_load_dword v{VPV}, v{VPA}, {sr(S_WS, 4)}, s{sFL} offen sc1"
    pollB = f"buffer_load_dword v{VPV}, v{VPA}, {sr(S_WS, 4)}, s{sFL} offen offset:32 sc1"
    pollT = f"buffer_load_dword v{VPV2}, v{VPA2}, {sr(S_WS, 4)}, 0 offen offset:96 sc1"
    pollS = f"buffer_load_dword v{VPV2}, v{VPA2}, {sr(S_DBG, 4)}, 0 offen sc1"
    PI = cfg.get("poll_at", 12)
    PL = cfg.get("poll_lead", 2)

    if fused and main:
        PB(K["drA"], drain0)
        PB(K["drB"], drain0)
    if fused and not main:
        PB(K["drT"], drain0)
    if h1 == H:
        hs_ = K["pX"] - 5
        pollX = f"buffer_load_dword v{VCA + 1}, v{VCA}, {sr(S_WS, 4)}, s{sCB} offen sc1"
        L = []
        for d in (1, 2, 3):
            L += [f"s_xor_b32 s{S_T2}, s2, {d if not cfg.get('sndown') else 0}", f"s_mul_i32 s{49 + d}, s{S_T2}, {PST}"]
        L += [f"s_lshl_b32 s{S_T2}, s{S_WAVE}, 12", f"s_add_u32 s{S_T2}, s{S_T2}, {WS_PART}"]
        for d in (1, 2, 3):
            L += [f"s_add_u32 s{49 + d}, s{49 + d}, s{S_T2}", f"s_add_u32 s{49 + d}, s{49 + d}, {(d - 1) * U}"]
        L += [f"s_mul_i32 s{sXR}, s2, {PST}", f"s_add_u32 s{sXR}, s{sXR}, s{S_T2}"]
        L += [f"v_and_b32 v2, 15, v{VL}", f"s_lshl_b32 s{S_T2}, s{sWM}, 5", f"v_add_u32 v2, s{S_T2}, v2",
              f"s_lshr_b32 s{S_T2}, s{S_Q}, 1", f"s_lshl_b32 s{S_T2}, s{S_T2}, 6", f"v_xor_b32 v2, s{S_T2}, v2",
              f"s_lshl_b32 s{S_T2}, s{S_MLO}, 8", f"s_add_u32 s{S_T2}, s{S_T2}, s{S_PAR}", f"v_lshl_add_u32 v2, v2, 1, s{S_T2}",
              f"v_sub_u32 v3, 2048, v2", f"v_mov_b32 v4, 1024", f"v_mov_b32 v5, 0xc0000000",
              ("atom", [f"v_cmp_eq_u32 vcc, 0, v2", f"v_cndmask_b32 v4, v3, v4, vcc", f"v_cndmask_b32 v{PC}, 0, v5, vcc"]),
              f"v_mov_b32 v{PC + 1}, v{PC}", f"v_mov_b32 v{PC + 2}, v{PC}", f"v_mov_b32 v{PC + 3}, v{PC}",
              f"v_lshlrev_b32 v{VO[0][0]}, 11, v2", f"v_lshlrev_b32 v{VO[1][0]}, 11, v4",
              f"v_add_u32 v{VO[0][1]}, {32 * 2048}, v{VO[0][0]}", f"v_lshlrev_b32 v{VO[1][1]}, 11, v3",
              f"v_subrev_u32 v{VO[1][1]}, {32 * 2048}, v{VO[1][1]}"]
        L += [f"v_and_b32 v2, 3, v{VL}", f"v_xor_b32 v2, s{S_G}, v2", f"v_lshlrev_b32 v{VCA}, 7, v2",
              f"s_lshl_b32 s{sCB}, s{S_NT}, 2", f"s_add_u32 s{sCB}, s{sCB}, {WS_FLAG + 64}",
              f"s_lshr_b32 s{sSG}, s{S_NT}, 2", f"s_lshl_b32 s{sSG}, s{sSG}, 31", f"s_or_b32 s{sSG}, s{sSG}, 1.0"]
        X((hs_, 2), L, dl=(K["pX"] - PL, PI))
        X((K["pX"] - PL, PI), [("vm", pollX, "PX2")], dl=(K["pX"] - PL, PI + 2))
        PB(K["pX"], lambda: check_poll(A, "X", pollX, VCA + 1, "PX2"))
        s0 = (K["pX"], BA + 1)
        for S in range(2):
            for rb in range(4):
                X(max(at_after(lastpos(S, rb, hd)), s0), send_items(S, rb), dl=(hd, 0) if S == 0 else (hd + 2, 0))
        extras.sort(key=lambda x: x["at"])
        L = [f"s_mov_b32 s{S_T2}, {WS_ST}", f"s_mov_b32 s{S_T3}, {AT_PE}"]
        for S in range(2):
            for rb2 in range(2):
                L += [f"v_lshrrev_b32 v2, 8, v{VO[S][rb2]}",
                      ("vm", f"buffer_load_dword v{VR[S][rb2]}, v2, {sr(S_WS, 4)}, s{S_T2} offen offset:4{sc}", "R")]
        L += [f"v_lshrrev_b32 v3, 4, v{VL}", f"v_min_u32 v2, 1, v3", f"v_lshlrev_b32 v2, 30, v2"]
        for rb2 in range(2):
            L += [f"v_lshl_add_u32 v4, v{VO[0][rb2]}, 1, v2"]
            for kind in range(2):
                L += [("vm", f"buffer_load_ushort v{PXR + 4 * kind + 2 * rb2}, v4, {sr(S_CI if kind else S_CR, 4)}, 0 offen offset:1024", "PX")]
        L += [f"s_lshl_b32 s{S_T0}, s{S_NT}, 7", f"s_lshl_b32 s{S_T1}, s{S_QB}, 6", f"s_add_u32 s{S_T0}, s{S_T0}, s{S_T1}",
              f"s_lshl_b32 s{S_T1}, s{sWN}, 5", f"s_add_u32 s{S_T0}, s{S_T0}, s{S_T1}",
              f"s_mov_b32 s{sLO}, {WS_AT + 32 * 1024}", f"s_mov_b32 s{sHI}, {WS_BT + AT_TP}"]
        for cb2 in range(2):
            L += [f"v_and_b32 v4, 15, v{VL}", f"v_add_u32 v4, s{S_T0}, v4"]
            if cb2:
                L += [f"v_add_u32 v4, 16, v4"]
            mirror_e(L, 4, 5)
            for kind in range(2):
                L += [("vm", f"buffer_load_ushort v{TXR + 4 * kind + 2 * cb2}, v4, {sr(S_WS, 4)}, s{sHI if kind else sLO} offen{sc}", "TX")]
        for i in range(4):
            L += [f"v_mov_b32 v{PXR + 2 * i + 1}, 0", f"v_mov_b32 v{TXR + 2 * i + 1}, 0"]
        L += [f"v_and_b32 v2, 1, v3", f"v_lshlrev_b32 v2, 5, v2", f"v_lshrrev_b32 v3, 1, v3", f"v_lshl_add_u32 v2, v3, 4, v2",
              f"s_lshl_b32 s{S_T0}, s{S_T0}, 1", f"v_add_u32 v2, s{S_T0}, v2"]
        L += [f"v_add_u32 v{VO[S][rb2]}, v2, v{VO[S][rb2]}" for S in range(2) for rb2 in range(2)]
        for d in range(3):
            L.append(f"s_add_u32 s{50 + d}, s{sXR}, {d * U}")
        X((hd + 2, 2), L, dl=(H, 0))
        for S in range(2):
            X((hd + cfg.get("rcvA", 4), 2) if S == 0 else (H - 1, cfg.get("rcvB", 8)), [("vm", rcv(S, rb2, d), ("RV", S, rb2)) for rb2 in range(2) for d in range(3)], dl=(H, 0))

    def emit_item(it):
        if isinstance(it, tuple):
            if it[0] == "vm":
                A.vm_issue(it[1], it[2])
                return 1
            if it[0] == "ds":
                A.ds_issue(it[1], it[2])
                return 1
            if it[0] == "need":
                A.ds_need([it[1]])
                return 0
            for t in it[1]:
                A.e(t)
            return len(it[1])
        A.e(it)
        return 0 if it.startswith("s_") else 1

    state = dict(pub=h0 - 2, n=-1)

    def ready(v):
        return v["pub"] <= state["pub"] and (v["prev"] is None or (v["prev"]["last"] <= state["n"] and not v["prev"]["q"]))

    def inwin(v):
        return v["slot"] is None or 0 <= v["slot"] - base[v["grp"]] <= 3

    def issue_one(v):
        cost = 0
        o = 0
        if v["slot"] is not None:
            g_ = v["grp"]
            if not inwin(v):
                nb_ = (v["slot"] // 4) * 4 if v["slot"] < 8 else 5
                d_ = (nb_ - base[g_]) * U
                for r in GRP[g_]:
                    A.e(f"v_add_u32 v{r}, {d_}, v{r}" if d_ > 0 else f"v_subrev_u32 v{r}, {-d_}, v{r}")
                base[g_] = nb_
                cost += len(GRP[g_])
            o = (v["slot"] - base[g_]) * U
        t_, o_ = v["q"].pop(0)
        if not cfg.get("nord"):
            A.ds_issue(f"{t_} offset:{o + o_}", v["key"])
        if not v["q"]:
            pend.remove(v)
        return cost + 1

    def dok(v):
        if inwin(v):
            return True
        for w in pend:
            if w is v:
                return True
            if w["grp"] == v["grp"]:
                return False
        return True

    def fill(cap, pos):
        while cap > 0:
            v = next((v for v in pend[:40] if ready(v) and dok(v)), None)
            if v is not None:
                cap -= issue_one(v)
                continue
            x = extras[0] if extras and extras[0]["at"] <= pos else None
            if x is None:
                break
            ns = 0
            while x["items"] and cap > 0 and ns < 2:
                c_ = emit_item(x["items"].pop(0))
                cap -= c_
                ns += c_ == 0
            if not x["items"]:
                extras.pop(0)
            if ns >= 2:
                break

    def flush(pos):
        last = -1
        for i_, x in enumerate(extras):
            if x["dl"] is not None and x["dl"] <= pos:
                last = i_
        for _ in range(last + 1):
            x = extras.pop(0)
            for it in x["items"]:
                emit_item(it)

    def barrier(h):
        if cfg.get("fr", 0) == 0:
            ks = []
            for v in order:
                if v["pub"] == h - 1 and v["slot"] is not None:
                    while v["q"]:
                        assert ready(v)
                        issue_one(v)
                    ks.append(v["key"])
            A.ds_need(ks)
        for fn in prebar.get(h, []):
            fn()
        if cfg.get("fine"):
            if h >= h0 and (h - h0 < 64 or cfg["fine"] == 2):
                A.e(f"v_writelane_b32 v41, s96, {(h - h0) & 63}")
                A.e(f"v_writelane_b32 v42, s98, {(h - h0) & 63}")
            A.e("s_memtime s[96:97]")
        A.e("s_barrier")
        if cfg.get("fine"):
            A.e("s_memtime s[98:99]")
        state["pub"] = h

    flush((-1, 99))
    barrier(h0 - 1)
    stamp(A, 1, cfg)
    fill(100, (h0, -1))
    inited = set()
    CAP = cfg.get("cap", 2)
    for n_, (h, i, (a, t, p)) in enumerate(seq):
        if i == 0:
            A.block()
            if h == hp2 + 1 and main:
                K["xbase"] = base["X"]
            if h == hp2:
                inited = set()
                stamp(A, 2, cfg)
            if h == hd:
                inited -= {acc(0, rb, cb) for rb in range(4) for cb in range(4) if rb >= 2 or cb >= 2}
                stamp(A, 3, cfg)
        flush((h, i))
        for k in (t, p):
            if k in vals:
                v = vals[k]
                while v["q"]:
                    assert ready(v), (k, h, i)
                    issue_one(v)
        A.ds_need([t, p])
        treg = vals[t]["reg"]
        preg = PC if p == "PC" else vals[p]["reg"]
        A.e(f"{MF} {vr(a, 4)}, {vr(treg, 4)}, {vr(preg, 4)}, {vr(a, 4) if a in inited else 0}")
        inited.add(a)
        state["n"] = n_
        if i == (BA if HS[h]["kind"] != "dft" else cfg.get("bar_d", 5)):
            barrier(h)
        ce = main and (K["aend"] <= h < K["drA"] or hp2 <= h < K["drB"])
        fill(cfg.get("cape", 2) if ce else CAP if HS[h]["kind"] != "dft" else cfg.get("capd", 3), (h, i))
    A.block()
    flush((10 ** 6, 0))
    for x in extras:
        for it in x["items"]:
            emit_item(it)
    if h1 < H:
        return A
    stamp(A, 5, cfg)
    for S in range(2):
        for rb2 in range(2):
            A.vm_issue(f"buffer_load_dwordx4 {vr(XR + 8 * S + 4 * rb2, 4)}, v{VO[S][rb2]}, {sr(S_X, 4)}, 0 offen", "X")
    A.vm_need(["PX", "TX", "R"])
    for kind in range(2):
        for rb2 in range(2):
            for cb2 in range(2):
                a = acc(0, 2 + rb2, 2 * kind + cb2)
                A.e(f"v_mfma_f32_16x16x16_bf16 {vr(a, 4)}, {vr(TXR + 4 * kind + 2 * cb2, 2)}, {vr(PXR + 4 * kind + 2 * rb2, 2)}, {vr(a, 4)}")
    A.e(f"s_mov_b32 s{sLO}, 0x00003f80")
    A.e(f"s_mov_b32 s{sHI}, 0x3f800000")
    for S in range(2):
        for rb2 in range(2):
            for i in range(8):
                k = acc(S, rb2, 0) + i
                if S == 1 and rb2 == 0:
                    A.e(f"v_fma_f32 v{k}, v{k}, v{VR[S][rb2]}, v{acc(0, 0, 2) + i}")
                else:
                    A.e(f"v_mul_f32 v{k}, v{k}, v{VR[S][rb2]}")
    for rb2 in range(2):
        for i in range(8):
            ure, uim = acc(0, 2 + rb2, 0) + i, acc(0, 2 + rb2, 2) + i
            for S in range(2):
                k = acc(S, rb2, 0) + i
                A.e(f"v_add_f32 v{k}, v{k}, v{ure}")
            for S in range(2):
                k = acc(S, rb2, 0) + i
                A.e(f"v_fma_f32 v{k}, {'-' if S == 0 else ''}v{uim}, s{sSG}, v{k}")
    A.vm_need(["X"])
    stamp(A, 6, cfg)
    for S in range(2):
        for rb2 in range(2):
            x = XR + 8 * S + 4 * rb2
            A.e(f"v_permlane16_swap_b32 v{x}, v{x + 2}")
            A.e(f"v_permlane16_swap_b32 v{x + 1}, v{x + 3}")
    for S in range(2):
        for rb2 in range(2):
            x = XR + 8 * S + 4 * rb2
            for i in range(8):
                A.e(f"v_dot2c_f32_bf16 v{acc(S, rb2, 0) + i}, s{sHI if i & 1 else sLO}, v{x + (i >> 1)}")
    T = PF
    A.e(f"s_mov_b32 s{S_TO}, 0x40000")
    for S in range(2):
        for rb2 in range(2):
            A.vm_need([("RV", S, rb2)])
            nm = f"{S}{rb2}"
            A.label(f"L_rv_{nm}")
            w = [rvr(S, rb2, d) + i for d in range(3) for i in range(4)]
            A.e(f"v_max3_u32 v2, v{w[0]}, v{w[1]}, v{w[2]}")
            A.e(f"v_max3_u32 v3, v{w[3]}, v{w[4]}, v{w[5]}")
            A.e(f"v_max3_u32 v2, v2, v{w[6]}, v{w[7]}")
            A.e(f"v_max3_u32 v3, v3, v{w[8]}, v{w[9]}")
            A.e(f"v_max3_u32 v2, v2, v{w[10]}, v{w[11]}")
            A.e(f"v_max_u32 v2, v2, v3")
            A.e(f"v_cmp_eq_u32 vcc, -1, v2")
            t = T + 8 * ((S * 2 + rb2) & 1)
            r0 = rvr(S, rb2, 0)
            for i in range(8):
                A.e(f"v_and_b32 v{t + i}, 0xffff0000, v{r0 + (i >> 1)}" if i & 1 else f"v_lshlrev_b32 v{t + i}, 16, v{r0 + (i >> 1)}")
            A.e(f"s_cbranch_vccnz L_rr_{nm}")
            A.label(f"L_rk_{nm}")
            A.ool["rv" + nm] = [f"L_rr_{nm}:", f"    s_sub_u32 s{S_TO}, s{S_TO}, 1", f"    s_cbranch_scc1 L_rk_{nm}"] + \
                [f"    {rcv(S, rb2, d)}" for d in range(3)] + ["    s_waitcnt vmcnt(0)", f"    s_branch L_rv_{nm}"]
            for d in (1, 2):
                for i in range(8):
                    A.e(f"v_dot2c_f32_bf16 v{t + i}, s{sHI if i & 1 else sLO}, v{rvr(S, rb2, d) + (i >> 1)}")
            k = acc(S, rb2, 0)
            for i in range(8):
                A.e(f"v_fma_f32 v{t + i}, v{t + i}, v{VR[S][rb2]}, v{k + i}")
            for i in range(4):
                A.e(f"v_cvt_pk_bf16_f32 v{k + i}, v{t + 2 * i}, v{t + 2 * i + 1}")
            A.e(f"v_permlane16_swap_b32 v{k}, v{k + 2}")
            A.e(f"v_permlane16_swap_b32 v{k + 1}, v{k + 3}")
            A.vm_issue(f"buffer_store_dwordx4 {vr(k, 4)}, v{VO[S][rb2]}, {sr(S_O, 4)}, 0 offen", "O")
    return A


XA, XB, VW1, VW2, VC = [8, 9, 10, 11], [12, 13, 14, 15], [16, 17, 18, 19], [20, 21, 22, 23], [24, 25, 26, 27]
VHA, VHB, VWR = 28, 29, [30, 31, 32]
VCF, VCL = 33, 34
VFA, VFL, VSA, VSD, VFO, VONE = 49, 50, 51, 52, 56, 57
CT = 58
VAT = [74, 75, 76, 77]
SB = 80
VP1, VP2, VQ = 35, 36, 37
sPL, sMK, sBA, sBB, sSC = 56, 57, 58, 59, 53
sPW, sKA, sKB, sKW, sW, sHA, sHB, sW2, sD, sDC, sONE, sFLG, sK3 = 40, 41, 42, 43, 44, 45, 46, 47, 48, 49, 50, 51, 52


def producer(cfg, HS, K, h0, h1, fused):
    A = St()
    main = h0 == 0
    NB = cfg.get("nb", 6)
    sc = " sc1" if fused else ""
    FR = cfg.get("fr", 0)
    H = K["H"]
    UT = K["UT"]
    UN = []
    nst = 0
    for h in range(h0, h1):
        e = HS[h]
        if e["ld"]:
            typ = "C" if e["kind"] == "dft" else ("W1" if e["ph"] == 1 else "W2")
            UN.append(dict(h=h, i=e["d"], typ=typ, minb=-99, e=e, st=None, dl=h - 2))
        if not (main and e["own"]):
            typ = "AT" if e["kind"] == "dft" else ("X" if e["ph"] == 1 else "H") + "AB"[e["S"]]
            minb = -99
            st = None
            if fused and typ[0] != "X":
                own = typ != "AT" and e["j"] < 2
                minb = {"HA": K["drA" if own else "pA"] if main else -99, "HB": K["drB" if own else "pB"] if main else -99, "AT": K["pAT"]}[typ]
                if cfg.get("stage"):
                    st = h % NB
            if cfg.get("allst") and typ[0] in cfg["allst"]:
                st = nst % NB
                nst += 1
            UN.append(dict(h=h, i=e["r"], typ=typ, minb=minb, e=e, st=st, dl=h - 2))
    nxt = {}
    for u in UN:
        if u["e"]["kind"] == "g":
            j = u["e"]["j"]
            u["jmp"] = (j - nxt.get(u["typ"], 2 if (main and u["typ"][0] == "H" and cfg.get("ownl")) else 0)) % (16 if u["e"]["ph"] == 1 else 14)
            nxt[u["typ"]] = j + 1
    A.e(f"s_sub_u32 s{sPW}, s{S_WAVE}, 4")
    A.e(f"s_lshl_b32 s{sD}, s{sPW}, 12")
    A.e(f"v_lshrrev_b32 v3, 4, v{VL}")
    A.e(f"v_and_b32 v2, 15, v{VL}")
    A.e(f"v_lshlrev_b32 v4, 1, v3")
    A.e(f"v_xor_b32 v2, v2, v4")
    A.e(f"v_lshlrev_b32 v2, 4, v2")

    def wrap14(s):
        return [f"s_add_u32 s{s}, s{s}, {U}", f"s_cmp_eq_u32 s{s}, {14 * U}", f"s_cselect_b32 s{s}, 0, s{s}"]

    def jmp16(s, n):
        return [f"s_add_u32 s{s}, s{s}, {n * 128}", f"s_and_b32 s{s}, s{s}, 2047"] if n else []

    def jmp14(s, n):
        return [f"s_add_u32 s{s}, s{s}, {n * U}", f"s_sub_u32 s{sBB}, s{s}, {14 * U}", f"s_cselect_b32 s{s}, s{s}, s{sBB}"] if n else []

    def pollF(r):
        return f"buffer_load_dword v{r}, v{VP1}, {sr(S_WS, 4)}, s{sPL} offen sc1"

    def tile_check(sp, o):
        sb = sBA
        return [f"s_lshr_b32 s{sb}, s{sp}, 15", f"s_add_u32 s{sb}, s{sb}, {o}", f"s_bitcmp1_b32 s{sMK}, s{sb}", "s_cbranch_scc1 L_tk@", f"s_mov_b32 s{S_TO}, 0x40000", "L_tl@:", pollF(VQ + 1), "s_waitcnt vmcnt(0)",
                f"v_cmp_ne_u32 vcc, 0, v{VQ + 1}", f"s_or_b32 s{sMK}, s{sMK}, vcc_lo", f"s_bitcmp1_b32 s{sMK}, s{sb}", "s_cbranch_scc1 L_tj@",
                f"s_sub_u32 s{S_TO}, s{S_TO}, 1", "s_cbranch_scc0 L_tl@", "L_tj@:", "L_tk@:"]

    def init_w1():
        A.e(f"s_mul_i32 s{S_T0}, s{S_Q}, 7")
        A.e(f"s_add_u32 s{S_T0}, s{S_T0}, s{S_NT}")
        A.e(f"s_lshl_b32 s{S_T0}, s{S_T0}, 8")
        A.e(f"s_mul_i32 s{S_T1}, s{sPW}, {16 * 7168}")
        A.e(f"s_add_u32 s{S_T0}, s{S_T0}, s{S_T1}")
        A.e(f"s_sub_u32 s{S_T0}, s{S_T0}, 256")
        A.e(f"v_mul_u32_u24 v4, 7168, v3")
        A.e(f"v_add3_u32 v{VW1[0]}, v4, v2, s{S_T0}")
        A.e(f"v_add_u32 v{VW1[1]}, {4 * 7168 - 1024}, v{VW1[0]}")
        A.e(f"v_xor_b32 v4, 128, v{VW1[0]}")
        A.e(f"v_add_u32 v{VW1[2]}, {8 * 7168 - 2048}, v4")
        A.e(f"v_add_u32 v{VW1[3]}, {12 * 7168 - 3072}, v4")
        rot = cfg.get("rot", 0)
        A.e(f"s_mul_i32 s{sKW}, s{S_Q}, {rot * 128}")
        A.e(f"s_mul_i32 s{S_T0}, s{S_PAR}, {cfg.get('rotp', 0) * 128}")
        A.e(f"s_add_u32 s{sKW}, s{sKW}, s{S_T0}")
        A.e(f"s_and_b32 s{sKW}, s{sKW}, 2047")
        A.e(f"s_mov_b32 s{sKA}, s{sKW}")
        A.e(f"s_mov_b32 s{sKB}, s{sKW}")

    def chunk(vd):
        A.e(f"v_and_b32 v{vd}, 7, v{VL}")
        A.e(f"v_lshrrev_b32 v6, 4, v{VL}")
        A.e(f"v_xor_b32 v{vd}, v{vd}, v6")
        A.e(f"v_lshlrev_b32 v{vd}, 4, v{vd}")

    def init_xa():
        A.e(f"v_lshrrev_b32 v4, 3, v{VL}")
        A.e(f"s_lshl_b32 s{S_T0}, s{sPW}, 5")
        A.e(f"v_add_u32 v4, s{S_T0}, v4")
        t_of(A, 4, 4, S_T0)
        chunk(5)
        A.e(f"v_lshl_add_u32 v{XA[0]}, v4, 11, v5")
        A.e(f"v_xor_b32 v6, 64, v{XA[0]}")
        A.e(f"v_add_u32 v{XA[1]}, {16 * 2048 - 1024}, v6")
        A.e(f"v_add_u32 v{XA[2]}, {32 * 2048 - 2048}, v{XA[0]}")
        A.e(f"v_add_u32 v{XA[3]}, {48 * 2048 - 3072}, v6")

    def init_xb():
        mirror_t(A, CT, 4, 6)
        A.e(f"v_lshl_add_u32 v{XB[0]}, v{CT}, 11, v5")
        A.e(f"v_sub_u32 v4, 2048, v4")
        A.e(f"v_lshl_add_u32 v4, v4, 11, v5")
        A.e(f"v_xor_b32 v6, 64, v4")
        A.e(f"v_subrev_u32 v{XB[1]}, {16 * 2048 + 1024}, v6")
        A.e(f"v_subrev_u32 v{XB[2]}, {32 * 2048 + 2048}, v4")
        A.e(f"v_subrev_u32 v{XB[3]}, {48 * 2048 + 3072}, v6")

    def init_p1_rest():
        A.e(f"v_and_b32 v{VFA}, 31, v{VL}")
        A.e(f"v_lshlrev_b32 v{VFA}, 2, v{VFA}")
        A.e(f"s_lshr_b32 s{S_T0}, s{sPW}, 1")
        A.e(f"s_lshl_b32 s{S_T0}, s{S_T0}, 5")
        A.e(f"s_and_b32 s{S_T1}, s{sPW}, 1")
        A.e(f"s_lshl3_add_u32 s{S_T0}, s{S_T1}, s{S_T0}")
        A.e(f"v_lshrrev_b32 v4, 3, v{VL}")
        A.e(f"v_add_u32 v4, s{S_T0}, v4")
        A.e(f"v_and_b32 v5, 1, v{VL}")
        A.e(f"v_lshl_add_u32 v4, v5, 4, v4")
        A.e(f"v_bfe_u32 v5, v{VL}, 1, 1")
        A.e(f"v_lshl_add_u32 v4, v5, 6, v4")
        t_of(A, 4, 4, S_T0)
        mirror_t(A, 5, 4, 6)
        A.e(f"v_and_b32 v6, 4, v{VL}")
        A.e(f"v_cmp_ne_u32 vcc, 0, v6")
        A.e(f"v_cndmask_b32 v4, v4, v5, vcc")
        A.e(f"v_lshlrev_b32 v{VSA}, 3, v4")

    def init_fl():
        A.e(f"s_lshl_b32 s{sFLG}, s{S_G}, 7")
        A.e(f"s_lshl_b32 s{S_T0}, s{S_NT}, 2")
        A.e(f"s_add_u32 s{sFLG}, s{sFLG}, s{S_T0}")
        A.e(f"s_add_u32 s{sFLG}, s{sFLG}, {WS_FLAG}")
        A.e(f"v_add_u32 v4, s{sPW}, v{VL}")
        A.e(f"v_min_u32 v4, 1, v4")
        A.e(f"v_lshlrev_b32 v{VFO}, 30, v4")
        A.e(f"v_mov_b32 v{VONE}, 1")

    def init_p2():
        A.e(f"v_lshrrev_b32 v3, 4, v{VL}")
        A.e(f"v_and_b32 v2, 15, v{VL}")
        A.e(f"v_lshlrev_b32 v4, 1, v3")
        A.e(f"v_xor_b32 v2, v2, v4")
        A.e(f"v_lshlrev_b32 v2, 4, v2")
        A.e(f"s_lshl_b32 s{S_T0}, s{S_QB}, 7")
        A.e(f"v_xor_b32 v2, s{S_T0}, v2")
        A.e(f"s_mul_i32 s{S_T0}, s{S_Q}, {14 * 64}")
        A.e(f"s_lshr_b32 s{S_T1}, s{sPW}, 1")
        A.e(f"s_lshl_b32 s{S_T1}, s{S_T1}, 5")
        A.e(f"s_add_u32 s{S_T0}, s{S_T0}, s{S_T1}")
        A.e(f"s_and_b32 s{S_T1}, s{sPW}, 1")
        A.e(f"s_lshl_b32 s{S_T1}, s{S_T1}, 3")
        A.e(f"s_add_u32 s{S_T0}, s{S_T0}, s{S_T1}")
        A.e(f"s_lshl_b32 s{S_T0}, s{S_T0}, 11")
        A.e(f"s_lshl_b32 s{S_T1}, s{S_NT}, 8")
        A.e(f"s_add_u32 s{S_T0}, s{S_T0}, s{S_T1}")
        A.e(f"v_lshl_add_u32 v4, v3, 11, v2")
        A.e(f"v_add_u32 v{VW2[0]}, s{S_T0}, v4")
        A.e(f"v_add_u32 v{VW2[1]}, {16 * 2048 - 1024}, v{VW2[0]}")
        A.e(f"v_xor_b32 v4, 128, v{VW2[0]}")
        A.e(f"v_add_u32 v{VW2[2]}, {4 * 2048 - 2048}, v4")
        A.e(f"v_add_u32 v{VW2[3]}, {20 * 2048 - 3072}, v4")
        A.e(f"s_lshl_b32 s{S_T0}, s{S_PAR}, 2")
        A.e(f"s_add_u32 s{S_T0}, s{S_T0}, s{S_MLO}")
        A.e(f"s_mul_i32 s{S_T0}, s{S_T0}, 112")
        A.e(f"s_mul_i32 s{S_T1}, s{S_Q}, 14")
        A.e(f"s_add_u32 s{S_T0}, s{S_T0}, s{S_T1}")
        A.e(f"s_lshl_b32 s{S_T0}, s{S_T0}, 14")
        A.e(f"v_lshl_add_u32 v{VWR[0]}, v{VL}, 4, s{sD}")
        A.e(f"v_add_u32 v{VWR[1]}, {3 * U}, v{VWR[0]}")
        A.e(f"v_add_u32 v{VWR[2]}, {6 * U}, v{VWR[0]}")
        A.e(f"v_add_u32 v{VHA}, s{S_T0}, v{VWR[0]}")
        A.e(f"v_add_u32 v{VHB}, {56 * U}, v{VHA}")
        A.e(f"s_max_u32 s{S_T0}, s{S_NT}, 1")
        A.e(f"s_sub_u32 s{S_T0}, s{S_T0}, 1")
        A.e(f"s_lshl_b32 s{sHA}, s{S_T0}, 15")
        A.e(f"s_mov_b32 s{sW2}, s{sHA}")
        if main and cfg.get("ownl"):
            for t in wrap14(sHA) + wrap14(sHA):
                A.e(t)
        A.e(f"s_mov_b32 s{sMK}, 0")
        A.e(f"s_mov_b32 s{sHB}, s{sHA}")
        A.e(f"s_lshl_b32 s{sPL}, s{S_G}, 7")
        A.e(f"s_add_u32 s{sPL}, s{sPL}, {WS_FLAG}")
        A.e(f"v_and_b32 v{VP1}, 15, v{VL}")
        A.e(f"v_lshlrev_b32 v{VP1}, 2, v{VP1}")
        A.e(f"v_and_b32 v{VP2}, 31, v{VL}")
        A.e(f"v_lshlrev_b32 v{VP2}, 7, v{VP2}")
        A.e(f"v_add_u32 v{VP2}, {WS_FLAG}, v{VP2}")

    def init_dft():
        A.e(f"s_cmp_ge_u32 s{sPW}, 2")
        A.e(f"s_cselect_b32 s{S_CS}, s{S_CI}, s{S_CR}")
        A.e(f"s_cselect_b32 s{S_CS + 1}, s{S_CI + 1}, s{S_CR + 1}")
        A.e(f"s_mov_b32 s{S_CS + 2}, s{S_CR + 2}")
        A.e(f"s_mov_b32 s{S_CS + 3}, s{S_CR + 3}")
        A.e(f"s_and_b32 s{S_T1}, s{sPW}, 1")
        A.e(f"s_lshl_b32 s{S_T0}, s{S_T1}, 5")
        A.e(f"v_lshrrev_b32 v4, 3, v{VL}")
        A.e(f"v_add_u32 v4, s{S_T0}, v4")
        t_of(A, 4, 4, S_T0)
        chunk(5)
        A.e(f"v_lshl_add_u32 v{VC[0]}, v4, 12, v5")
        A.e(f"v_xor_b32 v6, 64, v{VC[0]}")
        A.e(f"v_add_u32 v{VC[1]}, {16 * 4096 - 1024}, v6")
        A.e(f"v_add_u32 v{VC[2]}, {32 * 4096 - 2048}, v{VC[0]}")
        A.e(f"v_add_u32 v{VC[3]}, {48 * 4096 - 3072}, v6")
        A.e(f"s_lshl_b32 s{S_T0}, s{S_T1}, 5")
        A.e(f"s_lshl_b32 s{S_T1}, s{S_NT}, 7")
        A.e(f"s_add_u32 s{S_T0}, s{S_T0}, s{S_T1}")
        A.e(f"s_lshl_b32 s{S_T2}, s{S_QB}, 6")
        A.e(f"s_add_u32 s{S_T1}, s{S_T0}, s{S_T2}")
        A.e(f"s_lshr_b32 s{S_T0}, s{sPW}, 1")
        A.e(f"s_lshl_b32 s{S_T0}, s{S_T0}, 21")
        A.e(f"s_mul_i32 s{S_T2}, s{S_PAR}, {AT_TP}")
        A.e(f"s_add_u32 s{S_T0}, s{S_T0}, s{S_T2}")
        A.e(f"s_add_u32 s{S_T0}, s{S_T0}, {WS_AT}")
        A.e(f"s_mov_b32 s{S_T3}, {AT_PE}")
        A.e(f"v_lshrrev_b32 v3, 4, v{VL}")
        A.e(f"v_lshl_add_u32 v3, v3, 9, s{S_T0}")
        for c2 in range(2):
            A.e(f"v_and_b32 v4, 15, v{VL}")
            A.e(f"v_add_u32 v4, s{S_T1}, v4")
            if c2:
                A.e(f"v_add_u32 v4, 16, v4")
            L = []
            mirror_e(L, 4, 5)
            for t in L:
                A.e(t)
            A.e(f"v_add_u32 v4, v3, v4")
            if c2:
                A.e(f"v_subrev_u32 v4, 2048, v4")
            A.e(f"v_mov_b32 v{VAT[2 * c2]}, v4")
            A.e(f"v_add_u32 v{VAT[2 * c2 + 1]}, 1024, v4")
        A.e(f"s_mov_b32 s{sDC}, 0")
        A.e(f"s_mov_b32 s{sK3}, 0")
        assert WS_BT - WS_AT == 1 << 21

    ax, aw1, aw2, ac = cfg.get("auxX", ""), cfg.get("auxW1", ""), cfg.get("auxW2", ""), cfg.get("auxC", "")

    def mkpieces(u):
        typ = u["typ"]
        pre, post = [], []
        aux = ""
        if typ[0] == "X":
            V, s = (XA, sKA) if typ == "XA" else (XB, sKB)
            srd_, aux = S_X, ax
            pre += jmp16(s, u["jmp"])
            post = [f"s_add_u32 s{s}, s{s}, 128", f"s_and_b32 s{s}, s{s}, 2047"]
        elif typ[0] == "H":
            V, s = ([VHA] * 4, sHA) if typ == "HA" else ([VHB] * 4, sHB)
            srd_, aux = S_WS, sc
            post = wrap14(s)
            pre += jmp14(s, u["jmp"])
            if (u["e"]["j"] % 2 == 0 or u["jmp"]) and not (main and u["e"]["j"] < 2 and (typ == "HA" or cfg.get("ownchk", 0) == 0)):
                pre += tile_check(s, 1 if typ == "HA" else 9)
        elif typ == "AT":
            V, s, srd_, aux = VAT, sK3, S_WS, sc
            post = [f"s_add_u32 s{sK3}, s{sK3}, 4096"]
        elif typ == "W1":
            pre += jmp16(sKW, u["jmp"])
            pre.append(f"s_mul_i32 s{sW}, s{sKW}, {64 * 7168 // 128}")
            V, srd_, s, aux = VW1, S_W1, sW, aw1
            post = [f"s_add_u32 s{sKW}, s{sKW}, 128", f"s_and_b32 s{sKW}, s{sKW}, 2047"]
        elif typ == "W2":
            pre += jmp14(sW2, u["jmp"])
            pre.append(f"s_lshl_b32 s{sW}, s{sW2}, 3")
            V, srd_, s, aux = VW2, S_W2, sW, aw2
            post = wrap14(sW2)
        else:
            V, srd_, s, aux = VC, S_CS, sDC, ac
            post = [f"s_add_u32 s{sDC}, s{sDC}, 128"]
        if u["st"] is None:
            vm = [f"buffer_load_dwordx4 v{V[p]}, {sr(srd_, 4)}, s{s} offen offset:{p * 1024}{aux} lds" for p in range(4)]
        else:
            b = SB + 16 * u["st"]
            vm = [f"buffer_load_dwordx4 {vr(b + 4 * p, 4)}, v{V[p]}, {sr(srd_, 4)}, s{s} offen offset:{p * 1024} sc1" for p in range(4)]
        return [(pre if p == 0 else [], vm[p], post if p == 3 else []) for p in range(4)]

    byI = {u["i"]: u for u in UN}
    Q = list(UN)
    m0 = [None]
    lastst = {}

    def can(u, b):
        if "pcs" in u:
            return True
        if u["minb"] > b:
            return False
        if u["st"] is not None:
            p = lastst.get(u["st"])
            return p is None or p["h"] - 2 < b
        fb = UT[u["i"]]["fb"]
        return fb < h0 or fb <= b

    def next_piece(b, only=None):
        seen = set()
        u = None
        for c in Q[:12]:
            k = "W" if c["typ"] in ("W1", "W2") else c["typ"]
            if k not in seen and (only is None or c["typ"] == only) and can(c, b):
                u = c
                break
            seen.add(k)
        if u is None:
            return False
        if "pcs" not in u:
            u["pcs"] = mkpieces(u)
            if u["st"] is not None:
                lastst[u["st"]] = u
        pre, vm, post = u["pcs"].pop(0)
        if u["st"] is None and m0[0] != UT[u["i"]]["slot"]:
            m0[0] = UT[u["i"]]["slot"]
            A.e(f"s_add_u32 m0, s{sD}, {m0[0] * U}")
        for t in pre:
            if t.endswith(":"):
                A.label(t[:-1])
            else:
                A.e(t)
        if not (cfg.get("novm") and u["typ"][0] in cfg["novm"]):
            A.vm_issue(vm, u["i"])
        for t in post:
            A.e(t)
        if not u["pcs"]:
            Q.remove(u)
            u["iss"] = True
        return True

    def issue_some(b, lim, only=None):
        while lim > 0 and next_piece(b, only):
            lim -= 1

    def due(b):
        return sum(len(u.get("pcs", [0] * 4)) for u in Q if u["dl"] <= b)

    def pub_w(hh):
        F = []
        for u in UN:
            if u["h"] == hh and u["st"] is not None:
                b = SB + 16 * u["st"]
                sl = UT[u["i"]]["slot"]

                def need(u=u):
                    assert u.get("iss"), ("not issued", u)
                    A.vm_need([u["i"]])
                F.append((0, need))
                for p in range(4):
                    t = f"ds_write_b128 v{VWR[sl // 3]}, {vr(b + 4 * p, 4)} offset:{(sl % 3) * U + p * 1024}"
                    F.append((26, lambda t=t: A.ds_issue(t, "w")))
        return F

    def pub_d(b):
        for u in UN:
            if u["dl"] <= b and u["st"] is None:
                assert u.get("iss"), ("not issued", u)
                A.vm_need([u["i"]])

    pollS = f"buffer_load_dword v{VFL}, v{VFA}, {sr(S_DBG, 4)}, 0 offen sc1"
    bC = K["cs"] - 1
    bS = bC - cfg.get("stat_lead", 6)

    def flag(off):
        A.vm_issue(f"buffer_store_dword v{VONE}, v{VFO}, {sr(S_WS, 4)}, s{sFLG} offen offset:{off} sc1", "F")

    spf = {}
    if main and h1 == H and cfg.get("spf"):
        b0, per = cfg["spf"]
        sPB, sPT, sPO = 88, 89, 90
        spf[b0 - 1] = [f"s_lshl2_add_u32 s{sPB}, s{S_MLO}, s{sPW}", f"s_lshl1_add_u32 s{sPB}, s{sPB}, s{S_PAR}", f"s_lshl_b32 s{sPB}, s{sPB}, 13",
                       f"s_mul_i32 s{S_T0}, s{S_Q}, {896 * 8}", f"s_add_u32 s{S_T0}, s{S_T0}, s{S_NT}", f"s_lshl_b32 s{S_T0}, s{S_T0}, 8",
                       f"s_add_u32 s{sPB}, s{sPB}, s{S_T0}", f"s_sub_u32 s{sPT}, s{S_NT}, 1", f"s_lshl_b32 s{sPT}, s{sPT}, 18"]
        for k in range(56):
            L = spf.setdefault(b0 + int(k / per), [])
            if k % 8 == 0:
                L += [f"s_add_u32 s{sPO}, s{sPB}, s{sPT}", f"s_add_u32 s{sPT}, s{sPT}, {1 << 18}", f"s_cmp_eq_u32 s{sPT}, {7 << 18}", f"s_cselect_b32 s{sPT}, 0, s{sPT}"]
            L.append(f"s_buffer_load_dwordx2 s[92:93], {sr(S_W2, 4)}, s{sPO} offset:{(k % 8 >> 1) * 2048 + (k & 1) * 128 + 60}" if cfg.get("spx") else
                     f"s_buffer_load_dword s92, {sr(S_W2, 4)}, s{sPO} offset:{(k % 8 >> 1) * 2048 + (k & 1) * 128}")
    ramp = cfg.get("ramp", [12, 12, 12])
    lim = cfg.get("lim", 8)
    bgp = cfg.get("bgp", [K["pA"] - 1, K["pA"] + 1, K["pA"] + 3, K["pB"] - 1, K["pB"] + 1, K["pB"] + 3])
    polls = {
             "pAT": (f"buffer_load_dword v{VQ + 3}, v{VP2}, {sr(S_WS, 4)}, 0 offen offset:96 sc1", VQ + 3)}
    if main:
        init_w1()
        issue_some(-99, 4)
        init_xa()
        issue_some(-99, 4)
        init_xb()
        issue_some(-99, ramp[0] - 8)
        init_p1_rest()
        init_fl()
        if h1 > K["p2"]:
            init_p2()
            init_dft()
    else:
        init_p2()
        init_fl()
        lead = cfg.get("lead2", 1)
        if fused:
            issue_some(-99, 4 * lead, "W2")
            issue_some(h0 - 3, ramp[0])
            init_dft()
            A.e(f"v_and_b32 v{VFA}, 31, v{VL}")
            A.e(f"v_lshlrev_b32 v{VFA}, 2, v{VFA}")
        else:
            issue_some(-99, ramp[0])
            init_dft()
    stamp(A, 1, cfg)
    for c_, fn in pub_w(h0):
        fn()
    pub_d(h0 - 2)
    if A.ds:
        A.ds_drain()
    last = h1 - 1
    for b in range(h0 - 1, last + 1):
        A.block()
        A.e("s_barrier")
        if cfg.get("finep"):
            A.e("s_memtime s[96:97]")
        if fused:
            if main and b == K["drA"]:
                flag(0)
                flag(64)
            if main and b == K["drB"]:
                flag(32)
            if not main and b == K["drT"]:
                flag(96)
                flag(64)
            for nm, (ld_, rg) in polls.items():
                if b == K[nm]:
                    check_poll(A, nm, ld_, rg, nm)
            if b - 1 in bgp and b - 1 >= h0 - 1:
                A.vm_need(["BG"])
                A.e(f"v_cmp_ne_u32 vcc, 0, v{VQ}")
                A.e(f"s_or_b32 s{sMK}, s{sMK}, vcc_lo")
            if b in bgp:
                A.vm_issue(pollF(VQ), "BG")
        F = pub_w(b + 2)
        k = b - (h0 - 1) + 1
        lm = lim
        du = due(b)
        nv = max(ramp[k] if k < len(ramp) else lm, du) - du
        issue_some(b, du)
        gap = cfg.get("gap", 60)
        done = 0
        acc_ = 0
        for c_, fn in F:
            while done < nv and acc_ >= done * gap:
                next_piece(b)
                done += 1
            fn()
            acc_ += c_
        issue_some(b, nv - done)
        for t in spf.get(b, []):
            A.e(t)
        if cfg.get("finep"):
            A.e("s_memtime s[98:99]")
        if fused and not main:
            if b == K["drT"]:
                A.vm_issue(pollS, "PS")
            if b == K["drT"] + 2:
                check_poll(A, "S", pollS, VFL, "PS")
        if main:
            if b == bS:
                A.vm_issue(pollS, "PS")
            if b == bS + 3:
                check_poll(A, "S", pollS, VFL, "PS")
                A.e(f"s_mov_b32 s{S_T0}, {WS_ST}")
                A.e(f"s_lshl_b32 s{S_T1}, s{sPW}, 8")
                A.e(f"s_add_u32 m0, s{S_T1}, {L_PM}")
                m0[0] = None
                A.vm_issue(f"buffer_load_dword v{VSA}, {sr(S_WS, 4)}, s{S_T0} offen sc1 lds", "SD")
            if b == bC:
                A.vm_need(["SD"])
        if fused:
            for nm, (ld_, rg) in polls.items():
                if b == K[nm] - 1:
                    A.vm_issue(ld_, nm)
            if main and b >= K["scr"] and (b - K["scr"]) % 2 == 0 and b < K["scr"] + 12:
                k_ = (b - K["scr"]) // 2
                if k_ == 0:
                    A.e(f"s_mul_i32 s{sSC}, s2, {cfg.get('pst', 3 * U)}")
                    A.e(f"s_add_u32 s{sSC}, s{sSC}, {WS_PART + cfg.get('scro', 0)}")
                    for i_ in range(4):
                        A.e(f"v_mov_b32 v{SB + i_}, -1")
                for i_ in range(2):
                    A.vm_issue(f"buffer_store_dwordx4 {vr(SB, 4)}, v{VWR[0]}, {sr(S_WS, 4)}, s{sSC} offen offset:{(k_ & 1) * 2048 + i_ * 1024}{cfg.get('scrx', ' sc1')}", "SCR")
                if k_ & 1:
                    A.e(f"s_add_u32 s{sSC}, s{sSC}, {U}")
            if main and b == K["drA"] - 1:
                A.vm_need(["SCR"])
        pub_d(b)
        if A.ds:
            A.ds_drain()
        if cfg.get("finep"):
            A.e("s_memtime s[100:101]")
            A.e("s_waitcnt lgkmcnt(0)")
            for i_ in range(3 if (b + 1 - h0 < 64 or cfg["fine"] == 2) else 0):
                A.e(f"v_writelane_b32 v{253 + i_}, s{96 + 2 * i_}, {(b + 1 - h0) & 63}")
        if b == K["p2"]:
            stamp(A, 2, cfg)
        if b == K["dft"]:
            stamp(A, 3, cfg)
    A.block()
    assert not Q
    return A


def common(A, cfg, end):
    A.e("s_cmp_ge_u32 s2, 256")
    A.e(f"s_cbranch_scc1 {end}")
    A.e("s_load_dwordx2 s[4:5], s[0:1], 0")
    A.e("s_load_dwordx4 s[88:91], s[0:1], 48")
    A.e("s_load_dwordx2 s[6:7], s[0:1], 80")
    A.e("s_load_dwordx4 s[8:11], s[0:1], 8")
    A.e("s_load_dwordx4 s[12:15], s[0:1], 24")
    A.e("s_load_dwordx4 s[92:95], s[0:1], 64")
    A.e("v_lshrrev_b32 v1, 6, v0")
    A.e(f"s_and_b32 s{S_Q}, s2, 3")
    A.e(f"v_readfirstlane_b32 s{S_WAVE}, v1")
    A.e(f"s_bfe_u32 s{S_PAR}, s2, 0x10002")
    A.e("v_and_b32 v1, 63, v0")
    A.e(f"s_bfe_u32 s{S_MLO}, s2, 0x20003")
    A.e(f"s_lshr_b32 s{S_NT}, s2, 5")
    A.e(f"s_and_b32 s{S_G}, s2, 31")
    A.e(f"s_lshr_b32 s{S_QB}, s2, 7")
    A.e(f"s_xor_b32 s{S_QB}, s{S_QB}, s2")
    A.e(f"s_and_b32 s{S_QB}, s{S_QB}, 1")
    if cfg.get("stamps"):
        A.e(f"v_mov_b32 v{STAMP_V}, 0")
    A.e("s_waitcnt lgkmcnt(0)")
    srd(A, S_W1, 88, 1024 * 3584 * 2)
    srd(A, S_X, 4, 2048 * 1024 * 2)
    srd(A, S_WS, 6, WS_BYTES)
    srd(A, S_W2, 90, 1024 * 3584 * 2)
    srd(A, S_DBG, 94, 256)
    srd(A, S_O, 92, 2048 * 1024 * 2)
    srd(A, S_CR, 8, 2048 * 2048 * 2)
    srd(A, S_CI, 10, 2048 * 2048 * 2)
    k1h.stamp(A, 0, enable=cfg.get("stamps"))


def fin(A, cfg, off):
    if cfg.get("stamps"):
        A.e("s_waitcnt vmcnt(0)")
        k1h.stamp(A, 4, enable=True)
        A.e("s_getreg_b32 s61, hwreg(HW_REG_XCC_ID)")
        A.e(f"v_writelane_b32 v{STAMP_V}, s61, 7")
        A.e(f"s_lshl_b32 s60, s2, 3")
        A.e(f"s_add_u32 s60, s60, s{S_WAVE}")
        A.e(f"s_lshl_b32 s60, s60, 8")
        A.e(f"s_add_u32 s60, s60, {WS_DBG + off}")
        A.e("v_and_b32 v1, 63, v0")
        A.e("v_lshlrev_b32 v1, 2, v1")
        A.e(f"buffer_store_dword v{STAMP_V}, v1, {sr(S_WS, 4)}, s60 offen")
        if cfg.get("fine"):
            for i_, r in enumerate((41, 42, 253, 254, 255)):
                A.e(f"s_add_u32 s60, s60, {2 << 20}")
                A.e(f"buffer_store_dword v{r}, v1, {sr(S_WS, 4)}, s60 offen")


def zero_line(A):
    A.e(f"v_and_b32 v2, 0x17, v{VL}")
    A.e(f"v_cmp_eq_u32 vcc, 0, v2")
    A.e(f"v_cndmask_b32 v2, 0, 1, vcc")
    A.e(f"v_lshrrev_b32 v4, 5, v0")
    A.e(f"v_min_u32 v4, 1, v4")
    A.e(f"v_lshlrev_b32 v3, 2, v{VL}")
    A.e(f"v_lshl_add_u32 v3, v4, 30, v3")
    A.e(f"s_lshl_b32 s{S_T0}, s{S_G}, 7")
    A.e(f"s_add_u32 s{S_T0}, s{S_T0}, {WS_FLAG}")
    A.vm_issue(f"buffer_store_dword v2, v3, {sr(S_WS, 4)}, s{S_T0} offen sc1", "Z")


def scrub_s(cfg):
    L = [f"s_mul_i32 s{S_T0}, s2, {cfg.get('pst', 3 * U)}", f"s_lshl_b32 s{S_T1}, s{S_WAVE}, 11", f"s_add_u32 s{S_T0}, s{S_T0}, s{S_T1}",
         f"s_add_u32 s{S_T0}, s{S_T0}, {WS_PART}", f"v_lshlrev_b32 v2, 4, v{VL}"] + [f"v_mov_b32 v{8 + i}, -1" for i in range(4)]
    for d in range(3):
        L += [f"buffer_store_dwordx4 v[8:11], v2, {sr(S_WS, 4)}, s{S_T0} offen offset:{1024 * i} sc1" for i in range(2)] + [f"s_add_u32 s{S_T0}, s{S_T0}, {U}"]
    return L


def at_flag(A):
    A.e("s_waitcnt vmcnt(0) lgkmcnt(0)")
    A.e("s_barrier")
    A.e(f"v_min_u32 v2, 1, v0")
    A.e(f"v_lshlrev_b32 v2, 30, v2")
    A.e(f"v_mov_b32 v3, 1")
    A.e(f"s_lshl_b32 s{S_T0}, s{S_G}, 7")
    A.e(f"s_add_u32 s{S_T0}, s{S_T0}, {WS_FLAG}")
    A.e(f"buffer_store_dword v3, v2, {sr(S_WS, 4)}, s{S_T0} offen offset:96 sc1")
    A.e(f"buffer_store_dword v3, v2, {sr(S_WS, 4)}, s{S_T0} offen offset:64 sc1")


def uniq(L):
    nb, nl, out = {}, {}, []
    for t in L:
        if t.endswith("@"):
            k = t.split()[-1]
            nb[k] = nb.get(k, 0) + 1
            t = t[:-1] + f"_{nb[k]}"
        elif t.endswith("@:"):
            k = t[:-1]
            nl[k] = nl.get(k, 0) + 1
            t = t[:-2] + f"_{nl[k]}:"
        out.append(t)
    return out


def join(name, M, Jn, rl):
    bm, bj = M.blocks(), Jn.blocks()
    k = 0
    while k < min(len(bm), len(bj)) - 1 and bm[len(bm) - 1 - k] == bj[len(bj) - 1 - k]:
        k += 1
    lab = f"L_{name}_join"
    main = roll(bm[:len(bm) - k], name + "a", rl) + [lab + ":"] + roll(bm[len(bm) - k:], name + "b", rl)
    pre = roll(bj[:len(bj) - k], name + "c", rl) + [f"    s_branch {lab}"]
    return main, pre, len(bj) - k


HEADER = """; out = x + Re(DFT_seq(DFT_hid(LN x))) + relu(LN(x) w1) w2      (generated code)
; Symmetries of the constant DFT matrices that are used (C = seq tables, D = hidden tables):
;   Dr[e,1024-d]=Dr[e,d], Di[e,1024-d]=-Di[e,d], D[e,512+-d]=(-1)^e-type mirror, same mirrors in e;
;   Cr[t,2048-s]=Cr[t,s], Ci[t,2048-s]=-Ci[t,s], C[t,1024+-s]=(-1)^t-type mirror, same mirrors in t.
; folded (sums / differences of mirrored samples) before each product."""


def build(cfg):
    import k1s
    fused = cfg.get("fused", True)
    rl = cfg.get("roll", True)
    HS, K = make_sched(cfg)
    A = Asm()
    names = ["pk_kernel"] if fused else ["k1_kernel", "k2_kernel"]
    for nm in names:
        A.raw(f"; @launch kernel={nm} grid=(256,1,1) block=(512,1,1) lds=163840")
    for l in HEADER.split("\n"):
        A.raw(l)
    A.raw('.amdgcn_target "amdgcn-amd-amdhsa--gfx950"')
    A.raw(".text")
    scfg = dict(cfg)
    scfg["zflag"] = False
    scfg["early"] = True
    if fused:
        L0 = pf_w2(cfg, 253, 252)
        scfg["hook"] = L0[:-1] + [f"s_cmp_ge_u32 s{S_WAVE}, 4", "s_cbranch_scc1 L_nopf", L0[-1][1], "L_nopf:"]
    scfg.setdefault("s_store_aux", " sc1")
    H, hp2 = K["H"], K["p2"]
    if fused:
        kernel_begin(A, names[0])
        common(A, cfg, "L_end")
        C, P = consumer(cfg, HS, K, 0, H, True), producer(cfg, HS, K, 0, H, True)
        C2, P2 = consumer(cfg, HS, K, hp2, H, True), producer(cfg, HS, K, hp2, H, True)
        cm, cp, nc = join("c", C, C2, rl)
        pm, pp, np_ = join("p", P, P2, rl)
        print("join after blocks: consumer", nc, "producer", np_, {k: v for k, v in K.items() if k not in ("UT", "LA")}, file=sys.stderr)
        A.e(f"s_cmp_eq_u32 s{S_NT}, 0")
        A.e("s_cbranch_scc1 L_special")
        A.e(f"s_cmp_ge_u32 s{S_WAVE}, 4")
        A.e("s_cbranch_scc1 L_prod")
        A.L += cm
        A.e("s_branch L_fin")
        A.label("L_prod")
        A.L += pm
        A.e("s_branch L_fin")
        A.label("L_special")
        zero_line(A)
        scfg["hook"] += scrub_s(cfg)
        k1s.k1_special(A, scfg)
        A.e("s_waitcnt lgkmcnt(0)")
        A.e("s_barrier")
        k1h.stamp(A, 12, enable=cfg.get("stamps"))
        A.e(f"s_cmp_ge_u32 s{S_WAVE}, 4")
        A.e("s_cbranch_scc1 L_prod2")
        A.L += cp
        A.label("L_prod2")
        A.L += pp
        ool = {}
        for s in (C, P, C2, P2):
            ool.update(s.ool)
        for L in ool.values():
            A.L += L
        A.label("L_fin")
        fin(A, cfg, 0)
        A.label("L_end")
        A.e("s_endpgm")
    else:
        for ki, (h0, h1) in enumerate(((0, hp2), (hp2, H))):
            nm = names[ki]
            kernel_begin(A, nm)
            common(A, cfg, f"L_end{ki}")
            C, P = consumer(cfg, HS, K, h0, h1, False), producer(cfg, HS, K, h0, h1, False)
            if ki == 0:
                A.e(f"s_cmp_eq_u32 s{S_NT}, 0")
                A.e("s_cbranch_scc1 L_special")
            A.e(f"s_cmp_ge_u32 s{S_WAVE}, 4")
            A.e(f"s_cbranch_scc1 L_prod{ki}")
            A.L += roll(C.blocks(), f"c{ki}", rl)
            A.e(f"s_branch L_fin{ki}")
            A.label(f"L_prod{ki}")
            A.L += roll(P.blocks(), f"p{ki}", rl)
            A.e(f"s_branch L_fin{ki}")
            for s in (C, P):
                for L in s.ool.values():
                    A.L += L
            if ki == 0:
                A.label("L_special")
                zero_line(A)
                k1s.k1_special(A, scfg)
                at_flag(A)
            A.label(f"L_fin{ki}")
            fin(A, cfg, ki << 20)
            A.label(f"L_end{ki}")
            A.e("s_endpgm")
    A.raw('.section .rodata,"a"')
    for nm in names:
        descriptor(A, nm)
    A.L = uniq(A.L)
    return A.text(cfg.get("hv", False))


if __name__ == "__main__":
    cfg = dict(stamps=("stamps" in sys.argv))
    for a in sys.argv[2:]:
        if "=" in a:
            k, v = a.split("=", 1)
            try:
                v = eval(v)
            except Exception:
                pass
            cfg[k] = v
    open(sys.argv[1], "w").write(build(cfg))
```

```python
import sys
from asmlib import *
from k1h import WS_H, WS_AT, WS_BT, AT_BLK, AT_PE, AT_TP, WS_ST, WS_FLAG, WS_PART, WS_DBG, WS_BYTES, STAMP_V
import k1h

U = 16384
NS = 9
L_PM = NS * U
L_TM = L_PM + 4096
OOB = 0x40000000
WS_CS = 21 << 20
S_X, S_W1, S_WS, S_CS, S_DBG, S_W2, S_O, S_CR, S_CI = 16, 20, 24, 28, 64, 68, 72, 76, 80
S_WAVE, S_Q, S_PAR, S_MLO, S_NT, S_G = 32, 33, 34, 35, 36, 37
S_T0, S_T1, S_T2, S_T3 = 38, 39, 84, 85
S_CNT, S_TO, S_QB = 86, 87, 3
VL = 1
MF = "v_mfma_f32_16x16x32_bf16"


class St(Asm):
    def __init__(self):
        super().__init__()
        self.bidx = [0]
        self.ool = {}

    def block(self):
        self.bidx.append(len(self.L))

    def blocks(self):
        b = self.bidx + [len(self.L)]
        return [self.L[b[i]:b[i + 1]] for i in range(len(b) - 1)]


def stamp(A, idx, cfg):
    k1h.stamp(A, idx, enable=cfg.get("stamps", False))
    if cfg.get("stamps", False):
        A.ds = []


def roll(blocks, name, enable=True):
    out = []
    i = 0
    n = len(blocks)
    nl = 0
    while i < n:
        best = None
        if enable:
            for p in range(1, 13):
                k = 1
                while i + (k + 1) * p <= n and blocks[i + k * p:i + (k + 1) * p] == blocks[i:i + p]:
                    k += 1
                if k >= 2:
                    sav = (k - 1) * sum(len(b) for b in blocks[i:i + p])
                    if sav > 40 and (best is None or sav > best[0]):
                        best = (sav, p, k)
        if best:
            _, p, k = best
            nl += 1
            lab = f"L_{name}_r{nl}"
            out.append(f"    s_mov_b32 s{S_CNT}, {k - 1}")
            out.append(lab + ":")
            for b in blocks[i:i + p]:
                out += b
            out.append(f"    s_sub_u32 s{S_CNT}, s{S_CNT}, 1")
            out.append(f"    s_cbranch_scc0 {lab}")
            i += p * k
        else:
            out += blocks[i]
            i += 1
    return out


def make_sched(cfg):
    q1 = cfg.get("q1", "P0-7 A8-15 B12-15 B8-11*")
    q2 = cfg.get("q2", "A0-3 PR0 PR1 PI0 PI1 B0-3 P4-9 A10-13 B10-13")
    HS = []
    UT = []

    def unit(h):
        UT.append(dict(first=h, last=h))
        return len(UT) - 1

    for ph, q in ((1, q1), (2, q2)):
        sq = []
        for w in q.replace(",", " ").split():
            re_ = w.endswith("*")
            w = w.rstrip("*")
            if w[1] in "RI":
                js = [w[1:]]
            else:
                lo, hi = (w[1:].split("-") * 2)[:2] if "-" not in w else w[1:].split("-")
                js = list(range(int(lo), int(hi) + 1))
            for j in js:
                sq += [(S, j, re_) for S in ((0, 1) if w[0] == "P" else ("AB".index(w[0]),))]
        ea = {}
        for S, j, re_ in sq:
            h = len(HS)
            D = isinstance(j, str)
            if j not in ea or re_:
                e = dict(kind="g", ph=ph, S=S, j=j, D=D, d=unit(h), ld=True, newd=True, r=unit(h), ldr=True, newp=True, h=h)
                ea[j] = e
            else:
                f = ea[j]
                big = f["h"] != h - 1
                if big:
                    UT[f["d"]]["last"] = h
                    if D:
                        UT[f["r"]]["last"] = h
                e = dict(kind="g", ph=ph, S=S, j=j, D=D, d=f["d"], ld=False, newd=big, r=f["r"] if D else unit(h), ldr=not D, newp=big or not D, h=h)
            HS.append(e)
        assert len(set((S, j) for S, j, _ in sq)) == len(sq)
    assert len(HS) == 68
    free = [(-99, i, i) for i in range(NS)]
    for u in UT:
        u["need"] = u["first"] - 2
    for e in HS:
        e["own"] = e["ph"] == 2 and e["j"] in (0, 1) and cfg.get("ownl", False)
        if e["own"]:
            UT[e["r"]]["need"] = max(h for h, f in enumerate(HS) if f["ph"] == 1 and f["S"] == e["S"])
    for n_, u in enumerate(sorted(UT, key=lambda u: u["need"] + (cfg.get("ownlate", 0) if u["need"] != u["first"] - 2 else 0))):
        free.sort()
        fb, _, sl = free.pop(0)
        u["slot"], u["fb"] = sl, fb
        assert fb <= u["need"], (n_, u)
        free.append((u["last"], NS + n_, sl))
    K = {}
    K["UT"] = UT
    LA = [h for h, e in enumerate(HS) if e["ph"] == 1 and e["S"] == 0]
    K["LA"] = LA
    K["aend"] = LA[-1] + 1
    K["cs"] = cfg.get("cs", LA[-1] - 1)
    K["p2"] = 32
    K["dft"] = 64
    K["a2end"] = max(h for h, e in enumerate(HS) if e["ph"] == 2 and e["S"] == 0)
    K["H"] = len(HS)
    f2 = lambda S, own: min(h for h, e in enumerate(HS) if e["ph"] == 2 and e["S"] == S and not e["D"] and (e["j"] < 2) == own)
    K["drA"] = cfg.get("drA", min(K["aend"] + 4, f2(0, True) - 2))
    K["pA"] = cfg.get("pA", max(K["drA"] + 1, f2(0, False) - 3))
    K["drB"] = cfg.get("drB", min(min(h for h, e in enumerate(HS) if e["ph"] == 2 and e["S"] == 1), f2(1, True) - 2))
    K["pB"] = cfg.get("pB", max(K["drB"] + 1, f2(1, False) - 4))
    K["pAT"] = cfg.get("pAT", min(h for h, e in enumerate(HS) if e["D"]) - 5)
    K["drT"] = cfg.get("drT", 33)
    K["pX"] = cfg.get("pX", K["a2end"] - 2)
    K["scr"] = cfg.get("scr", 3)
    return HS, K


PF, TF, TMF, PC = 64, 96, 48, 44
ACC = [128, 192]
AXR, AH, AAT, ATT, APM, ATM, VST = [8, 9], 10, 11, [12, 13, 14, 15], 18, 19, 20
ATU = [24, 25, 26, 27]
GRP = {"X": AXR, "H": [AH], "A": [AAT], "T": ATT, "U": ATU}
VPA, VPV, VPA2, VPV2 = 21, 22, 23, 40
VO = [[24, 25], [26, 27]]
VR = [[28, 29], [30, 31]]
PXR, TXR = 32, 48
XR = [[56, 60], [28, 44]]
sWM, sWN, sHS, sXS, sXR, sFL, sSG, sLO, sHI = 40, 41, 42, 43, 44, 45, 46, 47, 48
sCT, sCB = 53, 54
VCA, SEN, MR, CSR = 16, 28, 32, 48
VM0 = 22


def acc(S, rb, cb):
    return ACC[S] + rb * 16 + cb * 4


def t_of(A, vd, vi, tmp):
    A.e(f"s_lshr_b32 s{tmp}, s{S_Q}, 1")
    A.e(f"s_lshl_b32 s{tmp}, s{tmp}, 6")
    A.e(f"v_xor_b32 v{vd}, s{tmp}, v{vi}")
    A.e(f"s_lshl_b32 s{tmp}, s{S_MLO}, 8")
    A.e(f"s_add_u32 s{tmp}, s{tmp}, s{S_PAR}")
    A.e(f"v_lshl_add_u32 v{vd}, v{vd}, 1, s{tmp}")


def mirror_t(A, vd, vs, vt):
    A.e(f"v_sub_u32 v{vd}, 2048, v{vs}")
    A.e(f"v_mov_b32 v{vt}, 1024")
    A.e(f"v_cmp_eq_u32 vcc, 0, v{vs}")
    A.e(f"v_cndmask_b32 v{vd}, v{vd}, v{vt}, vcc")


def mirror_e(L, vc, vt):
    L.append(f"v_sub_u32 v{vt}, 1024, v{vc}")
    L.append(f"v_min_u32 v{vc}, v{vc}, v{vt}")
    L.append(f"v_lshrrev_b32 v{vt}, 6, v{vc}")
    L.append(f"v_mul_u32_u24 v{vt}, {AT_BLK}, v{vt}")
    L.append(f"v_and_b32 v6, 1, v{vc}")
    L.append(f"v_mad_u32_u24 v{vt}, v6, s{S_T3}, v{vt}")
    L.append(f"v_bfe_u32 v{vc}, v{vc}, 1, 5")
    L.append(f"v_lshl_add_u32 v{vc}, v{vc}, 4, v{vt}")


VPF = 43


def pf_addr(cfg, vd, pitch, rows):
    return [f"s_and_b32 s{S_T2}, s{S_WAVE}, 3", f"s_lshl2_add_u32 s{S_T2}, s{S_MLO}, s{S_T2}", f"s_lshl1_add_u32 s{S_T2}, s{S_T2}, s{S_PAR}",
            f"s_mul_i32 s{S_T2}, s{S_T2}, {rows}", f"v_lshrrev_b32 v2, 1, v{VL}", f"v_add_u32 v2, s{S_T2}, v2", f"v_mul_u32_u24 v2, {pitch}, v2",
            f"v_and_b32 v3, 1, v{VL}", f"v_lshl_add_u32 v2, v3, 7, v2",
            f"v_add_u32 v3, {64 - 2 * rows}, v{VL}", f"v_lshrrev_b32 v3, 6, v3", f"v_lshl_add_u32 v{vd}, v3, 30, v2"]


def pf_w1(cfg, va, s, ns):
    L = pf_addr(cfg, va, 7168, 2 * ns)
    L += [f"s_mul_i32 s{s}, s{S_Q}, {cfg.get('rot', 0) * 64}",
          f"s_mul_i32 s{S_T3}, s{S_Q}, 7", f"s_add_u32 s{S_T3}, s{S_T3}, s{S_NT}", f"s_sub_u32 s{S_T3}, s{S_T3}, 1", f"s_lshl_b32 s{S_T3}, s{S_T3}, 8",
          f"v_add_u32 v{va}, s{S_T3}, v{va}"]
    assert cfg.get('rot', 0) % ns == 0 and cfg.get('rotp', 0) == 0
    return L, [f"s_and_b32 s{s}, s{s}, 1023", f"s_mul_i32 s{S_T3}, s{s}, 7168", f"s_add_u32 s{s}, s{s}, {64 * ns}",
               ("vm", f"buffer_load_dword v{VPF}, v{va}, {sr(S_W1, 4)}, s{S_T3} offen{cfg.get('pfaux', '')}", "PF")]


def pf_x(cfg, va, s, ns):
    nw = cfg.get("pfxw", 112)
    L = [f"s_sub_u32 s{S_T2}, s{S_NT}, 1"] + ([f"s_lshl2_add_u32 s{S_T2}, s{S_T2}, s{S_Q}"] if nw == 112 else []) + [f"s_lshl2_add_u32 s{S_T2}, s{S_T2}, s{S_WAVE}",
         f"v_lshrrev_b32 v2, {ns.bit_length() - 1}, v{VL}", f"v_mul_u32_u24 v2, {nw}, v2", f"v_add_u32 v4, s{S_T2}, v2", f"v_and_b32 v2, 127, v4",
         f"s_lshl_b32 s{S_T3}, s{S_MLO}, 8", f"s_add_u32 s{S_T3}, s{S_T3}, s{S_PAR}", f"v_lshl_add_u32 v2, v2, 1, s{S_T3}",
         f"v_sub_u32 v3, 2048, v2", f"v_and_b32 v3, 2047, v3",
         ("atom", [f"v_cmp_lt_u32 vcc, 127, v4", "v_cndmask_b32 v2, v2, v3, vcc"]),
         f"v_and_b32 v3, {ns - 1}, v{VL}", f"v_lshlrev_b32 v3, 7, v3", f"v_lshl_add_u32 v2, v2, 11, v3",
         f"v_lshrrev_b32 v3, 8, v4", f"v_min_u32 v3, 1, v3", f"v_lshl_add_u32 v{va}, v3, 30, v2",
         f"s_mul_i32 s{s}, s{S_Q}, {cfg.get('rot', 0) * 128 if nw != 112 else 0}"]
    assert (256 + nw - 1) // nw * ns <= 64
    return L, [f"s_and_b32 s{s}, s{s}, 2047", ("vm", f"buffer_load_dword v{VPF}, v{va}, {sr(S_X, 4)}, s{s} offen{cfg.get('pfaux', '')}", "PF"), f"s_add_u32 s{s}, s{s}, {128 * ns}"]


def pf_d(cfg):
    return [("atom", [f"s_cmp_eq_u32 s{sWM}, 1", f"s_cselect_b32 s{S_CS}, s14, s12", f"s_cselect_b32 s{S_CS + 1}, s15, s13"]),
            f"s_and_b32 s{S_CS + 1}, s{S_CS + 1}, 0xffff", f"s_mov_b32 s{S_CS + 2}, {1024 * 2048}", f"s_mov_b32 s{S_CS + 3}, 0x00020000",
            f"s_lshr_b32 s{S_T2}, s2, 3", f"s_sub_u32 s{S_T2}, s{S_T2}, 4", f"s_lshl1_add_u32 s{S_T2}, s{S_T2}, s{sWN}",
            f"v_lshrrev_b32 v2, 2, v{VL}", f"v_mul_u32_u24 v2, 56, v2", f"v_add_u32 v2, s{S_T2}, v2",
            f"v_and_b32 v3, 3, v{VL}", f"v_lshlrev_b32 v3, 7, v3", f"v_lshl_add_u32 v3, v2, 11, v3",
            f"v_lshrrev_b32 v2, 8, v2", f"v_min_u32 v2, 1, v2", f"v_lshl_add_u32 v2, v2, 30, v3",
            ("vm", f"buffer_load_dword v{VPF}, v2, {sr(S_CS, 4)}, 0 offen", "PF")]


def pf_w2(cfg, va, vd=VPF):
    L = pf_addr(cfg, va, 2048, 28)
    L += [f"s_mul_i32 s{S_T3}, s{S_Q}, {896 * 8}", f"s_add_u32 s{S_T3}, s{S_T3}, s{S_NT}", f"s_lshl_b32 s{S_T3}, s{S_T3}, 8"]
    return L + [("vm", f"buffer_load_dword v{vd}, v{va}, {sr(S_W2, 4)}, s{S_T3} offen{cfg.get('pfaux', '')}", "PF")]


def pf_c(cfg):
    return [f"s_and_b32 s{S_T2}, s{S_NT}, 3",
            ("atom", [f"s_cmp_eq_u32 s{S_T2}, 1", f"s_cselect_b32 s{S_CS}, s{S_CR}, s{S_CI}", f"s_cselect_b32 s{S_CS + 1}, s{S_CR + 1}, s{S_CI + 1}"]),
            f"s_mov_b32 s{S_CS + 2}, s{S_CR + 2}", f"s_mov_b32 s{S_CS + 3}, s{S_CR + 3}",
            f"s_lshl_b32 s{S_T2}, s{S_WAVE}, 6", f"v_and_b32 v2, 62, v{VL}", f"v_add_u32 v2, s{S_T2}, v2",
            f"s_lshl_b32 s{S_T2}, s{S_MLO}, 8", f"s_add_u32 s{S_T2}, s{S_T2}, s{S_PAR}", f"v_add_u32 v2, s{S_T2}, v2",
            f"v_sub_u32 v3, 2048, v2", f"v_and_b32 v3, 2047, v3", f"s_lshr_b32 s{S_T2}, s{S_NT}, 1",
            ("atom", [f"s_cmp_eq_u32 s{S_T2}, 1", "s_cselect_b64 vcc, -1, 0", "v_cndmask_b32 v2, v2, v3, vcc"]),
            f"v_and_b32 v3, 1, v{VL}", f"v_lshlrev_b32 v3, 7, v3", f"v_lshl_add_u32 v2, v2, 12, v3", f"s_lshl_b32 s{S_T2}, s{S_Q}, 8",
            ("vm", f"buffer_load_dword v{VPF}, v2, {sr(S_CS, 4)}, s{S_T2} offen", "PF")]


def check_poll(A, name, load, vreg, tag):
    A.e(f"s_mov_b32 s{S_TO}, 0x40000")
    A.vm_need([tag])
    A.label("L_pl@")
    A.e(f"v_cmp_ne_u32 vcc, 0, v{vreg}")
    A.e("s_cmp_eq_u64 vcc, -1")
    A.e("s_cbranch_scc1 L_ok@")
    A.e(load)
    A.e("s_waitcnt vmcnt(0)")
    A.e(f"s_sub_u32 s{S_TO}, s{S_TO}, 1")
    A.e("s_cbranch_scc0 L_pl@")
    A.label("L_ok@")


def consumer(cfg, HS, K, h0, h1, fused):
    A = St()
    main = h0 == 0
    sc = " sc1" if fused else ""
    A.e(f"s_setprio {cfg.get('prio', 1)}")
    A.e(f"s_lshr_b32 s{sWM}, s{S_WAVE}, 1")
    A.e(f"s_and_b32 s{sWN}, s{S_WAVE}, 1")
    A.e(f"v_and_b32 v2, 15, v{VL}")
    A.e(f"v_lshrrev_b32 v3, 4, v{VL}")
    A.e(f"s_lshl_b32 s{S_T0}, s{sWM}, 12")
    A.e(f"s_lshl_b32 s{S_T1}, s{sWN}, 12")
    A.e(f"v_lshlrev_b32 v{VST}, 4, v{VL}")
    base = {"X": 0, "H": 0, "A": 0, "T": 0, "U": 0}
    A.e(f"v_bfe_u32 v4, v{VL}, 2, 2")
    A.e(f"v_lshl_add_u32 v5, v3, 3, v4")
    A.e(f"v_lshlrev_b32 v5, 8, v5")
    A.e(f"v_and_b32 v6, 1, v3")
    A.e(f"v_lshl_add_u32 v4, v6, 2, v4")
    A.e(f"s_lshl_b32 s{S_T2}, s{sWN}, 1")
    A.e(f"v_xor_b32 v4, s{S_T2}, v4")
    A.e(f"v_lshl_add_u32 v5, v4, 5, v5")
    A.e(f"v_and_b32 v4, 3, v{VL}")
    A.e(f"v_lshl_add_u32 v{ATT[0]}, v4, 3, v5")
    for cb in range(1, 4):
        A.e(f"v_xor_b32 v{ATT[cb]}, {(cb >> 1) * 128 + (cb & 1) * 32}, v{ATT[0]}")
    A.e(f"v_lshrrev_b32 v4, 1, v2")
    A.e(f"v_xor_b32 v4, v3, v4")
    A.e(f"v_lshl_add_u32 v5, v2, 7, s{S_T0}")
    if fused and not main:
        base["X"] = K["xbase"]
        A.e(f"v_add_u32 v5, {base['X'] * U}, v5")
    A.e(f"v_lshl_add_u32 v{AXR[0]}, v4, 4, v5")
    A.e(f"v_xor_b32 v{AXR[1]}, 64, v{AXR[0]}")
    A.e(f"v_add_u32 v{AH}, s{S_T0}, v{VST}")
    A.e(f"v_add_u32 v{AAT}, s{S_T1}, v{VST}")
    if main:
        A.e(f"s_lshl_b32 s{S_T2}, s{sWM}, 9")
        A.e(f"s_add_u32 s{S_T2}, s{S_T2}, {L_PM}")
        A.e(f"v_lshl_add_u32 v{APM}, v2, 5, s{S_T2}")
        A.e(f"s_lshl_b32 s{S_T2}, s{S_WAVE}, 11")
        A.e(f"v_and_b32 v4, 7, v{VL}")
        A.e(f"v_lshl_add_u32 v4, v3, 3, v4")
        A.e(f"v_lshl_add_u32 v4, v4, 4, s{S_T2}")
        A.e(f"v_xor_b32 v{VCA}, 4096, v4")
        A.e(f"v_add_u32 v{ATM}, {L_TM}, v4")
        A.e(f"v_add_u32 v{VCA}, {L_TM}, v{VCA}")
        for i in range(4):
            A.e(f"v_mov_b32 v{PC + i}, 0x3f803f80")
        A.e(f"s_lshl_b32 s{sCT}, s{sWM}, 13")
        A.e(f"s_lshl_b32 s{sCB}, s{sWM}, 6")

        def swap():
            for r in ATT:
                A.e(f"v_xor_b32 v{r}, s{sCT}, v{r}")
            for r in AXR:
                A.e(f"v_xor_b32 v{r}, s{sCB}, v{r}")
        swap()
        for cb in range(4):
            A.e(f"v_xor_b32 v{ATU[cb]}, 8192, v{ATT[cb]}")
        A.e(f"s_lshl_b32 s{S_T2}, s{S_PAR}, 2")
        A.e(f"s_add_u32 s{S_T2}, s{S_T2}, s{S_MLO}")
        A.e(f"s_mul_i32 s{S_T2}, s{S_T2}, 56")
        A.e(f"s_mul_i32 s{S_T3}, s{S_Q}, 7")
        A.e(f"s_add_u32 s{S_T2}, s{S_T2}, s{S_T3}")
        A.e(f"s_add_u32 s{S_T2}, s{S_T2}, s{S_NT}")
        A.e(f"s_sub_u32 s{S_T2}, s{S_T2}, 1")
        A.e(f"s_lshl_b32 s{sHS}, s{S_T2}, 15")
        A.e(f"s_add_u32 s{sHS}, s{sHS}, s{S_T0}")
        A.e(f"s_lshl_b32 s{S_T2}, s{sWN}, 10")
        A.e(f"s_add_u32 s{sHS}, s{sHS}, s{S_T2}")
        assert WS_H == 0
    A.e(f"s_lshl_b32 s{S_T2}, s{sWM}, 5")
    A.e(f"v_add_u32 v4, s{S_T2}, v2")
    t_of(A, 4, 4, S_T2)
    A.e(f"v_bfrev_b32 v5, 1")
    A.e(f"v_cmp_eq_u32 vcc, 0, v4")
    A.e(f"v_cndmask_b32 v{VM0}, 0, v5, vcc")
    A.e(f"v_cmp_eq_u32 vcc, 128, v4")
    A.e(f"v_cndmask_b32 v{VM0 + 1}, 0, v5, vcc")

    vals = {}
    groups = []
    cur_t = None

    def val(key, reg, reads, pub, unit=None, grp=None):
        vals[key] = dict(key=key, reg=reg, reads=reads, pub=pub, slot=None if unit is None else K["UT"][unit]["slot"], grp=grp, first=None, last=None)
        return key

    fixes = {}
    for h in range(h0, h1):
        e = HS[h]
        if e["newd"]:
            cur_t = {}
            for k32 in range(2):
                for cb in range(4):
                    rg = TF + 4 * (4 * k32 + cb)
                    alt = k32 and e["ph"] == 1
                    if e["D"]:
                        cur_t[k32, cb] = val(("T", h, k32, cb), rg, [(f"ds_read_b128 {vr(rg, 4)}, v{AAT}", (cb >> 1) * 8192 + (cb & 1) * 2048 + k32 * 1024)], h - 1, e["d"], "A")
                    else:
                        cur_t[k32, cb] = val(("T", h, k32, cb), rg,
                                             [(f"ds_read_b64_tr_b16 {vr(rg + 2 * u, 2)}, v{(ATU if alt else ATT)[cb]}", (0 if alt else k32 * 8192) + u * 1024) for u in range(2)],
                                             h - 1, e["d"], "U" if alt else "T")
        for k32 in range(2):
            for rb in range(4):
                rg = PF + 4 * (4 * k32 + rb)
                o = (rb >> 1) * 8192 + (rb & 1) * 2048
                xl = e["ph"] == 1 or e["D"]
                rd = (f"ds_read_b128 {vr(rg, 4)}, v{AXR[k32]}", o) if xl else (f"ds_read_b128 {vr(rg, 4)}, v{AH}", o + k32 * 1024)
                p = val(("P", h, k32, rb), rg, [rd], h - 1, e["r"], "X" if xl else "H") if e["newp"] else ("P", h - 1, k32, rb)
                if e["D"] and e["S"] == 1:
                    if e["j"][0] == "I":
                        fixes[h, 4 * k32 + rb] = (p, [f"v_xor_b32 v{rg + i}, 0x80008000, v{rg + i}" for i in range(4)])
                    elif rb & 1 == 0:
                        fixes[h, 4 * k32 + rb] = (p, [f"v_xor_b32 v{rg + i}, v{VM0 + (rb >> 1)}, v{rg + i}" for i in range(4)])
                groups.append((h, [(acc(e["S"], rb, cb), cur_t[k32, cb], p) for cb in range(4)]))
                if h in K["LA"] and rb == 0 and (k32 == 0 or h >= K["LA"][-2]):
                    groups.append((h, [(CSR + 4 * cb, cur_t[k32, cb], "PC") for cb in range(4)]))
    if cfg.get("lord", 1):
        for hl in (K["a2end"], K["H"] - 1):
            ix = [n_ for n_, g in enumerate(groups) if g[0] == hl]
            G = {(k32, rb): groups[ix[4 * k32 + rb]][1] for k32 in range(2) for rb in range(4)}
            new = [G[0, 2], G[0, 3], G[1, 2], G[1, 3], G[0, 0][2:] + G[0, 1][2:], G[1, 0][2:] + G[1, 1][2:], G[0, 0][:2] + G[0, 1][:2], G[1, 0][:2] + G[1, 1][:2]]
            for n_, g in zip(ix, new):
                groups[n_] = (hl, g)
    seq = []
    cnt = {}
    for h, ms in groups:
        for mf in ms:
            i = cnt.get(h, 0)
            cnt[h] = i + 1
            seq.append((h, i, mf))
    for n_, (h, i, (a, t, p)) in enumerate(seq):
        for k in (t, p):
            if k in vals:
                v = vals[k]
                if v["first"] is None:
                    v["first"] = n_
                v["last"] = n_
    order = sorted(vals.values(), key=lambda v: v["first"])
    prev = {}
    for v in order:
        v["prev"] = prev.get(v["reg"])
        prev[v["reg"]] = v
        v["q"] = list(v["reads"])
    pend = list(order)

    extras = []
    prebar = {}

    def X(at, items, dl=None):
        extras.append(dict(at=at, items=list(items), dl=dl))

    def PB(h, fn):
        prebar.setdefault(h, []).append(fn)

    H = K["H"]
    hp2, hd = K["p2"], K["dft"]
    haux = cfg.get("h_aux", " sc1")
    PST = cfg.get("pst", 3 * U)

    def ep_items(S, rb):
        L = []
        for rel in range(2):
            a = acc(S, rb, 2 * rel)
            if rb & 1 == 0 or True:
                L.append(f"s_add_u32 s{S_T0 + rel}, s{sHS}, {S * 56 * U + rel * U + (rb >> 1) * 8192}")
            L += [f"v_cvt_pk_bf16_f32 v{a + i}, v{a + 2 * i}, v{a + 2 * i + 1}" for i in range(4)]
            L += [f"v_pk_max_i16 v{a + i}, v{a + i}, 0" for i in range(4)]
            L.append(("vm", f"buffer_store_dwordx4 {vr(a, 4)}, v{VST}, {sr(S_WS, 4)}, s{S_T0 + rel} offen offset:{(rb & 1) * 2048}{haux}", ("H", S)))
            if cfg.get("ownl"):
                L.append(("ds", f"ds_write_b128 v{VPA + rel}, {vr(a, 4)} offset:{(rb >> 1) * 8192 + (rb & 1) * 2048}", ("HW", S)))
        return L

    def send_items(S, rb):
        L = []
        for relc in range(2):
            d = 2 * (rb >> 1) + relc
            if d == 0:
                continue
            a = acc(S, rb, 2 * relc)
            L += [f"v_cvt_pk_bf16_f32 v{a + i}, v{a + 2 * i}, v{a + 2 * i + 1}" for i in range(4)]
            L.append(("vm", f"buffer_store_dwordx4 {vr(a, 4)}, v{VST}, {sr(S_WS, 4)}, s{49 + d} offen offset:{(S * 2 + (rb & 1)) * 1024}{cfg.get('snd_aux', ' sc1')}", "SND"))
        return L

    RV = [acc(0, 0, 2), acc(0, 0, 3), acc(0, 1, 2), acc(0, 1, 3)] + [acc(0, 2, 0) + 4 * i for i in range(8)]

    def rvr(S, rb2, d):
        return RV[(S * 2 + rb2) * 3 + d]

    def rcv(S, rb2, d):
        return f"buffer_load_dwordx4 {vr(rvr(S, rb2, d), 4)}, v{VST}, {sr(S_WS, 4)}, s{55 + d} offen offset:{(S * 2 + rb2) * 1024} sc1"

    def lastpos(S, rb, hmax, lo=0):
        best = None
        for n_, (h, i, (a, t, p)) in enumerate(seq):
            if h < hmax and acc(S, rb, 0) + lo <= a < acc(S, rb, 0) + 16:
                best = n_
        return best

    def at_after(n_, d=3):
        n_ = n_ + d
        if n_ >= len(seq):
            return (h1, 0)
        return seq[n_][:2]

    def uses(S, rb):
        return [n_ for n_, (h, i, (a, t, p)) in enumerate(seq) if acc(S, rb, 0) <= a < acc(S, rb, 0) + 16]

    BA = cfg.get("bar_at", 7)

    def inv():
        A.e(f"s_cmp_lg_u32 s{S_WAVE}, 0")
        A.e("s_cbranch_scc1 L_iv@")
        A.e("buffer_inv sc1")
        A.label("L_iv@")

    def drain0():
        A.vm = []
        A.e("s_waitcnt vmcnt(0)")

    if main:
        l3, l2, l1 = K["LA"][-3:]
        X((l3, 12), [("ds", f"ds_write_b128 v{ATM}, {vr(CSR + 4 * cb, 4)} offset:{512 * cb}", "CW") for cb in range(4)], dl=(l3, 30))
        PB(l3 + 1, lambda: A.ds_need(["CW"]))
        for i in range(2):
            X((l3 + 1, BA + 12 * i), [("ds", f"ds_read_b128 {vr(MR + 4 * c2, 4)}, v{VCA} offset:{512 * (2 * i + c2)}", "CR") for c2 in range(2)], dl=(l3 + 1, BA + 12 * i + 4))
            X((l3 + 1, BA + 12 * i + 8), [("need", "CR")] + [f"v_add_f32 v{CSR + 8 * i + k}, v{CSR + 8 * i + k}, v{MR + k}" for k in range(8)], dl=(l3 + 1, BA + 12 * i + 12))
        hc = K["cs"]
        assert hc <= l1
        for S in range(2):
            for rb in range(4):
                at = max(at_after(lastpos(S, rb, hp2)), (l1, 31))
                pc_ = int(rb * cfg.get("pace", (0, 0))[S] * 32)
                at = max(at, ((hp2 if S else K["aend"]) + pc_ // 32, pc_ % 32)) if pc_ else at
                osel = "op_sel:[0,1,0] op_sel_hi:[1,1,1]" if rb & 1 else "op_sel_hi:[1,0,1]"
                osm = "op_sel:[0,1] op_sel_hi:[1,1]" if rb & 1 else "op_sel_hi:[1,0]"
                if rb == 0:
                    X(max((hc, BA), (l3 + 2, 0)) if S == 0 else (hp2 - 1, 0), [("ds", f"ds_read_b128 {vr(MR + 4 * i, 4)}, v{APM} offset:{16 * S + 1024 * i}", "M") for i in range(2)])
                L = [("need", "M"), f"v_and_b32 v{MR + rb}, 0xffff0000, v{MR + rb}"]
                a_ = acc(S, rb, 0)
                L += [f"v_pk_fma_f32 {vr(a_ + k, 2)}, {vr(CSR + k, 2)}, {vr(MR + (rb & 2), 2)}, {vr(a_ + k, 2)} {osel} neg_lo:[0,1,0] neg_hi:[0,1,0]" for k in range(0, 16, 2)]
                L += [f"v_pk_mul_f32 {vr(a_ + k, 2)}, {vr(a_ + k, 2)}, {vr(MR + 4 + (rb & 2), 2)} {osm}" for k in range(0, 16, 2)]
                if rb == 0 and cfg.get("ownl"):
                    oh = [h for h, e in enumerate(HS) if e["own"] and e["S"] == S]
                    L0 = [f"s_lshl_b32 s{S_T2}, s{sWM}, 12", f"s_lshl_b32 s{S_T3}, s{sWN}, 10", f"s_add_u32 s{S_T2}, s{S_T2}, s{S_T3}"]
                    for rel in range(2):
                        L0 += [f"s_add_u32 s{S_T3}, s{S_T2}, {K['UT'][HS[oh[rel]]['r']]['slot'] * U}", f"v_add_u32 v{VPA + rel}, s{S_T3}, v{VST}"]
                    L = L0 + L
                    PB(oh[0] - 1, lambda S=S: A.ds_need([("HW", S)]))
                X(at, L + ep_items(S, rb), dl=(K["drB" if S else "drA"] - cfg.get("epl", 1), 0))
        if h1 > hp2:
            PB(hp2 - 1, swap)
        extras.sort(key=lambda x: x["at"])
    if main:
        p1, px, p2 = cfg.get("pf1", [-1, -1, 2, 2]), cfg.get("pfx", [-1, -1, 2, 2]), cfg.get("pf2", 12)
        LL = [pf_w1(cfg, 28, 55, 16 // len(p1)), pf_x(cfg, 30, 57, 16 // len(px))]
        for i_ in range(max(len(p1), len(px))):
            for (L0, L1), pp in zip(LL, (p1, px)):
                if i_ == 0:
                    X((-1, 0), L0, dl=(-1, 0))
                if i_ < len(pp):
                    h = pp[i_]
                    X((-1 if h is None else h, 10 if h and h >= 0 else 0), L1 if h is not None else [t for t in L1 if isinstance(t, str)], dl=(-1 if h is None else h, 30))
        if p2:
            X((p2, 2), pf_w2(cfg, 29), dl=(p2, 30))
        if cfg.get("pfd") is not None:
            X((cfg["pfd"], 1), pf_d(cfg), dl=(cfg["pfd"], 30))
    if main and cfg.get("pfc") is not None:
        X((cfg.get("pfc"), 12), pf_c(cfg), dl=(cfg.get("pfc"), 30))
    extras.sort(key=lambda x: x["at"])
    pollA = f"buffer_load_dword v{VPV}, v{VPA}, {sr(S_WS, 4)}, s{sFL} offen sc1"
    pollB = f"buffer_load_dword v{VPV}, v{VPA}, {sr(S_WS, 4)}, s{sFL} offen offset:32 sc1"
    pollT = f"buffer_load_dword v{VPV2}, v{VPA2}, {sr(S_WS, 4)}, 0 offen offset:96 sc1"
    pollS = f"buffer_load_dword v{VPV2}, v{VPA2}, {sr(S_DBG, 4)}, 0 offen sc1"
    PI = cfg.get("poll_at", 12)
    PL = cfg.get("poll_lead", 2)

    if fused and main:
        PB(K["drA"], drain0)
        PB(K["drB"], drain0)
    if h1 == H:
        hs_ = cfg.get("hsu", 45)
        pollX = f"buffer_load_dword v{VCA + 1}, v{VCA}, {sr(S_WS, 4)}, s{sCB} offen sc1"
        L = []
        for d in (1, 2, 3):
            L += [f"s_xor_b32 s{S_T2}, s2, {d if not cfg.get('sndown') else 0}", f"s_mul_i32 s{49 + d}, s{S_T2}, {PST}"]
        L += [f"s_lshl_b32 s{S_T2}, s{S_WAVE}, 12", f"s_add_u32 s{S_T2}, s{S_T2}, {WS_PART}"]
        for d in (1, 2, 3):
            L += [f"s_add_u32 s{49 + d}, s{49 + d}, s{S_T2}", f"s_add_u32 s{49 + d}, s{49 + d}, {(d - 1) * U}"]
        L += [f"s_mul_i32 s{sXR}, s2, {PST}", f"s_add_u32 s{sXR}, s{sXR}, s{S_T2}"]
        L += [f"v_and_b32 v2, 15, v{VL}", f"s_lshl_b32 s{S_T2}, s{sWM}, 5", f"v_add_u32 v2, s{S_T2}, v2",
              f"s_lshr_b32 s{S_T2}, s{S_Q}, 1", f"s_lshl_b32 s{S_T2}, s{S_T2}, 6", f"v_xor_b32 v2, s{S_T2}, v2",
              f"s_lshl_b32 s{S_T2}, s{S_MLO}, 8", f"s_add_u32 s{S_T2}, s{S_T2}, s{S_PAR}", f"v_lshl_add_u32 v2, v2, 1, s{S_T2}",
              f"v_sub_u32 v3, 2048, v2", f"v_mov_b32 v4, 1024",
              ("atom", [f"v_cmp_eq_u32 vcc, 0, v2", f"v_cndmask_b32 v4, v3, v4, vcc"]),
              f"v_lshlrev_b32 v{VO[0][0]}, 11, v2", f"v_lshlrev_b32 v{VO[1][0]}, 11, v4",
              f"v_add_u32 v{VO[0][1]}, {32 * 2048}, v{VO[0][0]}", f"v_lshlrev_b32 v{VO[1][1]}, 11, v3",
              f"v_subrev_u32 v{VO[1][1]}, {32 * 2048}, v{VO[1][1]}"]
        L += [f"v_and_b32 v2, 3, v{VL}", f"v_xor_b32 v2, s{S_G}, v2", f"v_lshlrev_b32 v{VCA}, 7, v2",
              f"s_lshl_b32 s{sCB}, s{S_NT}, 2", f"s_add_u32 s{sCB}, s{sCB}, {WS_FLAG + 64}",
              f"s_lshr_b32 s{sSG}, s{S_NT}, 2", f"s_lshl_b32 s{sSG}, s{sSG}, 31"]
        X((hs_, 2), L, dl=(hs_ + 2, 0))
        L = [f"s_mov_b32 s{S_T3}, {AT_PE}"]
        L += [f"v_lshrrev_b32 v3, 4, v{VL}", f"v_min_u32 v2, 1, v3", f"v_lshlrev_b32 v2, 30, v2"]
        for rb2 in range(2):
            L += [f"v_lshl_add_u32 v4, v{VO[0][rb2]}, 1, v2"]
            for kind in range(2):
                L += [("vm", f"buffer_load_ushort v{PXR + 4 * kind + 2 * rb2}, v4, {sr(S_CI if kind else S_CR, 4)}, 0 offen offset:1024", "PX")]
        L += [f"s_lshl_b32 s{S_T0}, s{S_NT}, 7", f"s_lshl_b32 s{S_T1}, s{S_QB}, 6", f"s_add_u32 s{S_T0}, s{S_T0}, s{S_T1}",
              f"s_lshl_b32 s{S_T1}, s{sWN}, 5", f"s_add_u32 s{S_T0}, s{S_T0}, s{S_T1}",
              f"s_mov_b32 s{sLO}, {WS_AT + 32 * 1024}", f"s_mov_b32 s{sHI}, {WS_BT + AT_TP}"]
        for cb2 in range(2):
            L += [f"v_and_b32 v4, 15, v{VL}", f"v_add_u32 v4, s{S_T0}, v4"]
            if cb2:
                L += [f"v_add_u32 v4, 16, v4"]
            mirror_e(L, 4, 5)
            for kind in range(2):
                L += [("vm", f"buffer_load_ushort v{TXR + 4 * kind + 2 * cb2}, v4, {sr(S_WS, 4)}, s{sHI if kind else sLO} offen{sc}", "TX")]
        for i in range(4):
            L += [f"v_mov_b32 v{PXR + 2 * i + 1}, 0"] + ([f"v_mov_b32 v{TXR + 2 * i + 1}, 0"] if i < 2 else [])
        L += [f"v_and_b32 v2, 1, v3", f"v_lshlrev_b32 v2, 5, v2", f"v_lshrrev_b32 v3, 1, v3", f"v_lshl_add_u32 v2, v3, 4, v2",
              f"s_lshl_b32 s{S_T0}, s{S_T0}, 1", f"v_add_u32 v2, s{S_T0}, v2"]
        L += [f"v_add_u32 v{VO[S][rb2]}, v2, v{VO[S][rb2]}" for S in range(2) for rb2 in range(2)]
        for d in range(3):
            L.append(f"s_add_u32 s{55 + d}, s{sXR}, {d * U}")
        L += [("vm", f"buffer_load_dwordx4 {vr(XR[S][rb2], 4)}, v{VO[S][rb2]}, {sr(S_X, 4)}, 0 offen", "X") for S in range(2) for rb2 in range(2)]
        L += [f"s_mov_b32 s{sLO}, 0x00003f80", f"s_mov_b32 s{sHI}, 0x3f800000"]
        assert hs_ + 2 > K["pAT"]
        X((hs_ + 2, 2), L, dl=(hs_ + 5, 0))
        hx = hs_ + cfg.get("hxd", 8)
        L = [("vneed", ["PX", "TX", "X"])]
        for i in range(2):
            L += [f"v_lshl_or_b32 v{PXR + 4 + 2 * i}, v{PXR + 4 + 2 * i}, 16, v{PXR + 2 * i}", f"v_xor_b32 v{PXR + 4 + 2 * i}, s{sSG}, v{PXR + 4 + 2 * i}",
                  f"v_xor_b32 v{PXR + 2 * i}, 0x80000000, v{PXR + 4 + 2 * i}", f"v_lshl_or_b32 v{TXR + 2 * i}, v{TXR + 4 + 2 * i}, 16, v{TXR + 2 * i}"]
        for S in range(2):
            for rb2 in range(2):
                x = XR[S][rb2]
                L += [f"v_permlane16_swap_b32 v{x}, v{x + 2}", f"v_permlane16_swap_b32 v{x + 1}, v{x + 3}"]
        X((hx, 2), L, dl=(hx, 30))
        for S in sorted(range(2), key=lambda S: min(h for h in range(hx + 1, H) if HS[h]["S"] != S)):
            h = min(h for h in range(hx + 1, H) if HS[h]["S"] != S)
            L = [f"v_mfma_f32_16x16x16_bf16 {vr(acc(S, rb2, cb2), 4)}, {vr(TXR + 2 * cb2, 2)}, {vr(PXR + 4 * S + 2 * rb2, 2)}, {vr(acc(S, rb2, cb2), 4)}"
                 for rb2 in range(2) for cb2 in range(2)]
            X((h, 3), L, dl=(h, 8))
            L = [f"v_dot2c_f32_bf16 v{acc(S, rb2, 0) + i}, s{sHI if i & 1 else sLO}, v{XR[S][rb2] + (i >> 1)}" for rb2 in range(2) for i in range(8)]
            X((h, 13), L, dl=(h, 28))
        X((K["pX"] - PL, PI), [("vm", pollX, "PX2")], dl=(K["pX"] - PL, PI + 2))
        PB(K["pX"], lambda: check_poll(A, "X", pollX, VCA + 1, "PX2"))
        s0 = (K["pX"], BA + 1)
        for S in range(2):
            for rb in range(4):
                X(max(at_after(lastpos(S, rb, H, 8 if rb < 2 else 0)), s0), send_items(S, rb), dl=(K["a2end"] + cfg.get("sdl", 2), 0) if S == 0 else (H, 0))
        X(cfg.get("rcvA", (H - 1, 2)), [("vm", rcv(0, rb2, d), ("RV", 0, rb2)) for rb2 in range(2) for d in range(3)], dl=(H, 0))
        extras.sort(key=lambda x: x["at"])

    def emit_item(it):
        if isinstance(it, tuple):
            if it[0] == "vm":
                A.vm_issue(it[1], it[2])
                return 1
            if it[0] == "ds":
                A.ds_issue(it[1], it[2])
                return 1
            if it[0] == "vneed":
                A.vm_need(it[1])
                return 0
            if it[0] == "need":
                A.ds_need([it[1]])
                return 0
            for t in it[1]:
                A.e(t)
            return len(it[1])
        A.e(it)
        return 0 if it.startswith("s_") else 1

    state = dict(pub=h0 - 2, n=-1)

    def ready(v):
        return v["pub"] <= state["pub"] and (v["prev"] is None or (v["prev"]["last"] <= state["n"] and not v["prev"]["q"]))

    def inwin(v):
        return v["slot"] is None or 0 <= v["slot"] - base[v["grp"]] <= 3

    def issue_one(v):
        cost = 0
        o = 0
        if v["slot"] is not None:
            g_ = v["grp"]
            if not inwin(v):
                nb_ = (v["slot"] // 4) * 4 if v["slot"] < 8 else 5
                d_ = (nb_ - base[g_]) * U
                for r in GRP[g_]:
                    A.e(f"v_add_u32 v{r}, {d_}, v{r}" if d_ > 0 else f"v_subrev_u32 v{r}, {-d_}, v{r}")
                base[g_] = nb_
                cost += len(GRP[g_])
            o = (v["slot"] - base[g_]) * U
        t_, o_ = v["q"].pop(0)
        if not cfg.get("nord"):
            A.ds_issue(f"{t_} offset:{o + o_}", v["key"])
        if not v["q"]:
            pend.remove(v)
        return cost + 1

    def dok(v):
        if inwin(v):
            return True
        for w in pend:
            if w is v:
                return True
            if w["grp"] == v["grp"]:
                return False
        return True

    def fill(cap, pos):
        while cap > 0:
            v = next((v for v in pend[:40] if ready(v) and dok(v)), None)
            if v is not None:
                cap -= issue_one(v)
                continue
            x = extras[0] if extras and extras[0]["at"] <= pos else None
            if x is None:
                break
            ns = 0
            while x["items"] and cap > 0 and ns < 2:
                c_ = emit_item(x["items"].pop(0))
                cap -= c_
                ns += c_ == 0
            if not x["items"]:
                extras.pop(0)
            if ns >= 2:
                break

    def flush(pos):
        last = -1
        for i_, x in enumerate(extras):
            if x["dl"] is not None and x["dl"] <= pos:
                last = i_
        for _ in range(last + 1):
            x = extras.pop(0)
            for it in x["items"]:
                emit_item(it)

    def barrier(h):
        if cfg.get("fr", 0) == 0:
            ks = []
            for v in order:
                if v["pub"] == h - 1 and v["slot"] is not None:
                    while v["q"]:
                        assert ready(v)
                        issue_one(v)
                    ks.append(v["key"])
            A.ds_need(ks)
        for fn in prebar.get(h, []):
            fn()
        if cfg.get("fine"):
            if h >= h0 and (h - h0 < 64 or cfg["fine"] == 2):
                A.e(f"v_writelane_b32 v41, s96, {(h - h0) & 63}")
                A.e(f"v_writelane_b32 v42, s98, {(h - h0) & 63}")
            A.e("s_memtime s[96:97]")
        A.e("s_barrier")
        if cfg.get("fine"):
            A.e("s_memtime s[98:99]")
        state["pub"] = h

    flush((-1, 99))
    barrier(h0 - 1)
    stamp(A, 1, cfg)
    fill(100, (h0, -1))
    inited = set()
    CAP = cfg.get("cap", 2)
    for n_, (h, i, (a, t, p)) in enumerate(seq):
        if i == 0:
            A.block()
            if h == hp2 + 1 and main:
                K["xbase"] = base["X"]
            if h == hp2:
                inited = set()
                stamp(A, 2, cfg)
            if h == hd:
                stamp(A, 3, cfg)
        flush((h, i))
        for k in (t, p):
            if k in vals:
                v = vals[k]
                while v["q"]:
                    assert ready(v), (k, h, i)
                    issue_one(v)
        A.ds_need([t, p])
        treg = vals[t]["reg"]
        preg = PC if p == "PC" else vals[p]["reg"]
        A.e(f"{MF} {vr(a, 4)}, {vr(treg, 4)}, {vr(preg, 4)}, {vr(a, 4) if a in inited else 0}")
        inited.add(a)
        state["n"] = n_
        fx = fixes.get((h, i // 4 + 1) if i < 28 else (h + 1, 0)) if h >= hp2 else None
        if fx:
            v = vals[fx[0]]
            while v["q"]:
                assert ready(v)
                issue_one(v)
            A.ds_need([fx[0]])
            A.e(fx[1][i & 3])
        if i == BA:
            barrier(h)
        ce = main and (K["aend"] <= h < K["drA"] or hp2 <= h < K["drB"])
        fill((cfg.get("cape", 2) if ce else CAP if h < H - 1 else cfg.get("capl", 3)) - (1 if fx else 0), (h, i))
    A.block()
    flush((10 ** 6, 0))
    for x in extras:
        for it in x["items"]:
            emit_item(it)
    if h1 < H:
        return A
    stamp(A, 5, cfg)
    A.e(f"s_mov_b32 s{S_TO}, 0x40000")
    for S in range(2):
        if S == 1:
            stamp(A, 6, cfg)
        for rb2 in range(2):
            if (S, rb2) == cfg.get("rcvB", (1, 0)):
                if cfg.get("rslp"):
                    A.e(f"s_sleep {cfg['rslp']}")
                for r_ in range(2):
                    for d in range(3):
                        A.vm_issue(rcv(1, r_, d), ("RV", 1, r_))
            A.vm_need([("RV", S, rb2)])
            nm = f"{S}{rb2}"
            A.label(f"L_rv_{nm}")
            w = [rvr(S, rb2, d) + i for d in range(3) for i in range(4)]
            A.e(f"v_max3_u32 v2, v{w[0]}, v{w[1]}, v{w[2]}")
            A.e(f"v_max3_u32 v3, v{w[3]}, v{w[4]}, v{w[5]}")
            A.e(f"v_max3_u32 v2, v2, v{w[6]}, v{w[7]}")
            A.e(f"v_max3_u32 v3, v3, v{w[8]}, v{w[9]}")
            A.e(f"v_max3_u32 v2, v2, v{w[10]}, v{w[11]}")
            A.e(f"v_max_u32 v2, v2, v3")
            A.e(f"v_cmp_eq_u32 vcc, -1, v2")
            A.e("s_nop 4")
            A.e(f"s_cbranch_vccnz L_rr_{nm}")
            A.label(f"L_rk_{nm}")
            again = [rcv(S, rb2, d) for d in range(3)] + ([rcv(S, 1, d) for d in range(3)] if rb2 == 0 else [])
            A.ool["rv" + nm] = [f"L_rr_{nm}:", f"    s_sub_u32 s{S_TO}, s{S_TO}, 1", f"    s_cbranch_scc1 L_rk_{nm}"] + \
                [f"    {t}" for t in again] + ["    s_waitcnt vmcnt(0)", f"    s_branch L_rv_{nm}"]
            k = acc(S, rb2, 0)
            for d in range(3):
                for i in range(8):
                    A.e(f"v_dot2c_f32_bf16 v{k + i}, s{sHI if i & 1 else sLO}, v{rvr(S, rb2, d) + (i >> 1)}")
            for i in range(4):
                A.e(f"v_cvt_pk_bf16_f32 v{k + i}, v{k + 2 * i}, v{k + 2 * i + 1}")
            A.e(f"v_permlane16_swap_b32 v{k}, v{k + 2}")
            A.e(f"v_permlane16_swap_b32 v{k + 1}, v{k + 3}")
            A.vm_issue(f"buffer_store_dwordx4 {vr(k, 4)}, v{VO[S][rb2]}, {sr(S_O, 4)}, 0 offen", "O")
    return A


XA, XB, VW1, VW2, VC = [8, 9, 10, 11], [12, 13, 14, 15], [16, 17, 18, 19], [20, 21, 22, 23], [24, 25, 26, 27]
VHA, VHB, VWR = 28, 29, [30, 31, 32]
VCF, VCL = 33, 34
VFA, VFL, VSA, VSD, VFO, VONE = 49, 50, 51, 52, 56, 57
CT = 58
VAT = [74, 75, 76, 77]
VCI = [84, 85, 86, 87]
sQD = 54
SB = 80
VP1, VP2, VQ = 35, 36, 37
sPL, sMK, sBA, sBB, sSC = 56, 57, 58, 59, 53
sPW, sKA, sKB, sKW, sW, sHA, sHB, sW2, sD, sDC, sONE, sFLG, sK3 = 40, 41, 42, 43, 44, 45, 46, 47, 48, 49, 50, 51, 52


def producer(cfg, HS, K, h0, h1, fused):
    A = St()
    main = h0 == 0
    NB = cfg.get("nb", 6)
    sc = " sc1" if fused else ""
    FR = cfg.get("fr", 0)
    H = K["H"]
    UT = K["UT"]
    if not main:
        K = dict(K)
        K["pAT"] = max(K["pAT"], h0)
        K["scr"] = cfg.get("scr2", 36)
    UN = []
    nst = 0
    for h in range(h0, h1):
        e = HS[h]
        if e["ld"]:
            typ = "AT" if e["D"] else ("W1" if e["ph"] == 1 else "W2")
            UN.append(dict(h=h, i=e["d"], typ=typ, minb=K["pAT"] if e["D"] else -99, e=e, st=None, dl=h - 2))
        if e["D"]:
            if e["ldr"]:
                UN.append(dict(h=h, i=e["r"], typ="C", minb=-99, e=e, st=None, dl=h - 2))
        elif not (main and e["own"]):
            typ = ("X" if e["ph"] == 1 else "H") + "AB"[e["S"]]
            minb = -99
            st = None
            if fused and typ[0] != "X":
                own = typ != "AT" and e["j"] < 2
                minb = {"HA": K["drA" if own else "pA"] if main else -99, "HB": K["drB" if own else "pB"] if main else -99, "AT": K["pAT"]}[typ]
                if cfg.get("stage"):
                    st = h % NB
            if cfg.get("allst") and typ[0] in cfg["allst"]:
                st = nst % NB
                nst += 1
            UN.append(dict(h=h, i=e["r"], typ=typ, minb=minb, e=e, st=st, dl=h - 2))
    nxt = {}
    for u in UN:
        if not u["e"]["D"]:
            j = u["e"]["j"]
            u["jmp"] = (j - nxt.get(u["typ"], 2 if (main and u["typ"][0] == "H" and cfg.get("ownl")) else 0)) % (16 if u["e"]["ph"] == 1 else 14)
            nxt[u["typ"]] = j + 1
    A.e(f"s_sub_u32 s{sPW}, s{S_WAVE}, 4")
    A.e(f"s_lshl_b32 s{sD}, s{sPW}, 12")
    A.e(f"v_lshrrev_b32 v3, 4, v{VL}")
    A.e(f"v_and_b32 v2, 15, v{VL}")
    A.e(f"v_lshlrev_b32 v4, 1, v3")
    A.e(f"v_xor_b32 v2, v2, v4")
    A.e(f"v_lshlrev_b32 v2, 4, v2")

    def wrap14(s):
        return [f"s_add_u32 s{s}, s{s}, {U}", f"s_cmp_eq_u32 s{s}, {14 * U}", f"s_cselect_b32 s{s}, 0, s{s}"]

    def jmp16(s, n):
        return [f"s_add_u32 s{s}, s{s}, {n * 128}", f"s_and_b32 s{s}, s{s}, 2047"] if n else []

    def jmp14(s, n):
        return [f"s_add_u32 s{s}, s{s}, {n * U}", f"s_sub_u32 s{sBB}, s{s}, {14 * U}", f"s_cselect_b32 s{s}, s{s}, s{sBB}"] if n else []

    def pollF(r):
        return f"buffer_load_dword v{r}, v{VP1}, {sr(S_WS, 4)}, s{sPL} offen sc1"

    def tile_check(sp, o):
        sb = sBA
        return [f"s_lshr_b32 s{sb}, s{sp}, 15", f"s_add_u32 s{sb}, s{sb}, {o}", f"s_bitcmp1_b32 s{sMK}, s{sb}", "s_cbranch_scc1 L_tk@", f"s_mov_b32 s{S_TO}, 0x40000", "L_tl@:", pollF(VQ + 1), "s_waitcnt vmcnt(0)",
                f"v_cmp_ne_u32 vcc, 0, v{VQ + 1}", f"s_or_b32 s{sMK}, s{sMK}, vcc_lo", f"s_bitcmp1_b32 s{sMK}, s{sb}", "s_cbranch_scc1 L_tj@",
                f"s_sub_u32 s{S_TO}, s{S_TO}, 1", "s_cbranch_scc0 L_tl@", "L_tj@:", "L_tk@:"]

    def init_w1():
        A.e(f"s_mul_i32 s{S_T0}, s{S_Q}, 7")
        A.e(f"s_add_u32 s{S_T0}, s{S_T0}, s{S_NT}")
        A.e(f"s_lshl_b32 s{S_T0}, s{S_T0}, 8")
        A.e(f"s_mul_i32 s{S_T1}, s{sPW}, {16 * 7168}")
        A.e(f"s_add_u32 s{S_T0}, s{S_T0}, s{S_T1}")
        A.e(f"s_sub_u32 s{S_T0}, s{S_T0}, 256")
        A.e(f"v_mul_u32_u24 v4, 7168, v3")
        A.e(f"v_add3_u32 v{VW1[0]}, v4, v2, s{S_T0}")
        A.e(f"v_add_u32 v{VW1[1]}, {4 * 7168 - 1024}, v{VW1[0]}")
        A.e(f"v_xor_b32 v4, 128, v{VW1[0]}")
        A.e(f"v_add_u32 v{VW1[2]}, {8 * 7168 - 2048}, v4")
        A.e(f"v_add_u32 v{VW1[3]}, {12 * 7168 - 3072}, v4")
        rot = cfg.get("rot", 0)
        A.e(f"s_mul_i32 s{sKW}, s{S_Q}, {rot * 128}")
        A.e(f"s_mul_i32 s{S_T0}, s{S_PAR}, {cfg.get('rotp', 0) * 128}")
        A.e(f"s_add_u32 s{sKW}, s{sKW}, s{S_T0}")
        A.e(f"s_and_b32 s{sKW}, s{sKW}, 2047")
        A.e(f"s_mov_b32 s{sKA}, s{sKW}")
        A.e(f"s_mov_b32 s{sKB}, s{sKW}")

    def chunk(vd):
        A.e(f"v_and_b32 v{vd}, 7, v{VL}")
        A.e(f"v_lshrrev_b32 v6, 4, v{VL}")
        A.e(f"v_xor_b32 v{vd}, v{vd}, v6")
        A.e(f"v_lshlrev_b32 v{vd}, 4, v{vd}")

    def init_xa():
        A.e(f"v_lshrrev_b32 v4, 3, v{VL}")
        A.e(f"s_lshl_b32 s{S_T0}, s{sPW}, 5")
        A.e(f"v_add_u32 v4, s{S_T0}, v4")
        t_of(A, 4, 4, S_T0)
        chunk(5)
        A.e(f"v_lshl_add_u32 v{XA[0]}, v4, 11, v5")
        A.e(f"v_xor_b32 v6, 64, v{XA[0]}")
        A.e(f"v_add_u32 v{XA[1]}, {16 * 2048 - 1024}, v6")
        A.e(f"v_add_u32 v{XA[2]}, {32 * 2048 - 2048}, v{XA[0]}")
        A.e(f"v_add_u32 v{XA[3]}, {48 * 2048 - 3072}, v6")

    def init_xb():
        mirror_t(A, CT, 4, 6)
        A.e(f"v_lshl_add_u32 v{XB[0]}, v{CT}, 11, v5")
        A.e(f"v_sub_u32 v4, 2048, v4")
        A.e(f"v_lshl_add_u32 v4, v4, 11, v5")
        A.e(f"v_xor_b32 v6, 64, v4")
        A.e(f"v_subrev_u32 v{XB[1]}, {16 * 2048 + 1024}, v6")
        A.e(f"v_subrev_u32 v{XB[2]}, {32 * 2048 + 2048}, v4")
        A.e(f"v_subrev_u32 v{XB[3]}, {48 * 2048 + 3072}, v6")

    def init_p1_rest():
        A.e(f"v_and_b32 v{VFA}, 31, v{VL}")
        A.e(f"v_lshlrev_b32 v{VFA}, 2, v{VFA}")
        A.e(f"s_lshr_b32 s{S_T0}, s{sPW}, 1")
        A.e(f"s_lshl_b32 s{S_T0}, s{S_T0}, 5")
        A.e(f"s_and_b32 s{S_T1}, s{sPW}, 1")
        A.e(f"s_lshl3_add_u32 s{S_T0}, s{S_T1}, s{S_T0}")
        A.e(f"v_lshrrev_b32 v4, 3, v{VL}")
        A.e(f"v_add_u32 v4, s{S_T0}, v4")
        A.e(f"v_and_b32 v5, 1, v{VL}")
        A.e(f"v_lshl_add_u32 v4, v5, 4, v4")
        A.e(f"v_bfe_u32 v5, v{VL}, 1, 1")
        A.e(f"v_lshl_add_u32 v4, v5, 6, v4")
        t_of(A, 4, 4, S_T0)
        mirror_t(A, 5, 4, 6)
        A.e(f"v_and_b32 v6, 4, v{VL}")
        A.e(f"v_cmp_ne_u32 vcc, 0, v6")
        A.e(f"v_cndmask_b32 v4, v4, v5, vcc")
        A.e(f"v_lshlrev_b32 v{VSA}, 3, v4")

    def init_fl():
        A.e(f"s_lshl_b32 s{sFLG}, s{S_G}, 7")
        A.e(f"s_lshl_b32 s{S_T0}, s{S_NT}, 2")
        A.e(f"s_add_u32 s{sFLG}, s{sFLG}, s{S_T0}")
        A.e(f"s_add_u32 s{sFLG}, s{sFLG}, {WS_FLAG}")
        A.e(f"v_add_u32 v4, s{sPW}, v{VL}")
        A.e(f"v_min_u32 v4, 1, v4")
        A.e(f"v_lshlrev_b32 v{VFO}, 30, v4")
        A.e(f"v_mov_b32 v{VONE}, 1")

    def init_p2():
        A.e(f"v_lshrrev_b32 v3, 4, v{VL}")
        A.e(f"v_and_b32 v2, 15, v{VL}")
        A.e(f"v_lshlrev_b32 v4, 1, v3")
        A.e(f"v_xor_b32 v2, v2, v4")
        A.e(f"v_lshlrev_b32 v2, 4, v2")
        A.e(f"s_lshl_b32 s{S_T0}, s{S_QB}, 7")
        A.e(f"v_xor_b32 v2, s{S_T0}, v2")
        A.e(f"s_mul_i32 s{S_T0}, s{S_Q}, {14 * 64}")
        A.e(f"s_lshr_b32 s{S_T1}, s{sPW}, 1")
        A.e(f"s_lshl_b32 s{S_T1}, s{S_T1}, 5")
        A.e(f"s_add_u32 s{S_T0}, s{S_T0}, s{S_T1}")
        A.e(f"s_and_b32 s{S_T1}, s{sPW}, 1")
        A.e(f"s_lshl_b32 s{S_T1}, s{S_T1}, 3")
        A.e(f"s_add_u32 s{S_T0}, s{S_T0}, s{S_T1}")
        A.e(f"s_lshl_b32 s{S_T0}, s{S_T0}, 11")
        A.e(f"s_lshl_b32 s{S_T1}, s{S_NT}, 8")
        A.e(f"s_add_u32 s{S_T0}, s{S_T0}, s{S_T1}")
        A.e(f"v_lshl_add_u32 v4, v3, 11, v2")
        A.e(f"v_add_u32 v{VW2[0]}, s{S_T0}, v4")
        A.e(f"v_add_u32 v{VW2[1]}, {16 * 2048 - 1024}, v{VW2[0]}")
        A.e(f"v_xor_b32 v4, 128, v{VW2[0]}")
        A.e(f"v_add_u32 v{VW2[2]}, {4 * 2048 - 2048}, v4")
        A.e(f"v_add_u32 v{VW2[3]}, {20 * 2048 - 3072}, v4")
        A.e(f"s_lshl_b32 s{S_T0}, s{S_PAR}, 2")
        A.e(f"s_add_u32 s{S_T0}, s{S_T0}, s{S_MLO}")
        A.e(f"s_mul_i32 s{S_T0}, s{S_T0}, 112")
        A.e(f"s_mul_i32 s{S_T1}, s{S_Q}, 14")
        A.e(f"s_add_u32 s{S_T0}, s{S_T0}, s{S_T1}")
        A.e(f"s_lshl_b32 s{S_T0}, s{S_T0}, 14")
        A.e(f"v_lshl_add_u32 v{VWR[0]}, v{VL}, 4, s{sD}")
        A.e(f"v_add_u32 v{VWR[1]}, {3 * U}, v{VWR[0]}")
        A.e(f"v_add_u32 v{VWR[2]}, {6 * U}, v{VWR[0]}")
        A.e(f"v_add_u32 v{VHA}, s{S_T0}, v{VWR[0]}")
        A.e(f"v_add_u32 v{VHB}, {56 * U}, v{VHA}")
        A.e(f"s_max_u32 s{S_T0}, s{S_NT}, 1")
        A.e(f"s_sub_u32 s{S_T0}, s{S_T0}, 1")
        A.e(f"s_lshl_b32 s{sHA}, s{S_T0}, 15")
        A.e(f"s_mov_b32 s{sW2}, s{sHA}")
        if main and cfg.get("ownl"):
            for t in wrap14(sHA) + wrap14(sHA):
                A.e(t)
        A.e(f"s_mov_b32 s{sMK}, 0")
        A.e(f"s_mov_b32 s{sHB}, s{sHA}")
        A.e(f"s_lshl_b32 s{sPL}, s{S_G}, 7")
        A.e(f"s_add_u32 s{sPL}, s{sPL}, {WS_FLAG}")
        A.e(f"v_and_b32 v{VP1}, 15, v{VL}")
        A.e(f"v_lshlrev_b32 v{VP1}, 2, v{VP1}")
        A.e(f"s_mul_i32 s{sQD}, s{S_MLO}, {cfg.get('qdm', 1)}")
        A.e(f"s_add_u32 s{sQD}, s{sQD}, s{S_Q}")
        A.e(f"s_and_b32 s{sQD}, s{sQD}, 3")
        A.e(f"s_lshl_b32 s{S_T0}, s{sQD}, 3")
        A.e(f"s_and_b32 s{S_T1}, s{S_NT}, {cfg.get('qdn', 1)}")
        A.e(f"s_lshl1_add_u32 s{sQD}, s{sQD}, s{S_T1}")
        A.e(f"s_lshl_b32 s{sQD}, s{sQD}, 7")
        A.e(f"v_add_u32 v{VP2}, s{S_T0}, v{VL}")
        A.e(f"v_cmp_gt_u32 vcc, 8, v{VL}")
        A.e(f"v_cndmask_b32 v{VP2}, 0, v{VP2}, vcc")
        A.e(f"v_lshlrev_b32 v{VP2}, 7, v{VP2}")
        A.e(f"v_add_u32 v{VP2}, {WS_FLAG}, v{VP2}")

    def init_dft():
        A.e(f"s_lshl_b32 s{S_T0}, s{sPW}, 5")
        A.e(f"v_lshrrev_b32 v4, 3, v{VL}")
        A.e(f"v_add_u32 v4, s{S_T0}, v4")
        t_of(A, 4, 4, S_T0)
        chunk(5)
        A.e(f"v_lshl_add_u32 v{VC[0]}, v4, 12, v5")
        A.e(f"v_xor_b32 v6, 64, v{VC[0]}")
        A.e(f"v_add_u32 v{VC[1]}, {16 * 4096 - 1024}, v6")
        A.e(f"v_add_u32 v{VC[2]}, {32 * 4096 - 2048}, v{VC[0]}")
        A.e(f"v_add_u32 v{VC[3]}, {48 * 4096 - 3072}, v6")
        mirror_t(A, CT, 4, 6)
        A.e(f"v_lshl_add_u32 v{VCI[0]}, v{CT}, 12, v5")
        A.e(f"v_sub_u32 v4, 2048, v4")
        A.e(f"v_lshl_add_u32 v4, v4, 12, v5")
        A.e(f"v_xor_b32 v6, 64, v4")
        A.e(f"v_subrev_u32 v{VCI[1]}, {16 * 4096 + 1024}, v6")
        A.e(f"v_subrev_u32 v{VCI[2]}, {32 * 4096 + 2048}, v4")
        A.e(f"v_subrev_u32 v{VCI[3]}, {48 * 4096 + 3072}, v6")
        A.e(f"s_cmp_ge_u32 s{S_NT}, 4")
        A.e(f"s_cselect_b64 vcc, -1, 0")
        for i in range(4):
            A.e(f"v_cndmask_b32 v{VCI[i]}, v{VCI[i]}, v{VC[i]}, vcc")
        A.e(f"s_lshl_b32 s{S_T0}, s{sPW}, 5")
        A.e(f"s_lshl_b32 s{S_T2}, s{S_QB}, 6")
        A.e(f"s_xor_b32 s{S_T0}, s{S_T0}, s{S_T2}")
        A.e(f"s_lshl_b32 s{S_T1}, s{S_NT}, 7")
        A.e(f"s_add_u32 s{S_T1}, s{S_T0}, s{S_T1}")
        A.e(f"s_mov_b32 s{S_T0}, 0")
        A.e(f"s_mul_i32 s{S_T2}, s{S_PAR}, {AT_TP}")
        A.e(f"s_add_u32 s{S_T0}, s{S_T0}, s{S_T2}")
        A.e(f"s_add_u32 s{S_T0}, s{S_T0}, {WS_AT}")
        A.e(f"s_mov_b32 s{S_T3}, {AT_PE}")
        A.e(f"v_lshrrev_b32 v3, 4, v{VL}")
        A.e(f"v_lshl_add_u32 v3, v3, 9, s{S_T0}")
        for c2 in range(2):
            A.e(f"v_and_b32 v4, 15, v{VL}")
            A.e(f"v_add_u32 v4, s{S_T1}, v4")
            if c2:
                A.e(f"v_add_u32 v4, 16, v4")
            L = []
            mirror_e(L, 4, 5)
            for t in L:
                A.e(t)
            A.e(f"v_add_u32 v4, v3, v4")
            if c2:
                A.e(f"v_subrev_u32 v4, 2048, v4")
            A.e(f"v_mov_b32 v{VAT[2 * c2]}, v4")
            A.e(f"v_add_u32 v{VAT[2 * c2 + 1]}, 1024, v4")
        assert WS_BT - WS_AT == 1 << 21

    ax, aw1, aw2, ac = cfg.get("auxX", ""), cfg.get("auxW1", ""), cfg.get("auxW2", ""), cfg.get("auxC", "")

    def mkpieces(u):
        typ = u["typ"]
        pre, post = [], []
        aux = ""
        if typ[0] == "X":
            V, s = (XA, sKA) if typ == "XA" else (XB, sKB)
            srd_, aux = S_X, ax
            pre += jmp16(s, u["jmp"])
            post = [f"s_add_u32 s{s}, s{s}, 128", f"s_and_b32 s{s}, s{s}, 2047"]
        elif typ[0] == "H":
            V, s = ([VHA] * 4, sHA) if typ == "HA" else ([VHB] * 4, sHB)
            srd_, aux = S_WS, sc
            post = wrap14(s)
            pre += jmp14(s, u["jmp"])
            if (u["e"]["j"] % 2 == 0 or u["jmp"]) and not (main and u["e"]["j"] < 2 and (typ == "HA" or cfg.get("ownchk", 0) == 0)):
                pre += tile_check(s, 1 if typ == "HA" else 9)
        elif typ == "AT":
            V, s, srd_, aux = VAT, sK3, S_WS, sc
            pre = [f"s_lshl_b32 s{sK3}, s{sQD}, 5", f"s_xor_b32 s{sK3}, s{sK3}, {int(u['e']['j'][1]) * 4096 + ((u['e']['j'][0] == 'I') << 21)}"]
        elif typ == "W1":
            pre += jmp16(sKW, u["jmp"])
            pre.append(f"s_mul_i32 s{sW}, s{sKW}, {64 * 7168 // 128}")
            V, srd_, s, aux = VW1, S_W1, sW, aw1
            post = [f"s_add_u32 s{sKW}, s{sKW}, 128", f"s_and_b32 s{sKW}, s{sKW}, 2047"]
        elif typ == "W2":
            pre += jmp14(sW2, u["jmp"])
            pre.append(f"s_lshl_b32 s{sW}, s{sW2}, 3")
            V, srd_, s, aux = VW2, S_W2, sW, aw2
            post = wrap14(sW2)
        else:
            V, srd_, s, aux = (VC, S_CR, sDC, ac) if u["e"]["j"][0] == "R" else (VCI, S_CI, sDC, ac)
            pre = [f"s_xor_b32 s{sDC}, s{sQD}, {int(u['e']['j'][1]) * 128}"]
        if u["st"] is None:
            vm = [f"buffer_load_dwordx4 v{V[p]}, {sr(srd_, 4)}, s{s} offen offset:{p * 1024}{aux} lds" for p in range(4)]
        else:
            b = SB + 16 * u["st"]
            vm = [f"buffer_load_dwordx4 {vr(b + 4 * p, 4)}, v{V[p]}, {sr(srd_, 4)}, s{s} offen offset:{p * 1024} sc1" for p in range(4)]
        return [(pre if p == 0 else [], vm[p], post if p == 3 else []) for p in range(4)]

    byI = {u["i"]: u for u in UN}
    Q = list(UN)
    m0 = [None]
    lastst = {}

    def can(u, b):
        if "pcs" in u:
            return True
        if u["minb"] > b:
            return False
        if u["st"] is not None:
            p = lastst.get(u["st"])
            return p is None or p["h"] - 2 < b
        fb = UT[u["i"]]["fb"]
        return fb < h0 or fb <= b

    def next_piece(b, only=None):
        seen = set()
        u = None
        for c in Q[:12]:
            k = "W" if c["typ"] in ("W1", "W2") else c["typ"]
            if k not in seen and (only is None or c["typ"] == only) and can(c, b):
                u = c
                break
            seen.add(k)
        if u is None:
            return False
        if "pcs" not in u:
            u["pcs"] = mkpieces(u)
            if u["st"] is not None:
                lastst[u["st"]] = u
        pre, vm, post = u["pcs"].pop(0)
        if u["st"] is None and m0[0] != UT[u["i"]]["slot"]:
            m0[0] = UT[u["i"]]["slot"]
            A.e(f"s_add_u32 m0, s{sD}, {m0[0] * U}")
        for t in pre:
            if t.endswith(":"):
                A.label(t[:-1])
            else:
                A.e(t)
        if not (cfg.get("novm") and u["typ"][0] in cfg["novm"]):
            A.vm_issue(vm, u["i"])
        for t in post:
            A.e(t)
        if not u["pcs"]:
            Q.remove(u)
            u["iss"] = True
        return True

    def issue_some(b, lim, only=None):
        while lim > 0 and next_piece(b, only):
            lim -= 1

    def due(b):
        return sum(len(u.get("pcs", [0] * 4)) for u in Q if u["dl"] <= b)

    def pub_w(hh):
        F = []
        for u in UN:
            if u["h"] == hh and u["st"] is not None:
                b = SB + 16 * u["st"]
                sl = UT[u["i"]]["slot"]

                def need(u=u):
                    assert u.get("iss"), ("not issued", u)
                    A.vm_need([u["i"]])
                F.append((0, need))
                for p in range(4):
                    t = f"ds_write_b128 v{VWR[sl // 3]}, {vr(b + 4 * p, 4)} offset:{(sl % 3) * U + p * 1024}"
                    F.append((26, lambda t=t: A.ds_issue(t, "w")))
        return F

    def pub_d(b):
        for u in UN:
            if u["dl"] <= b and u["st"] is None:
                assert u.get("iss"), ("not issued", u)
                A.vm_need([u["i"]])

    pollS = f"buffer_load_dword v{VFL}, v{VFA}, {sr(S_DBG, 4)}, 0 offen sc1"
    bC = K["cs"] - 1
    bS = bC - cfg.get("stat_lead", 6)

    def flag(off):
        A.vm_issue(f"buffer_store_dword v{VONE}, v{VFO}, {sr(S_WS, 4)}, s{sFLG} offen offset:{off} sc1", "F")

    spf = {}
    if main and h1 == H and cfg.get("spf"):
        b0, per = cfg["spf"]
        sPB, sPT, sPO = 88, 89, 90
        spf[b0 - 1] = [f"s_lshl2_add_u32 s{sPB}, s{S_MLO}, s{sPW}", f"s_lshl1_add_u32 s{sPB}, s{sPB}, s{S_PAR}", f"s_lshl_b32 s{sPB}, s{sPB}, 13",
                       f"s_mul_i32 s{S_T0}, s{S_Q}, {896 * 8}", f"s_add_u32 s{S_T0}, s{S_T0}, s{S_NT}", f"s_lshl_b32 s{S_T0}, s{S_T0}, 8",
                       f"s_add_u32 s{sPB}, s{sPB}, s{S_T0}", f"s_sub_u32 s{sPT}, s{S_NT}, 1", f"s_lshl_b32 s{sPT}, s{sPT}, 18"]
        PFL = []
        for k in range(56):
            L = []
            if k % 8 == 0:
                L += [f"s_add_u32 s{sPO}, s{sPB}, s{sPT}", f"s_add_u32 s{sPT}, s{sPT}, {1 << 18}", f"s_cmp_eq_u32 s{sPT}, {7 << 18}", f"s_cselect_b32 s{sPT}, 0, s{sPT}"]
            L.append(f"s_buffer_load_dwordx2 s[92:93], {sr(S_W2, 4)}, s{sPO} offset:{(k % 8 >> 1) * 2048 + (k & 1) * 128 + 60}")
            PFL.append(L)
        if cfg.get("spc") is not None:
            spf[b0 - 1] += [f"s_lshl2_add_u32 s{S_T0}, s{S_NT}, s{sPW}", f"s_lshl_b32 s{S_T1}, s{S_MLO}, 7", f"s_add_u32 s{S_T0}, s{S_T0}, s{S_T1}",
                            f"s_sub_u32 s{S_T0}, s{S_T0}, 4", f"s_lshl1_add_u32 s{S_T0}, s{S_T0}, s{S_PAR}", f"s_lshl_b32 s{S_T0}, s{S_T0}, 12",
                            f"s_and_b32 s{S_T1}, s{sQD}, 0x300", f"s_add_u32 s91, s{S_T0}, s{S_T1}", f"s_sub_u32 s94, s{S_T1}, s{S_T0}", f"s_add_u32 s94, s94, {(2048 - 224) * 4096}"]
            CL = [[f"s_buffer_load_dwordx2 s[92:93], {sr(sd, 4)}, s{sb} offset:{i * 56 * 4096 + ln * 128 + 60}"]
                  for grp in (((S_CR, 91),), ((S_CI, 91), (S_CI, 94))) for ln in range(2) for sd, sb in grp for i in range(5)]
            PFL = PFL[:cfg["spc"]] + CL + PFL[cfg["spc"]:]
        for k, L in enumerate(PFL):
            spf.setdefault(b0 + int(k / per), []).extend(L)
    ramp = cfg.get("ramp", [12, 12, 12])
    lim = cfg.get("lim", 8)
    bgp = cfg.get("bgp", [K["pA"] - 1, K["pA"] + 1, K["pA"] + 3, K["pB"] - 1, K["pB"] + 1, K["pB"] + 3])
    polls = {
             "pAT": (f"buffer_load_dword v{VQ + 3}, v{VP2}, {sr(S_WS, 4)}, 0 offen offset:96 sc1", VQ + 3)}
    if main:
        init_w1()
        issue_some(-99, 4)
        init_xa()
        issue_some(-99, 4)
        init_xb()
        issue_some(-99, ramp[0] - 8)
        init_p1_rest()
        init_fl()
        if h1 > K["p2"]:
            init_p2()
            init_dft()
    else:
        init_p2()
        init_fl()
        lead = cfg.get("lead2", 1)
        if fused:
            A.e(f"v_and_b32 v{VFA}, 31, v{VL}")
            A.e(f"v_lshlrev_b32 v{VFA}, 2, v{VFA}")
            A.vm_issue(pollS, "PS")
            issue_some(-99, 4 * lead, "W2")
            init_dft()
            issue_some(h0 - 3, ramp[0])
        else:
            issue_some(-99, ramp[0])
            init_dft()
    stamp(A, 1, cfg)
    for c_, fn in pub_w(h0):
        fn()
    pub_d(h0 - 2)
    if A.ds:
        A.ds_drain()
    last = h1 - 1
    for b in range(h0 - 1, last + 1):
        A.block()
        A.e("s_barrier")
        if cfg.get("finep"):
            A.e("s_memtime s[96:97]")
        if fused:
            if main and b == K["drA"]:
                flag(0)
                flag(64)
            if main and b == K["drB"]:
                flag(32)
            if not main and b == K["scr"] + 14:
                flag(64)
            for nm, (ld_, rg) in polls.items():
                if b == K[nm]:
                    check_poll(A, nm, ld_, rg, nm)
            if b - 1 in bgp and b - 1 >= h0 - 1:
                A.vm_need(["BG"])
                A.e(f"v_cmp_ne_u32 vcc, 0, v{VQ}")
                A.e(f"s_or_b32 s{sMK}, s{sMK}, vcc_lo")
            if b in bgp:
                A.vm_issue(pollF(VQ), "BG")
            for nm, (ld_, rg) in polls.items():
                if b == K[nm] - 1 and b != h0 - 1:
                    A.vm_issue(ld_, nm)
        F = pub_w(b + 2)
        k = b - (h0 - 1) + 1
        lm = lim
        du = due(b)
        nv = max(ramp[k] if k < len(ramp) else lm, du) - du
        issue_some(b, du)
        gap = cfg.get("gap", 60)
        done = 0
        acc_ = 0
        for c_, fn in F:
            while done < nv and acc_ >= done * gap:
                next_piece(b)
                done += 1
            fn()
            acc_ += c_
        issue_some(b, nv - done)
        for t in spf.get(b, []):
            A.e(t)
        if cfg.get("finep"):
            A.e("s_memtime s[98:99]")
        if fused and not main:
            if b == h0 - 1:
                assert K["pAT"] - 1 >= b
                check_poll(A, "S", pollS, VFL, "PS")
        if main:
            if b == bS:
                A.vm_issue(pollS, "PS")
            if b == bS + 3:
                check_poll(A, "S", pollS, VFL, "PS")
                A.e(f"s_mov_b32 s{S_T0}, {WS_ST}")
                A.e(f"s_lshl_b32 s{S_T1}, s{sPW}, 8")
                A.e(f"s_add_u32 m0, s{S_T1}, {L_PM}")
                m0[0] = None
                A.vm_issue(f"buffer_load_dword v{VSA}, {sr(S_WS, 4)}, s{S_T0} offen sc1 lds", "SD")
                A.e(f"s_mov_b32 s{S_T0}, {WS_ST + 4}")
                A.e(f"s_add_u32 m0, s{S_T1}, {L_PM + 1024}")
                A.vm_issue(f"buffer_load_dword v{VSA}, {sr(S_WS, 4)}, s{S_T0} offen sc1 lds", "SD")
            if b == bC:
                A.vm_need(["SD"])
        if fused:
            for nm, (ld_, rg) in polls.items():
                if b == K[nm] - 1 and b == h0 - 1:
                    A.vm_issue(ld_, nm)
            if b >= K["scr"] and (b - K["scr"]) % 2 == 0 and b < K["scr"] + 12:
                k_ = (b - K["scr"]) // 2
                if k_ == 0:
                    A.e(f"s_mul_i32 s{sSC}, s2, {cfg.get('pst', 3 * U)}")
                    A.e(f"s_add_u32 s{sSC}, s{sSC}, {WS_PART + cfg.get('scro', 0)}")
                    for i_ in range(4):
                        A.e(f"v_mov_b32 v{SB + i_}, -1")
                for i_ in range(2):
                    A.vm_issue(f"buffer_store_dwordx4 {vr(SB, 4)}, v{VWR[0]}, {sr(S_WS, 4)}, s{sSC} offen offset:{(k_ & 1) * 2048 + i_ * 1024}{cfg.get('scrx', ' sc1')}", "SCR")
                if k_ & 1:
                    A.e(f"s_add_u32 s{sSC}, s{sSC}, {U}")
            if b == (K["drA"] - 1 if main else K["scr"] + 13):
                A.vm_need(["SCR"])
        pub_d(b)
        if A.ds:
            A.ds_drain()
        if cfg.get("finep"):
            A.e("s_memtime s[100:101]")
            A.e("s_waitcnt lgkmcnt(0)")
            for i_ in range(3 if (b + 1 - h0 < 64 or cfg["fine"] == 2) else 0):
                A.e(f"v_writelane_b32 v{253 + i_}, s{96 + 2 * i_}, {(b + 1 - h0) & 63}")
        if b == K["dft"]:
            stamp(A, 3, cfg)
    A.block()
    assert not Q
    return A


def common(A, cfg, end):
    A.e("s_cmp_ge_u32 s2, 256")
    A.e(f"s_cbranch_scc1 {end}")
    A.e("s_load_dwordx2 s[4:5], s[0:1], 0")
    A.e("s_load_dwordx4 s[88:91], s[0:1], 48")
    A.e("s_load_dwordx2 s[6:7], s[0:1], 80")
    A.e("s_load_dwordx4 s[8:11], s[0:1], 8")
    A.e("s_load_dwordx4 s[12:15], s[0:1], 24")
    A.e("s_load_dwordx4 s[92:95], s[0:1], 64")
    A.e("v_lshrrev_b32 v1, 6, v0")
    A.e(f"s_and_b32 s{S_Q}, s2, 3")
    A.e(f"v_readfirstlane_b32 s{S_WAVE}, v1")
    A.e(f"s_bfe_u32 s{S_PAR}, s2, 0x10002")
    A.e("v_and_b32 v1, 63, v0")
    A.e(f"s_bfe_u32 s{S_MLO}, s2, 0x20003")
    A.e(f"s_lshr_b32 s{S_NT}, s2, 5")
    A.e(f"s_and_b32 s{S_G}, s2, 31")
    A.e(f"s_lshr_b32 s{S_QB}, s2, 7")
    A.e(f"s_xor_b32 s{S_QB}, s{S_QB}, s2")
    A.e(f"s_and_b32 s{S_QB}, s{S_QB}, 1")
    if cfg.get("stamps"):
        A.e(f"v_mov_b32 v{STAMP_V}, 0")
    A.e("s_waitcnt lgkmcnt(0)")
    srd(A, S_W1, 88, 1024 * 3584 * 2)
    srd(A, S_X, 4, 2048 * 1024 * 2)
    srd(A, S_WS, 6, WS_BYTES)
    srd(A, S_W2, 90, 1024 * 3584 * 2)
    srd(A, S_DBG, 94, 256)
    srd(A, S_O, 92, 2048 * 1024 * 2)
    srd(A, S_CR, 8, 2048 * 2048 * 2)
    srd(A, S_CI, 10, 2048 * 2048 * 2)
    k1h.stamp(A, 0, enable=cfg.get("stamps"))


def fin(A, cfg, off):
    if cfg.get("stamps"):
        A.e("s_waitcnt vmcnt(0)")
        k1h.stamp(A, 4, enable=True)
        A.e("s_getreg_b32 s61, hwreg(HW_REG_XCC_ID)")
        A.e(f"v_writelane_b32 v{STAMP_V}, s61, 7")
        A.e(f"s_lshl_b32 s60, s2, 3")
        A.e(f"s_add_u32 s60, s60, s{S_WAVE}")
        A.e(f"s_lshl_b32 s60, s60, 8")
        A.e(f"s_add_u32 s60, s60, {WS_DBG + off}")
        A.e("v_and_b32 v1, 63, v0")
        A.e("v_lshlrev_b32 v1, 2, v1")
        A.e(f"buffer_store_dword v{STAMP_V}, v1, {sr(S_WS, 4)}, s60 offen")
        if cfg.get("fine"):
            for i_, r in enumerate((41, 42, 253, 254, 255)):
                A.e(f"s_add_u32 s60, s60, {2 << 20}")
                A.e(f"buffer_store_dword v{r}, v1, {sr(S_WS, 4)}, s60 offen")


def zero_line(A):
    A.e(f"v_and_b32 v2, 0x17, v{VL}")
    A.e(f"v_cmp_eq_u32 vcc, 0, v2")
    A.e(f"v_cndmask_b32 v2, 0, 1, vcc")
    A.e(f"v_lshrrev_b32 v4, 5, v0")
    A.e(f"v_min_u32 v4, 1, v4")
    A.e(f"v_lshlrev_b32 v3, 2, v{VL}")
    A.e(f"v_lshl_add_u32 v3, v4, 30, v3")
    A.e(f"s_lshl_b32 s{S_T0}, s{S_G}, 7")
    A.e(f"s_add_u32 s{S_T0}, s{S_T0}, {WS_FLAG}")
    A.vm_issue(f"buffer_store_dword v2, v3, {sr(S_WS, 4)}, s{S_T0} offen sc1", "Z")


def scrub_s(cfg):
    L = [f"s_mul_i32 s{S_T0}, s2, {cfg.get('pst', 3 * U)}", f"s_lshl_b32 s{S_T1}, s{S_WAVE}, 11", f"s_add_u32 s{S_T0}, s{S_T0}, s{S_T1}",
         f"s_add_u32 s{S_T0}, s{S_T0}, {WS_PART}", f"v_lshlrev_b32 v2, 4, v{VL}"] + [f"v_mov_b32 v{8 + i}, -1" for i in range(4)]
    for d in range(3):
        L += [f"buffer_store_dwordx4 v[8:11], v2, {sr(S_WS, 4)}, s{S_T0} offen offset:{1024 * i} sc1" for i in range(2)] + [f"s_add_u32 s{S_T0}, s{S_T0}, {U}"]
    return L


def at_flag(A):
    A.e("s_waitcnt vmcnt(0) lgkmcnt(0)")
    A.e("s_barrier")
    A.e(f"v_min_u32 v2, 1, v0")
    A.e(f"v_lshlrev_b32 v2, 30, v2")
    A.e(f"v_mov_b32 v3, 1")
    A.e(f"s_lshl_b32 s{S_T0}, s{S_G}, 7")
    A.e(f"s_add_u32 s{S_T0}, s{S_T0}, {WS_FLAG}")
    A.e(f"buffer_store_dword v3, v2, {sr(S_WS, 4)}, s{S_T0} offen offset:96 sc1")


def uniq(L):
    nb, nl, out = {}, {}, []
    for t in L:
        if t.endswith("@"):
            k = t.split()[-1]
            nb[k] = nb.get(k, 0) + 1
            t = t[:-1] + f"_{nb[k]}"
        elif t.endswith("@:"):
            k = t[:-1]
            nl[k] = nl.get(k, 0) + 1
            t = t[:-2] + f"_{nl[k]}:"
        out.append(t)
    return out


def join(name, M, Jn, rl):
    bm, bj = M.blocks(), Jn.blocks()
    k = 0
    while k < min(len(bm), len(bj)) - 1 and bm[len(bm) - 1 - k] == bj[len(bj) - 1 - k]:
        k += 1
    lab = f"L_{name}_join"
    main = roll(bm[:len(bm) - k], name + "a", rl) + [lab + ":"] + roll(bm[len(bm) - k:], name + "b", rl)
    pre = roll(bj[:len(bj) - k], name + "c", rl) + [f"    s_branch {lab}"]
    return main, pre, len(bj) - k


HEADER = """; out = x + Re(DFT_seq(DFT_hid(LN x))) + relu(LN(x) w1) w2      (generated code)
; Symmetries of the constant DFT matrices that are used (C = seq tables, D = hidden tables):
;   Dr[e,1024-d]=Dr[e,d], Di[e,1024-d]=-Di[e,d], D[e,512+-d]=(-1)^e-type mirror, same mirrors in e;
;   Cr[t,2048-s]=Cr[t,s], Ci[t,2048-s]=-Ci[t,s], C[t,1024+-s]=(-1)^t-type mirror, same mirrors in t.
; folded (sums / differences of mirrored samples) before each product."""


def build(cfg):
    import k1s
    fused = cfg.get("fused", True)
    rl = cfg.get("roll", True)
    HS, K = make_sched(cfg)
    A = Asm()
    names = ["pk_kernel"] if fused else ["k1_kernel", "k2_kernel"]
    for nm in names:
        A.raw(f"; @launch kernel={nm} grid=(256,1,1) block=(512,1,1) lds=163840")
    for l in HEADER.split("\n"):
        A.raw(l)
    A.raw('.amdgcn_target "amdgcn-amd-amdhsa--gfx950"')
    A.raw(".text")
    scfg = dict(cfg)
    scfg["zflag"] = False
    scfg["early"] = True
    if fused:
        L0 = pf_w2(cfg, 253, 252)
        scfg["hook"] = L0[:-1] + [f"s_cmp_ge_u32 s{S_WAVE}, 4", "s_cbranch_scc1 L_nopf", L0[-1][1], "L_nopf:"]
    scfg.setdefault("s_store_aux", " sc1")
    H, hp2 = K["H"], K["p2"]
    if fused:
        kernel_begin(A, names[0])
        common(A, cfg, "L_end")
        C, P = consumer(cfg, HS, K, 0, H, True), producer(cfg, HS, K, 0, H, True)
        C2, P2 = consumer(cfg, HS, K, hp2, H, True), producer(cfg, HS, K, hp2, H, True)
        cm, cp, nc = join("c", C, C2, rl)
        pm, pp, np_ = join("p", P, P2, rl)
        print("join after blocks: consumer", nc, "producer", np_, {k: v for k, v in K.items() if k not in ("UT", "LA")}, file=sys.stderr)
        A.e(f"s_cmp_eq_u32 s{S_NT}, 0")
        A.e("s_cbranch_scc1 L_special")
        A.e(f"s_cmp_ge_u32 s{S_WAVE}, 4")
        A.e("s_cbranch_scc1 L_prod")
        A.L += cm
        A.e("s_branch L_fin")
        A.label("L_prod")
        A.L += pm
        A.e("s_branch L_fin")
        A.label("L_special")
        zero_line(A)
        k1s.k1_special(A, scfg)
        at_flag(A)
        if cfg.get("pf3", 1):
            L1 = pf_w2(cfg, 4, VPF)
            for t in L1[:-1]:
                A.e(t)
            A.e(f"s_cmp_ge_u32 s{S_WAVE}, 4")
            A.e("s_cbranch_scc1 L_nopf3")
            A.e(L1[-1][1])
            A.e(f"s_mul_i32 s{S_T2}, s{S_PAR}, {-56 * 2048}")
            A.e(f"s_add_u32 s{S_T2}, s{S_T2}, {28 * 2048}")
            A.e(f"v_add_u32 v4, s{S_T2}, v4")
            A.e(L1[-1][1])
            A.label("L_nopf3")
        k1h.stamp(A, 12, enable=cfg.get("stamps"))
        A.e(f"s_cmp_ge_u32 s{S_WAVE}, 4")
        A.e("s_cbranch_scc1 L_prod2")
        A.L += cp
        A.label("L_prod2")
        A.L += pp
        ool = {}
        for s in (C, P, C2, P2):
            ool.update(s.ool)
        for L in ool.values():
            A.L += L
        A.label("L_fin")
        fin(A, cfg, 0)
        A.label("L_end")
        A.e("s_endpgm")
    else:
        for ki, (h0, h1) in enumerate(((0, hp2), (hp2, H))):
            nm = names[ki]
            kernel_begin(A, nm)
            common(A, cfg, f"L_end{ki}")
            C, P = consumer(cfg, HS, K, h0, h1, False), producer(cfg, HS, K, h0, h1, False)
            if ki == 0:
                A.e(f"s_cmp_eq_u32 s{S_NT}, 0")
                A.e("s_cbranch_scc1 L_special")
            A.e(f"s_cmp_ge_u32 s{S_WAVE}, 4")
            A.e(f"s_cbranch_scc1 L_prod{ki}")
            A.L += roll(C.blocks(), f"c{ki}", rl)
            A.e(f"s_branch L_fin{ki}")
            A.label(f"L_prod{ki}")
            A.L += roll(P.blocks(), f"p{ki}", rl)
            A.e(f"s_branch L_fin{ki}")
            for s in (C, P):
                for L in s.ool.values():
                    A.L += L
            if ki == 0:
                A.label("L_special")
                zero_line(A)
                k1s.k1_special(A, scfg)
                at_flag(A)
            A.label(f"L_fin{ki}")
            fin(A, cfg, ki << 20)
            A.label(f"L_end{ki}")
            A.e("s_endpgm")
    A.raw('.section .rodata,"a"')
    for nm in names:
        descriptor(A, nm)
    A.L = uniq(A.L)
    return A.text(cfg.get("hv", False))


if __name__ == "__main__":
    cfg = dict(stamps=("stamps" in sys.argv))
    for a in sys.argv[2:]:
        if "=" in a:
            k, v = a.split("=", 1)
            try:
                v = eval(v)
            except Exception:
                pass
            cfg[k] = v
    open(sys.argv[1], "w").write(build(cfg))
```

```python
import sys
from asmlib import *
from k1h import WS_H, WS_AT, WS_BT, AT_BLK, AT_PE, AT_TP, WS_ST, WS_FLAG, WS_PART, WS_DBG, WS_BYTES, STAMP_V
import k1h

U = 16384
NS = 9
L_PM = NS * U
L_TM = L_PM + 4096
OOB = 0x40000000
WS_CS = 21 << 20
S_X, S_W1, S_WS, S_CS, S_DBG, S_W2, S_O, S_CR, S_CI = 16, 20, 24, 28, 64, 68, 72, 76, 80
S_WAVE, S_Q, S_PAR, S_MLO, S_NT, S_G = 32, 33, 34, 35, 36, 37
S_T0, S_T1, S_T2, S_T3 = 38, 39, 84, 85
S_CNT, S_TO, S_QB = 86, 87, 3
VL = 1
MF = "v_mfma_f32_16x16x32_bf16"


class St(Asm):
    def __init__(self):
        super().__init__()
        self.bidx = [0]
        self.ool = {}

    def block(self):
        self.bidx.append(len(self.L))

    def blocks(self):
        b = self.bidx + [len(self.L)]
        return [self.L[b[i]:b[i + 1]] for i in range(len(b) - 1)]


def stamp(A, idx, cfg):
    k1h.stamp(A, idx, enable=cfg.get("stamps", False))
    if cfg.get("stamps", False):
        A.ds = []


def roll(blocks, name, enable=True):
    out = []
    i = 0
    n = len(blocks)
    nl = 0
    while i < n:
        best = None
        if enable:
            for p in range(1, 13):
                k = 1
                while i + (k + 1) * p <= n and blocks[i + k * p:i + (k + 1) * p] == blocks[i:i + p]:
                    k += 1
                if k >= 2:
                    sav = (k - 1) * sum(len(b) for b in blocks[i:i + p])
                    if sav > 40 and (best is None or sav > best[0]):
                        best = (sav, p, k)
        if best:
            _, p, k = best
            nl += 1
            lab = f"L_{name}_r{nl}"
            out.append(f"    s_mov_b32 s{S_CNT}, {k - 1}")
            out.append(lab + ":")
            for b in blocks[i:i + p]:
                out += b
            out.append(f"    s_sub_u32 s{S_CNT}, s{S_CNT}, 1")
            out.append(f"    s_cbranch_scc0 {lab}")
            i += p * k
        else:
            out += blocks[i]
            i += 1
    return out


def make_sched(cfg):
    q1 = cfg.get("q1", "P0-7 A8-15 B12-15 B8-11*")
    q2 = cfg.get("q2", "A0-3 PR0 PR1 PI0 PI1 B0-3 P4-9 A10-13 B10-13")
    HS = []
    UT = []

    def unit(h):
        UT.append(dict(first=h, last=h))
        return len(UT) - 1

    for ph, q in ((1, q1), (2, q2)):
        sq = []
        for w in q.replace(",", " ").split():
            re_ = w.endswith("*")
            w = w.rstrip("*")
            if w[1] in "RI":
                js = [w[1:]]
            else:
                lo, hi = (w[1:].split("-") * 2)[:2] if "-" not in w else w[1:].split("-")
                js = list(range(int(lo), int(hi) + 1))
            for j in js:
                sq += [(S, j, re_) for S in ((0, 1) if w[0] == "P" else ("AB".index(w[0]),))]
        ea = {}
        for S, j, re_ in sq:
            h = len(HS)
            D = isinstance(j, str)
            if j not in ea or re_:
                e = dict(kind="g", ph=ph, S=S, j=j, D=D, d=unit(h), ld=True, newd=True, r=unit(h), ldr=True, newp=True, h=h)
                ea[j] = e
            else:
                f = ea[j]
                big = f["h"] != h - 1
                if big:
                    UT[f["d"]]["last"] = h
                    if D:
                        UT[f["r"]]["last"] = h
                e = dict(kind="g", ph=ph, S=S, j=j, D=D, d=f["d"], ld=False, newd=big, r=f["r"] if D else unit(h), ldr=not D, newp=big or not D, h=h)
            HS.append(e)
        assert len(set((S, j) for S, j, _ in sq)) == len(sq)
    assert len(HS) == 68
    free = [(-99, i, i) for i in range(NS)]
    for u in UT:
        u["need"] = u["first"] - 2
    for e in HS:
        e["own"] = e["ph"] == 2 and e["j"] in (0, 1) and cfg.get("ownl", False)
        if e["own"]:
            UT[e["r"]]["need"] = max(h for h, f in enumerate(HS) if f["ph"] == 1 and f["S"] == e["S"])
    for n_, u in enumerate(sorted(UT, key=lambda u: u["need"] + (cfg.get("ownlate", 0) if u["need"] != u["first"] - 2 else 0))):
        free.sort()
        fb, _, sl = free.pop(0)
        u["slot"], u["fb"] = sl, fb
        assert fb <= u["need"], (n_, u)
        free.append((u["last"], NS + n_, sl))
    K = {}
    K["UT"] = UT
    LA = [h for h, e in enumerate(HS) if e["ph"] == 1 and e["S"] == 0]
    K["LA"] = LA
    K["aend"] = LA[-1] + 1
    K["cs"] = cfg.get("cs", LA[-1] - 1)
    K["p2"] = 32
    K["dft"] = 64
    K["a2end"] = max(h for h, e in enumerate(HS) if e["ph"] == 2 and e["S"] == 0)
    K["H"] = len(HS)
    f2 = lambda S, own: min(h for h, e in enumerate(HS) if e["ph"] == 2 and e["S"] == S and not e["D"] and (e["j"] < 2) == own)
    K["drA"] = cfg.get("drA", min(K["aend"] + 4, f2(0, True) - 2))
    K["pA"] = cfg.get("pA", max(K["drA"] + 1, f2(0, False) - 3))
    K["drB"] = cfg.get("drB", min(min(h for h, e in enumerate(HS) if e["ph"] == 2 and e["S"] == 1), f2(1, True) - 2))
    K["pB"] = cfg.get("pB", max(K["drB"] + 1, f2(1, False) - 4))
    K["pAT"] = cfg.get("pAT", min(h for h, e in enumerate(HS) if e["D"]) - 5)
    K["drT"] = cfg.get("drT", 33)
    K["pX"] = cfg.get("pX", K["a2end"] - 2)
    K["scr"] = cfg.get("scr", 3)
    return HS, K


PF, TF, TMF, PC = 64, 96, 48, 44
ACC = [128, 192]
AXR, AH, AAT, ATT, APM, ATM, VST = [8, 9], 10, 11, [12, 13, 14, 15], 18, 19, 20
ATU = [24, 25, 26, 27]
GRP = {"X": AXR, "H": [AH], "A": [AAT], "T": ATT, "U": ATU}
VPA, VPV, VPA2, VPV2 = 21, 22, 23, 40
VO = [[24, 25], [26, 27]]
VR = [[28, 29], [30, 31]]
PXR, TXR = 32, 48
XR = [[56, 60], [28, 44]]
sWM, sWN, sHS, sXS, sXR, sFL, sSG, sLO, sHI = 40, 41, 42, 43, 44, 45, 46, 47, 48
sCT, sCB = 53, 54
VCA, SEN, MR, CSR = 16, 28, 32, 48
VM0 = 22


def acc(S, rb, cb):
    return ACC[S] + rb * 16 + cb * 4


def t_of(A, vd, vi, tmp):
    A.e(f"s_lshr_b32 s{tmp}, s{S_Q}, 1")
    A.e(f"s_lshl_b32 s{tmp}, s{tmp}, 6")
    A.e(f"v_xor_b32 v{vd}, s{tmp}, v{vi}")
    A.e(f"s_lshl_b32 s{tmp}, s{S_MLO}, 8")
    A.e(f"s_add_u32 s{tmp}, s{tmp}, s{S_PAR}")
    A.e(f"v_lshl_add_u32 v{vd}, v{vd}, 1, s{tmp}")


def mirror_t(A, vd, vs, vt):
    A.e(f"v_sub_u32 v{vd}, 2048, v{vs}")
    A.e(f"v_mov_b32 v{vt}, 1024")
    A.e(f"v_cmp_eq_u32 vcc, 0, v{vs}")
    A.e(f"v_cndmask_b32 v{vd}, v{vd}, v{vt}, vcc")


def mirror_e(L, vc, vt):
    L.append(f"v_sub_u32 v{vt}, 1024, v{vc}")
    L.append(f"v_min_u32 v{vc}, v{vc}, v{vt}")
    L.append(f"v_lshrrev_b32 v{vt}, 6, v{vc}")
    L.append(f"v_mul_u32_u24 v{vt}, {AT_BLK}, v{vt}")
    L.append(f"v_and_b32 v6, 1, v{vc}")
    L.append(f"v_mad_u32_u24 v{vt}, v6, s{S_T3}, v{vt}")
    L.append(f"v_bfe_u32 v{vc}, v{vc}, 1, 5")
    L.append(f"v_lshl_add_u32 v{vc}, v{vc}, 4, v{vt}")


VPF = 43


def pf_addr(cfg, vd, pitch, rows):
    return [f"s_and_b32 s{S_T2}, s{S_WAVE}, 3", f"s_lshl2_add_u32 s{S_T2}, s{S_MLO}, s{S_T2}", f"s_lshl1_add_u32 s{S_T2}, s{S_T2}, s{S_PAR}",
            f"s_mul_i32 s{S_T2}, s{S_T2}, {rows}", f"v_lshrrev_b32 v2, 1, v{VL}", f"v_add_u32 v2, s{S_T2}, v2", f"v_mul_u32_u24 v2, {pitch}, v2",
            f"v_and_b32 v3, 1, v{VL}", f"v_lshl_add_u32 v2, v3, 7, v2",
            f"v_add_u32 v3, {64 - 2 * rows}, v{VL}", f"v_lshrrev_b32 v3, 6, v3", f"v_lshl_add_u32 v{vd}, v3, 30, v2"]


def pf_w1(cfg, va, s, ns):
    L = pf_addr(cfg, va, 7168, 2 * ns)
    L += [f"s_mul_i32 s{s}, s{S_Q}, {cfg.get('rot', 0) * 64}",
          f"s_mul_i32 s{S_T3}, s{S_Q}, 7", f"s_add_u32 s{S_T3}, s{S_T3}, s{S_NT}", f"s_sub_u32 s{S_T3}, s{S_T3}, 1", f"s_lshl_b32 s{S_T3}, s{S_T3}, 8",
          f"v_add_u32 v{va}, s{S_T3}, v{va}"]
    assert cfg.get('rot', 0) % ns == 0 and cfg.get('rotp', 0) == 0
    return L, [f"s_and_b32 s{s}, s{s}, 1023", f"s_mul_i32 s{S_T3}, s{s}, 7168", f"s_add_u32 s{s}, s{s}, {64 * ns}",
               ("vm", f"buffer_load_dword v{VPF}, v{va}, {sr(S_W1, 4)}, s{S_T3} offen{cfg.get('pfaux', '')}", "PF")]


def pf_x(cfg, va, s, ns):
    nw = cfg.get("pfxw", 112)
    L = [f"s_sub_u32 s{S_T2}, s{S_NT}, 1"] + ([f"s_lshl2_add_u32 s{S_T2}, s{S_T2}, s{S_Q}"] if nw == 112 else []) + [f"s_lshl2_add_u32 s{S_T2}, s{S_T2}, s{S_WAVE}",
         f"v_lshrrev_b32 v2, {ns.bit_length() - 1}, v{VL}", f"v_mul_u32_u24 v2, {nw}, v2", f"v_add_u32 v4, s{S_T2}, v2", f"v_and_b32 v2, 127, v4",
         f"s_lshl_b32 s{S_T3}, s{S_MLO}, 8", f"s_add_u32 s{S_T3}, s{S_T3}, s{S_PAR}", f"v_lshl_add_u32 v2, v2, 1, s{S_T3}",
         f"v_sub_u32 v3, 2048, v2", f"v_and_b32 v3, 2047, v3",
         ("atom", [f"v_cmp_lt_u32 vcc, 127, v4", "v_cndmask_b32 v2, v2, v3, vcc"]),
         f"v_and_b32 v3, {ns - 1}, v{VL}", f"v_lshlrev_b32 v3, 7, v3", f"v_lshl_add_u32 v2, v2, 11, v3",
         f"v_lshrrev_b32 v3, 8, v4", f"v_min_u32 v3, 1, v3", f"v_lshl_add_u32 v{va}, v3, 30, v2",
         f"s_mul_i32 s{s}, s{S_Q}, {cfg.get('rot', 0) * 128 if nw != 112 else 0}"]
    assert (256 + nw - 1) // nw * ns <= 64
    return L, [f"s_and_b32 s{s}, s{s}, 2047", ("vm", f"buffer_load_dword v{VPF}, v{va}, {sr(S_X, 4)}, s{s} offen{cfg.get('pfaux', '')}", "PF"), f"s_add_u32 s{s}, s{s}, {128 * ns}"]


def pf_d(cfg):
    return [("atom", [f"s_cmp_eq_u32 s{sWM}, 1", f"s_cselect_b32 s{S_CS}, s14, s12", f"s_cselect_b32 s{S_CS + 1}, s15, s13"]),
            f"s_and_b32 s{S_CS + 1}, s{S_CS + 1}, 0xffff", f"s_mov_b32 s{S_CS + 2}, {1024 * 2048}", f"s_mov_b32 s{S_CS + 3}, 0x00020000",
            f"s_lshr_b32 s{S_T2}, s2, 3", f"s_sub_u32 s{S_T2}, s{S_T2}, 4", f"s_lshl1_add_u32 s{S_T2}, s{S_T2}, s{sWN}",
            f"v_lshrrev_b32 v2, 2, v{VL}", f"v_mul_u32_u24 v2, 56, v2", f"v_add_u32 v2, s{S_T2}, v2",
            f"v_and_b32 v3, 3, v{VL}", f"v_lshlrev_b32 v3, 7, v3", f"v_lshl_add_u32 v3, v2, 11, v3",
            f"v_lshrrev_b32 v2, 8, v2", f"v_min_u32 v2, 1, v2", f"v_lshl_add_u32 v2, v2, 30, v3",
            ("vm", f"buffer_load_dword v{VPF}, v2, {sr(S_CS, 4)}, 0 offen", "PF")]


def pf_w2(cfg, va, vd=VPF):
    L = pf_addr(cfg, va, 2048, 28)
    L += [f"s_mul_i32 s{S_T3}, s{S_Q}, {896 * 8}", f"s_add_u32 s{S_T3}, s{S_T3}, s{S_NT}", f"s_lshl_b32 s{S_T3}, s{S_T3}, 8"]
    return L + [("vm", f"buffer_load_dword v{vd}, v{va}, {sr(S_W2, 4)}, s{S_T3} offen{cfg.get('pfaux', '')}", "PF")]


def pf_c(cfg):
    return [f"s_and_b32 s{S_T2}, s{S_NT}, 3",
            ("atom", [f"s_cmp_eq_u32 s{S_T2}, 1", f"s_cselect_b32 s{S_CS}, s{S_CR}, s{S_CI}", f"s_cselect_b32 s{S_CS + 1}, s{S_CR + 1}, s{S_CI + 1}"]),
            f"s_mov_b32 s{S_CS + 2}, s{S_CR + 2}", f"s_mov_b32 s{S_CS + 3}, s{S_CR + 3}",
            f"s_lshl_b32 s{S_T2}, s{S_WAVE}, 6", f"v_and_b32 v2, 62, v{VL}", f"v_add_u32 v2, s{S_T2}, v2",
            f"s_lshl_b32 s{S_T2}, s{S_MLO}, 8", f"s_add_u32 s{S_T2}, s{S_T2}, s{S_PAR}", f"v_add_u32 v2, s{S_T2}, v2",
            f"v_sub_u32 v3, 2048, v2", f"v_and_b32 v3, 2047, v3", f"s_lshr_b32 s{S_T2}, s{S_NT}, 1",
            ("atom", [f"s_cmp_eq_u32 s{S_T2}, 1", "s_cselect_b64 vcc, -1, 0", "v_cndmask_b32 v2, v2, v3, vcc"]),
            f"v_and_b32 v3, 1, v{VL}", f"v_lshlrev_b32 v3, 7, v3", f"v_lshl_add_u32 v2, v2, 12, v3", f"s_lshl_b32 s{S_T2}, s{S_Q}, 8",
            ("vm", f"buffer_load_dword v{VPF}, v2, {sr(S_CS, 4)}, s{S_T2} offen", "PF")]


def check_poll(A, name, load, vreg, tag):
    A.e(f"s_mov_b32 s{S_TO}, 0x40000")
    A.vm_need([tag])
    A.label("L_pl@")
    A.e(f"v_cmp_ne_u32 vcc, 0, v{vreg}")
    A.e("s_cmp_eq_u64 vcc, -1")
    A.e("s_cbranch_scc1 L_ok@")
    A.e(load)
    A.e("s_waitcnt vmcnt(0)")
    A.e(f"s_sub_u32 s{S_TO}, s{S_TO}, 1")
    A.e("s_cbranch_scc0 L_pl@")
    A.label("L_ok@")


def consumer(cfg, HS, K, h0, h1, fused):
    A = St()
    main = h0 == 0
    sc = " sc1" if fused else ""
    A.e(f"s_setprio {cfg.get('prio', 1)}")
    A.e(f"s_lshr_b32 s{sWM}, s{S_WAVE}, 1")
    A.e(f"s_and_b32 s{sWN}, s{S_WAVE}, 1")
    A.e(f"v_and_b32 v2, 15, v{VL}")
    A.e(f"v_lshrrev_b32 v3, 4, v{VL}")
    A.e(f"s_lshl_b32 s{S_T0}, s{sWM}, 12")
    A.e(f"s_lshl_b32 s{S_T1}, s{sWN}, 12")
    A.e(f"v_lshlrev_b32 v{VST}, 4, v{VL}")
    base = {"X": 0, "H": 0, "A": 0, "T": 0, "U": 0}
    A.e(f"v_bfe_u32 v4, v{VL}, 2, 2")
    A.e(f"v_lshl_add_u32 v5, v3, 3, v4")
    A.e(f"v_lshlrev_b32 v5, 8, v5")
    A.e(f"v_and_b32 v6, 1, v3")
    A.e(f"v_lshl_add_u32 v4, v6, 2, v4")
    A.e(f"s_lshl_b32 s{S_T2}, s{sWN}, 1")
    A.e(f"v_xor_b32 v4, s{S_T2}, v4")
    A.e(f"v_lshl_add_u32 v5, v4, 5, v5")
    A.e(f"v_and_b32 v4, 3, v{VL}")
    A.e(f"v_lshl_add_u32 v{ATT[0]}, v4, 3, v5")
    for cb in range(1, 4):
        A.e(f"v_xor_b32 v{ATT[cb]}, {(cb >> 1) * 128 + (cb & 1) * 32}, v{ATT[0]}")
    A.e(f"v_lshrrev_b32 v4, 1, v2")
    A.e(f"v_xor_b32 v4, v3, v4")
    A.e(f"v_lshl_add_u32 v5, v2, 7, s{S_T0}")
    if fused and not main:
        base["X"] = K["xbase"]
        A.e(f"v_add_u32 v5, {base['X'] * U}, v5")
    A.e(f"v_lshl_add_u32 v{AXR[0]}, v4, 4, v5")
    A.e(f"v_xor_b32 v{AXR[1]}, 64, v{AXR[0]}")
    A.e(f"v_add_u32 v{AH}, s{S_T0}, v{VST}")
    A.e(f"v_add_u32 v{AAT}, s{S_T1}, v{VST}")
    if main:
        A.e(f"s_lshl_b32 s{S_T2}, s{sWM}, 9")
        A.e(f"s_add_u32 s{S_T2}, s{S_T2}, {L_PM}")
        A.e(f"v_lshl_add_u32 v{APM}, v2, 5, s{S_T2}")
        A.e(f"s_lshl_b32 s{S_T2}, s{S_WAVE}, 11")
        A.e(f"v_and_b32 v4, 7, v{VL}")
        A.e(f"v_lshl_add_u32 v4, v3, 3, v4")
        A.e(f"v_lshl_add_u32 v4, v4, 4, s{S_T2}")
        A.e(f"v_xor_b32 v{VCA}, 4096, v4")
        A.e(f"v_add_u32 v{ATM}, {L_TM}, v4")
        A.e(f"v_add_u32 v{VCA}, {L_TM}, v{VCA}")
        for i in range(4):
            A.e(f"v_mov_b32 v{PC + i}, 0x3f803f80")
        A.e(f"s_lshl_b32 s{sCT}, s{sWM}, 13")
        A.e(f"s_lshl_b32 s{sCB}, s{sWM}, 6")

        def swap():
            for r in ATT:
                A.e(f"v_xor_b32 v{r}, s{sCT}, v{r}")
            for r in AXR:
                A.e(f"v_xor_b32 v{r}, s{sCB}, v{r}")
        swap()
        for cb in range(4):
            A.e(f"v_xor_b32 v{ATU[cb]}, 8192, v{ATT[cb]}")
        A.e(f"s_lshl_b32 s{S_T2}, s{S_PAR}, 2")
        A.e(f"s_add_u32 s{S_T2}, s{S_T2}, s{S_MLO}")
        A.e(f"s_mul_i32 s{S_T2}, s{S_T2}, 56")
        A.e(f"s_mul_i32 s{S_T3}, s{S_Q}, 7")
        A.e(f"s_add_u32 s{S_T2}, s{S_T2}, s{S_T3}")
        A.e(f"s_add_u32 s{S_T2}, s{S_T2}, s{S_NT}")
        A.e(f"s_sub_u32 s{S_T2}, s{S_T2}, 1")
        A.e(f"s_lshl_b32 s{sHS}, s{S_T2}, 15")
        A.e(f"s_add_u32 s{sHS}, s{sHS}, s{S_T0}")
        A.e(f"s_lshl_b32 s{S_T2}, s{sWN}, 10")
        A.e(f"s_add_u32 s{sHS}, s{sHS}, s{S_T2}")
        assert WS_H == 0
    A.e(f"s_lshl_b32 s{S_T2}, s{sWM}, 5")
    A.e(f"v_add_u32 v4, s{S_T2}, v2")
    t_of(A, 4, 4, S_T2)
    A.e(f"v_bfrev_b32 v5, 1")
    A.e(f"v_cmp_eq_u32 vcc, 0, v4")
    A.e(f"v_cndmask_b32 v{VM0}, 0, v5, vcc")
    A.e(f"v_cmp_eq_u32 vcc, 128, v4")
    A.e(f"v_cndmask_b32 v{VM0 + 1}, 0, v5, vcc")

    vals = {}
    groups = []
    cur_t = None

    def val(key, reg, reads, pub, unit=None, grp=None):
        vals[key] = dict(key=key, reg=reg, reads=reads, pub=pub, slot=None if unit is None else K["UT"][unit]["slot"], grp=grp, first=None, last=None)
        return key

    fixes = {}
    for h in range(h0, h1):
        e = HS[h]
        if e["newd"]:
            cur_t = {}
            for k32 in range(2):
                for cb in range(4):
                    rg = TF + 4 * (4 * k32 + cb)
                    alt = k32 and e["ph"] == 1
                    if e["D"]:
                        cur_t[k32, cb] = val(("T", h, k32, cb), rg, [(f"ds_read_b128 {vr(rg, 4)}, v{AAT}", (cb >> 1) * 8192 + (cb & 1) * 2048 + k32 * 1024)], h - 1, e["d"], "A")
                    else:
                        cur_t[k32, cb] = val(("T", h, k32, cb), rg,
                                             [(f"ds_read_b64_tr_b16 {vr(rg + 2 * u, 2)}, v{(ATU if alt else ATT)[cb]}", (0 if alt else k32 * 8192) + u * 1024) for u in range(2)],
                                             h - 1, e["d"], "U" if alt else "T")
        for k32 in range(2):
            for rb in range(4):
                rg = PF + 4 * (4 * k32 + rb)
                o = (rb >> 1) * 8192 + (rb & 1) * 2048
                xl = e["ph"] == 1 or e["D"]
                rd = (f"ds_read_b128 {vr(rg, 4)}, v{AXR[k32]}", o) if xl else (f"ds_read_b128 {vr(rg, 4)}, v{AH}", o + k32 * 1024)
                p = val(("P", h, k32, rb), rg, [rd], h - 1, e["r"], "X" if xl else "H") if e["newp"] else ("P", h - 1, k32, rb)
                if e["D"] and e["S"] == 1:
                    if e["j"][0] == "I":
                        fixes[h, 4 * k32 + rb] = (p, [f"v_xor_b32 v{rg + i}, 0x80008000, v{rg + i}" for i in range(4)])
                    elif rb & 1 == 0:
                        fixes[h, 4 * k32 + rb] = (p, [f"v_xor_b32 v{rg + i}, v{VM0 + (rb >> 1)}, v{rg + i}" for i in range(4)])
                groups.append((h, [(acc(e["S"], rb, cb), cur_t[k32, cb], p) for cb in range(4)]))
                if h in K["LA"] and rb == 0 and (k32 == 0 or h >= K["LA"][-2]):
                    groups.append((h, [(CSR + 4 * cb, cur_t[k32, cb], "PC") for cb in range(4)]))
    if cfg.get("lord", 1):
        for hl in (K["a2end"], K["H"] - 1):
            ix = [n_ for n_, g in enumerate(groups) if g[0] == hl]
            G = {(k32, rb): groups[ix[4 * k32 + rb]][1] for k32 in range(2) for rb in range(4)}
            new = [G[0, 2], G[0, 3], G[1, 2], G[1, 3], G[0, 0][2:] + G[0, 1][2:], G[1, 0][2:] + G[1, 1][2:], G[0, 0][:2] + G[0, 1][:2], G[1, 0][:2] + G[1, 1][:2]]
            for n_, g in zip(ix, new):
                groups[n_] = (hl, g)
    seq = []
    cnt = {}
    for h, ms in groups:
        for mf in ms:
            i = cnt.get(h, 0)
            cnt[h] = i + 1
            seq.append((h, i, mf))
    for n_, (h, i, (a, t, p)) in enumerate(seq):
        for k in (t, p):
            if k in vals:
                v = vals[k]
                if v["first"] is None:
                    v["first"] = n_
                v["last"] = n_
    order = sorted(vals.values(), key=lambda v: v["first"])
    prev = {}
    for v in order:
        v["prev"] = prev.get(v["reg"])
        prev[v["reg"]] = v
        v["q"] = list(v["reads"])
    pend = list(order)

    extras = []
    prebar = {}

    def X(at, items, dl=None):
        extras.append(dict(at=at, items=list(items), dl=dl))

    def PB(h, fn):
        prebar.setdefault(h, []).append(fn)

    H = K["H"]
    hp2, hd = K["p2"], K["dft"]
    haux = cfg.get("h_aux", " sc1")
    PST = cfg.get("pst", 3 * U)

    def ep_items(S, rb):
        L = []
        for rel in range(2):
            a = acc(S, rb, 2 * rel)
            if rb & 1 == 0 or True:
                L.append(f"s_add_u32 s{S_T0 + rel}, s{sHS}, {S * 56 * U + rel * U + (rb >> 1) * 8192}")
            L += [f"v_cvt_pk_bf16_f32 v{a + i}, v{a + 2 * i}, v{a + 2 * i + 1}" for i in range(4)]
            L += [f"v_pk_max_i16 v{a + i}, v{a + i}, 0" for i in range(4)]
            L.append(("vm", f"buffer_store_dwordx4 {vr(a, 4)}, v{VST}, {sr(S_WS, 4)}, s{S_T0 + rel} offen offset:{(rb & 1) * 2048}{haux}", ("H", S)))
            if cfg.get("ownl"):
                L.append(("ds", f"ds_write_b128 v{VPA + rel}, {vr(a, 4)} offset:{(rb >> 1) * 8192 + (rb & 1) * 2048}", ("HW", S)))
        return L

    def send_items(S, rb):
        L = []
        for relc in range(2):
            d = 2 * (rb >> 1) + relc
            if d == 0:
                continue
            a = acc(S, rb, 2 * relc)
            L += [f"v_cvt_pk_bf16_f32 v{a + i}, v{a + 2 * i}, v{a + 2 * i + 1}" for i in range(4)]
            L.append(("vm", f"buffer_store_dwordx4 {vr(a, 4)}, v{VST}, {sr(S_WS, 4)}, s{49 + d} offen offset:{(S * 2 + (rb & 1)) * 1024}{cfg.get('snd_aux', ' sc1')}", "SND"))
        return L

    RV = [acc(0, 0, 2), acc(0, 0, 3), acc(0, 1, 2), acc(0, 1, 3)] + [acc(0, 2, 0) + 4 * i for i in range(8)]

    def rvr(S, rb2, d):
        return RV[(S * 2 + rb2) * 3 + d]

    def rcv(S, rb2, d):
        return f"buffer_load_dwordx4 {vr(rvr(S, rb2, d), 4)}, v{VST}, {sr(S_WS, 4)}, s{55 + d} offen offset:{(S * 2 + rb2) * 1024} sc1"

    def lastpos(S, rb, hmax, lo=0):
        best = None
        for n_, (h, i, (a, t, p)) in enumerate(seq):
            if h < hmax and acc(S, rb, 0) + lo <= a < acc(S, rb, 0) + 16:
                best = n_
        return best

    def at_after(n_, d=3):
        n_ = n_ + d
        if n_ >= len(seq):
            return (h1, 0)
        return seq[n_][:2]

    def uses(S, rb):
        return [n_ for n_, (h, i, (a, t, p)) in enumerate(seq) if acc(S, rb, 0) <= a < acc(S, rb, 0) + 16]

    BA = cfg.get("bar_at", 7)

    def inv():
        A.e(f"s_cmp_lg_u32 s{S_WAVE}, 0")
        A.e("s_cbranch_scc1 L_iv@")
        A.e("buffer_inv sc1")
        A.label("L_iv@")

    def drain0():
        A.vm = []
        A.e("s_waitcnt vmcnt(0)")

    if main:
        l3, l2, l1 = K["LA"][-3:]
        X((l3, 12), [("ds", f"ds_write_b128 v{ATM}, {vr(CSR + 4 * cb, 4)} offset:{512 * cb}", "CW") for cb in range(4)], dl=(l3, 30))
        PB(l3 + 1, lambda: A.ds_need(["CW"]))
        for i in range(2):
            X((l3 + 1, BA + 12 * i), [("ds", f"ds_read_b128 {vr(MR + 4 * c2, 4)}, v{VCA} offset:{512 * (2 * i + c2)}", "CR") for c2 in range(2)], dl=(l3 + 1, BA + 12 * i + 4))
            X((l3 + 1, BA + 12 * i + 8), [("need", "CR")] + [f"v_add_f32 v{CSR + 8 * i + k}, v{CSR + 8 * i + k}, v{MR + k}" for k in range(8)], dl=(l3 + 1, BA + 12 * i + 12))
        hc = K["cs"]
        assert hc <= l1
        for S in range(2):
            for rb in range(4):
                at = max(at_after(lastpos(S, rb, hp2)), (l1, 31))
                pc_ = int(rb * cfg.get("pace", (0, 0))[S] * 32)
                at = max(at, ((hp2 if S else K["aend"]) + pc_ // 32, pc_ % 32)) if pc_ else at
                osel = "op_sel:[0,1,0] op_sel_hi:[1,1,1]" if rb & 1 else "op_sel_hi:[1,0,1]"
                osm = "op_sel:[0,1] op_sel_hi:[1,1]" if rb & 1 else "op_sel_hi:[1,0]"
                if rb == 0:
                    X(max((hc, BA), (l3 + 2, 0)) if S == 0 else (hp2 - 1, 0), [("ds", f"ds_read_b128 {vr(MR + 4 * i, 4)}, v{APM} offset:{16 * S + 1024 * i}", "M") for i in range(2)])
                L = [("need", "M"), f"v_and_b32 v{MR + rb}, 0xffff0000, v{MR + rb}"]
                a_ = acc(S, rb, 0)
                L += [f"v_pk_fma_f32 {vr(a_ + k, 2)}, {vr(CSR + k, 2)}, {vr(MR + (rb & 2), 2)}, {vr(a_ + k, 2)} {osel} neg_lo:[0,1,0] neg_hi:[0,1,0]" for k in range(0, 16, 2)]
                L += [f"v_pk_mul_f32 {vr(a_ + k, 2)}, {vr(a_ + k, 2)}, {vr(MR + 4 + (rb & 2), 2)} {osm}" for k in range(0, 16, 2)]
                if rb == 0 and cfg.get("ownl"):
                    oh = [h for h, e in enumerate(HS) if e["own"] and e["S"] == S]
                    L0 = [f"s_lshl_b32 s{S_T2}, s{sWM}, 12", f"s_lshl_b32 s{S_T3}, s{sWN}, 10", f"s_add_u32 s{S_T2}, s{S_T2}, s{S_T3}"]
                    for rel in range(2):
                        L0 += [f"s_add_u32 s{S_T3}, s{S_T2}, {K['UT'][HS[oh[rel]]['r']]['slot'] * U}", f"v_add_u32 v{VPA + rel}, s{S_T3}, v{VST}"]
                    L = L0 + L
                    PB(oh[0] - 1, lambda S=S: A.ds_need([("HW", S)]))
                X(at, L + ep_items(S, rb), dl=(K["drB" if S else "drA"] - cfg.get("epl", 1), 0))
        if h1 > hp2:
            PB(hp2 - 1, swap)
        extras.sort(key=lambda x: x["at"])
    if main:
        p1, px, p2 = cfg.get("pf1", [-1, -1, 2, 2]), cfg.get("pfx", [-1, -1, 2, 2]), cfg.get("pf2", 12)
        LL = [pf_w1(cfg, 28, 55, 16 // len(p1)), pf_x(cfg, 30, 57, 16 // len(px))]
        for i_ in range(max(len(p1), len(px))):
            for (L0, L1), pp in zip(LL, (p1, px)):
                if i_ == 0:
                    X((-1, 0), L0, dl=(-1, 0))
                if i_ < len(pp):
                    h = pp[i_]
                    X((-1 if h is None else h, 10 if h and h >= 0 else 0), L1 if h is not None else [t for t in L1 if isinstance(t, str)], dl=(-1 if h is None else h, 30))
        if p2:
            X((p2, 2), pf_w2(cfg, 29), dl=(p2, 30))
        if cfg.get("pfd") is not None:
            X((cfg["pfd"], 1), pf_d(cfg), dl=(cfg["pfd"], 30))
    if main and cfg.get("pfc") is not None:
        X((cfg.get("pfc"), 12), pf_c(cfg), dl=(cfg.get("pfc"), 30))
    extras.sort(key=lambda x: x["at"])
    pollA = f"buffer_load_dword v{VPV}, v{VPA}, {sr(S_WS, 4)}, s{sFL} offen sc1"
    pollB = f"buffer_load_dword v{VPV}, v{VPA}, {sr(S_WS, 4)}, s{sFL} offen offset:32 sc1"
    pollT = f"buffer_load_dword v{VPV2}, v{VPA2}, {sr(S_WS, 4)}, 0 offen offset:96 sc1"
    pollS = f"buffer_load_dword v{VPV2}, v{VPA2}, {sr(S_DBG, 4)}, 0 offen sc1"
    PI = cfg.get("poll_at", 12)
    PL = cfg.get("poll_lead", 2)

    if fused and main:
        PB(K["drA"], drain0)
        PB(K["drB"], drain0)
    if h1 == H:
        hs_ = cfg.get("hsu", 45)
        pollX = f"buffer_load_dword v{VCA + 1}, v{VCA}, {sr(S_WS, 4)}, s{sCB} offen sc1"
        L = []
        for d in (1, 2, 3):
            L += [f"s_xor_b32 s{S_T2}, s2, {d if not cfg.get('sndown') else 0}", f"s_mul_i32 s{49 + d}, s{S_T2}, {PST}"]
        L += [f"s_lshl_b32 s{S_T2}, s{S_WAVE}, 12", f"s_add_u32 s{S_T2}, s{S_T2}, {WS_PART}"]
        for d in (1, 2, 3):
            L += [f"s_add_u32 s{49 + d}, s{49 + d}, s{S_T2}", f"s_add_u32 s{49 + d}, s{49 + d}, {(d - 1) * U}"]
        L += [f"s_mul_i32 s{sXR}, s2, {PST}", f"s_add_u32 s{sXR}, s{sXR}, s{S_T2}"]
        L += [f"v_and_b32 v2, 15, v{VL}", f"s_lshl_b32 s{S_T2}, s{sWM}, 5", f"v_add_u32 v2, s{S_T2}, v2",
              f"s_lshr_b32 s{S_T2}, s{S_Q}, 1", f"s_lshl_b32 s{S_T2}, s{S_T2}, 6", f"v_xor_b32 v2, s{S_T2}, v2",
              f"s_lshl_b32 s{S_T2}, s{S_MLO}, 8", f"s_add_u32 s{S_T2}, s{S_T2}, s{S_PAR}", f"v_lshl_add_u32 v2, v2, 1, s{S_T2}",
              f"v_sub_u32 v3, 2048, v2", f"v_mov_b32 v4, 1024",
              ("atom", [f"v_cmp_eq_u32 vcc, 0, v2", f"v_cndmask_b32 v4, v3, v4, vcc"]),
              f"v_lshlrev_b32 v{VO[0][0]}, 11, v2", f"v_lshlrev_b32 v{VO[1][0]}, 11, v4",
              f"v_add_u32 v{VO[0][1]}, {32 * 2048}, v{VO[0][0]}", f"v_lshlrev_b32 v{VO[1][1]}, 11, v3",
              f"v_subrev_u32 v{VO[1][1]}, {32 * 2048}, v{VO[1][1]}"]
        L += [f"v_and_b32 v2, 3, v{VL}", f"v_xor_b32 v2, s{S_G}, v2", f"v_lshlrev_b32 v{VCA}, 7, v2",
              f"s_lshl_b32 s{sCB}, s{S_NT}, 2", f"s_add_u32 s{sCB}, s{sCB}, {WS_FLAG + 64}",
              f"s_lshr_b32 s{sSG}, s{S_NT}, 2", f"s_lshl_b32 s{sSG}, s{sSG}, 31"]
        X((hs_, 2), L, dl=(hs_ + 2, 0))
        L = [f"s_mov_b32 s{S_T3}, {AT_PE}"]
        L += [f"v_lshrrev_b32 v3, 4, v{VL}", f"v_min_u32 v2, 1, v3", f"v_lshlrev_b32 v2, 30, v2"]
        for rb2 in range(2):
            L += [f"v_lshl_add_u32 v4, v{VO[0][rb2]}, 1, v2"]
            for kind in range(2):
                L += [("vm", f"buffer_load_ushort v{PXR + 4 * kind + 2 * rb2}, v4, {sr(S_CI if kind else S_CR, 4)}, 0 offen offset:1024", "PX")]
        L += [f"s_lshl_b32 s{S_T0}, s{S_NT}, 7", f"s_lshl_b32 s{S_T1}, s{S_QB}, 6", f"s_add_u32 s{S_T0}, s{S_T0}, s{S_T1}",
              f"s_lshl_b32 s{S_T1}, s{sWN}, 5", f"s_add_u32 s{S_T0}, s{S_T0}, s{S_T1}",
              f"s_mov_b32 s{sLO}, {WS_AT + 32 * 1024}", f"s_mov_b32 s{sHI}, {WS_BT + AT_TP}"]
        for cb2 in range(2):
            L += [f"v_and_b32 v4, 15, v{VL}", f"v_add_u32 v4, s{S_T0}, v4"]
            if cb2:
                L += [f"v_add_u32 v4, 16, v4"]
            mirror_e(L, 4, 5)
            for kind in range(2):
                L += [("vm", f"buffer_load_ushort v{TXR + 4 * kind + 2 * cb2}, v4, {sr(S_WS, 4)}, s{sHI if kind else sLO} offen{sc}", "TX")]
        for i in range(4):
            L += [f"v_mov_b32 v{PXR + 2 * i + 1}, 0"] + ([f"v_mov_b32 v{TXR + 2 * i + 1}, 0"] if i < 2 else [])
        L += [f"v_and_b32 v2, 1, v3", f"v_lshlrev_b32 v2, 5, v2", f"v_lshrrev_b32 v3, 1, v3", f"v_lshl_add_u32 v2, v3, 4, v2",
              f"s_lshl_b32 s{S_T0}, s{S_T0}, 1", f"v_add_u32 v2, s{S_T0}, v2"]
        L += [f"v_add_u32 v{VO[S][rb2]}, v2, v{VO[S][rb2]}" for S in range(2) for rb2 in range(2)]
        for d in range(3):
            L.append(f"s_add_u32 s{55 + d}, s{sXR}, {d * U}")
        L += [("vm", f"buffer_load_dwordx4 {vr(XR[S][rb2], 4)}, v{VO[S][rb2]}, {sr(S_X, 4)}, 0 offen", "X") for S in range(2) for rb2 in range(2)]
        L += [f"s_mov_b32 s{sLO}, 0x00003f80", f"s_mov_b32 s{sHI}, 0x3f800000"]
        assert hs_ + 2 > K["pAT"]
        X((hs_ + 2, 2), L, dl=(hs_ + 5, 0))
        hx = hs_ + cfg.get("hxd", 8)
        L = [("vneed", ["PX", "TX", "X"])]
        for i in range(2):
            L += [f"v_lshl_or_b32 v{PXR + 4 + 2 * i}, v{PXR + 4 + 2 * i}, 16, v{PXR + 2 * i}", f"v_xor_b32 v{PXR + 4 + 2 * i}, s{sSG}, v{PXR + 4 + 2 * i}",
                  f"v_xor_b32 v{PXR + 2 * i}, 0x80000000, v{PXR + 4 + 2 * i}", f"v_lshl_or_b32 v{TXR + 2 * i}, v{TXR + 4 + 2 * i}, 16, v{TXR + 2 * i}"]
        for S in range(2):
            for rb2 in range(2):
                x = XR[S][rb2]
                L += [f"v_permlane16_swap_b32 v{x}, v{x + 2}", f"v_permlane16_swap_b32 v{x + 1}, v{x + 3}"]
        X((hx, 2), L, dl=(hx, 30))
        for S in sorted(range(2), key=lambda S: min(h for h in range(hx + 1, H) if HS[h]["S"] != S)):
            h = min(h for h in range(hx + 1, H) if HS[h]["S"] != S)
            L = [f"v_mfma_f32_16x16x16_bf16 {vr(acc(S, rb2, cb2), 4)}, {vr(TXR + 2 * cb2, 2)}, {vr(PXR + 4 * S + 2 * rb2, 2)}, {vr(acc(S, rb2, cb2), 4)}"
                 for rb2 in range(2) for cb2 in range(2)]
            X((h, 3), L, dl=(h, 8))
            L = [f"v_dot2c_f32_bf16 v{acc(S, rb2, 0) + i}, s{sHI if i & 1 else sLO}, v{XR[S][rb2] + (i >> 1)}" for rb2 in range(2) for i in range(8)]
            X((h, 13), L, dl=(h, 28))
        X((K["pX"] - PL, PI), [("vm", pollX, "PX2")], dl=(K["pX"] - PL, PI + 2))
        PB(K["pX"], lambda: check_poll(A, "X", pollX, VCA + 1, "PX2"))
        s0 = (K["pX"], BA + 1)
        for S in range(2):
            for rb in range(4):
                X(max(at_after(lastpos(S, rb, H, 8 if rb < 2 else 0)), s0), send_items(S, rb), dl=(K["a2end"] + cfg.get("sdl", 2), 0) if S == 0 else (H, 0))
        X(cfg.get("rcvA", (H - 1, 2)), [("vm", rcv(0, rb2, d), ("RV", 0, rb2)) for rb2 in range(2) for d in range(3)], dl=(H, 0))
        extras.sort(key=lambda x: x["at"])

    def emit_item(it):
        if isinstance(it, tuple):
            if it[0] == "vm":
                A.vm_issue(it[1], it[2])
                return 1
            if it[0] == "ds":
                A.ds_issue(it[1], it[2])
                return 1
            if it[0] == "vneed":
                A.vm_need(it[1])
                return 0
            if it[0] == "need":
                A.ds_need([it[1]])
                return 0
            for t in it[1]:
                A.e(t)
            return len(it[1])
        A.e(it)
        return 0 if it.startswith("s_") else 1

    state = dict(pub=h0 - 2, n=-1)

    def ready(v):
        return v["pub"] <= state["pub"] and (v["prev"] is None or (v["prev"]["last"] <= state["n"] and not v["prev"]["q"]))

    def inwin(v):
        return v["slot"] is None or 0 <= v["slot"] - base[v["grp"]] <= 3

    def issue_one(v):
        cost = 0
        o = 0
        if v["slot"] is not None:
            g_ = v["grp"]
            if not inwin(v):
                nb_ = (v["slot"] // 4) * 4 if v["slot"] < 8 else 5
                d_ = (nb_ - base[g_]) * U
                for r in GRP[g_]:
                    A.e(f"v_add_u32 v{r}, {d_}, v{r}" if d_ > 0 else f"v_subrev_u32 v{r}, {-d_}, v{r}")
                base[g_] = nb_
                cost += len(GRP[g_])
            o = (v["slot"] - base[g_]) * U
        t_, o_ = v["q"].pop(0)
        if not cfg.get("nord"):
            A.ds_issue(f"{t_} offset:{o + o_}", v["key"])
        if not v["q"]:
            pend.remove(v)
        return cost + 1

    def dok(v):
        if inwin(v):
            return True
        for w in pend:
            if w is v:
                return True
            if w["grp"] == v["grp"]:
                return False
        return True

    def fill(cap, pos):
        while cap > 0:
            v = next((v for v in pend[:40] if ready(v) and dok(v)), None)
            if v is not None:
                cap -= issue_one(v)
                continue
            x = extras[0] if extras and extras[0]["at"] <= pos else None
            if x is None:
                break
            ns = 0
            while x["items"] and cap > 0 and ns < 2:
                c_ = emit_item(x["items"].pop(0))
                cap -= c_
                ns += c_ == 0
            if not x["items"]:
                extras.pop(0)
            if ns >= 2:
                break

    def flush(pos):
        last = -1
        for i_, x in enumerate(extras):
            if x["dl"] is not None and x["dl"] <= pos:
                last = i_
        for _ in range(last + 1):
            x = extras.pop(0)
            for it in x["items"]:
                emit_item(it)

    def barrier(h):
        if cfg.get("fr", 0) == 0:
            ks = []
            for v in order:
                if v["pub"] == h - 1 and v["slot"] is not None:
                    while v["q"]:
                        assert ready(v)
                        issue_one(v)
                    ks.append(v["key"])
            A.ds_need(ks)
        for fn in prebar.get(h, []):
            fn()
        if cfg.get("fine"):
            if h >= h0 and (h - h0 < 64 or cfg["fine"] == 2):
                A.e(f"v_writelane_b32 v41, s96, {(h - h0) & 63}")
                A.e(f"v_writelane_b32 v42, s98, {(h - h0) & 63}")
            A.e("s_memtime s[96:97]")
        A.e("s_barrier")
        if cfg.get("fine"):
            A.e("s_memtime s[98:99]")
        state["pub"] = h

    flush((-1, 99))
    barrier(h0 - 1)
    stamp(A, 1, cfg)
    fill(100, (h0, -1))
    inited = set()
    CAP = cfg.get("cap", 2)
    for n_, (h, i, (a, t, p)) in enumerate(seq):
        if i == 0:
            A.block()
            if h == hp2 + 1 and main:
                K["xbase"] = base["X"]
            if h == hp2:
                inited = set()
                stamp(A, 2, cfg)
            if h == hd:
                stamp(A, 3, cfg)
        flush((h, i))
        for k in (t, p):
            if k in vals:
                v = vals[k]
                while v["q"]:
                    assert ready(v), (k, h, i)
                    issue_one(v)
        A.ds_need([t, p])
        treg = vals[t]["reg"]
        preg = PC if p == "PC" else vals[p]["reg"]
        A.e(f"{MF} {vr(a, 4)}, {vr(treg, 4)}, {vr(preg, 4)}, {vr(a, 4) if a in inited else 0}")
        inited.add(a)
        state["n"] = n_
        fx = fixes.get((h, i // 4 + 1) if i < 28 else (h + 1, 0)) if h >= hp2 else None
        if fx:
            v = vals[fx[0]]
            while v["q"]:
                assert ready(v)
                issue_one(v)
            A.ds_need([fx[0]])
            A.e(fx[1][i & 3])
        if i == BA:
            barrier(h)
        ce = main and (K["aend"] <= h < K["drA"] or hp2 <= h < K["drB"])
        fill((cfg.get("cape", 2) if ce else CAP if h < H - 1 else cfg.get("capl", 3)) - (1 if fx else 0), (h, i))
    A.block()
    flush((10 ** 6, 0))
    for x in extras:
        for it in x["items"]:
            emit_item(it)
    if h1 < H:
        return A
    stamp(A, 5, cfg)
    A.e(f"s_mov_b32 s{S_TO}, 0x40000")
    for S in range(2):
        if S == 1:
            stamp(A, 6, cfg)
        for rb2 in range(2):
            if (S, rb2) == cfg.get("rcvB", (1, 0)):
                if cfg.get("rslp"):
                    A.e(f"s_sleep {cfg['rslp']}")
                for r_ in range(2):
                    for d in range(3):
                        A.vm_issue(rcv(1, r_, d), ("RV", 1, r_))
            A.vm_need([("RV", S, rb2)])
            nm = f"{S}{rb2}"
            A.label(f"L_rv_{nm}")
            w = [rvr(S, rb2, d) + i for d in range(3) for i in range(4)]
            A.e(f"v_max3_u32 v2, v{w[0]}, v{w[1]}, v{w[2]}")
            A.e(f"v_max3_u32 v3, v{w[3]}, v{w[4]}, v{w[5]}")
            A.e(f"v_max3_u32 v2, v2, v{w[6]}, v{w[7]}")
            A.e(f"v_max3_u32 v3, v3, v{w[8]}, v{w[9]}")
            A.e(f"v_max3_u32 v2, v2, v{w[10]}, v{w[11]}")
            A.e(f"v_max_u32 v2, v2, v3")
            A.e(f"v_cmp_eq_u32 vcc, -1, v2")
            A.e("s_nop 4")
            A.e(f"s_cbranch_vccnz L_rr_{nm}")
            A.label(f"L_rk_{nm}")
            again = [rcv(S, rb2, d) for d in range(3)] + ([rcv(S, 1, d) for d in range(3)] if rb2 == 0 else [])
            A.ool["rv" + nm] = [f"L_rr_{nm}:", f"    s_sub_u32 s{S_TO}, s{S_TO}, 1", f"    s_cbranch_scc1 L_rk_{nm}"] + \
                [f"    {t}" for t in again] + ["    s_waitcnt vmcnt(0)", f"    s_branch L_rv_{nm}"]
            k = acc(S, rb2, 0)
            for d in range(3):
                for i in range(8):
                    A.e(f"v_dot2c_f32_bf16 v{k + i}, s{sHI if i & 1 else sLO}, v{rvr(S, rb2, d) + (i >> 1)}")
            for i in range(4):
                A.e(f"v_cvt_pk_bf16_f32 v{k + i}, v{k + 2 * i}, v{k + 2 * i + 1}")
            A.e(f"v_permlane16_swap_b32 v{k}, v{k + 2}")
            A.e(f"v_permlane16_swap_b32 v{k + 1}, v{k + 3}")
            A.vm_issue(f"buffer_store_dwordx4 {vr(k, 4)}, v{VO[S][rb2]}, {sr(S_O, 4)}, 0 offen", "O")
    return A


XA, XB, VW1, VW2, VC = [8, 9, 10, 11], [12, 13, 14, 15], [16, 17, 18, 19], [20, 21, 22, 23], [24, 25, 26, 27]
VHA, VHB, VWR = 28, 29, [30, 31, 32]
VCF, VCL = 33, 34
VFA, VFL, VSA, VSD, VFO, VONE = 49, 50, 51, 52, 56, 57
CT = 58
VAT = [74, 75, 76, 77]
VCI = [84, 85, 86, 87]
sQD = 54
SB = 80
VP1, VP2, VQ = 35, 36, 37
sPL, sMK, sBA, sBB, sSC = 56, 57, 58, 59, 53
sPW, sKA, sKB, sKW, sW, sHA, sHB, sW2, sD, sDC, sONE, sFLG, sK3 = 40, 41, 42, 43, 44, 45, 46, 47, 48, 49, 50, 51, 52


def producer(cfg, HS, K, h0, h1, fused):
    A = St()
    main = h0 == 0
    NB = cfg.get("nb", 6)
    sc = " sc1" if fused else ""
    FR = cfg.get("fr", 0)
    H = K["H"]
    UT = K["UT"]
    if not main:
        K = dict(K)
        K["pAT"] = max(K["pAT"], h0) if not HS[h0]["D"] else -50
        K["scr"] = cfg.get("scr2", 36)
    UN = []
    nst = 0
    for h in range(h0, h1):
        e = HS[h]
        if e["ld"]:
            typ = "AT" if e["D"] else ("W1" if e["ph"] == 1 else "W2")
            UN.append(dict(h=h, i=e["d"], typ=typ, minb=K["pAT"] if e["D"] else -99, e=e, st=None, dl=h - 2))
        if e["D"]:
            if e["ldr"]:
                UN.append(dict(h=h, i=e["r"], typ="C", minb=-99, e=e, st=None, dl=h - 2))
        elif not (main and e["own"]):
            typ = ("X" if e["ph"] == 1 else "H") + "AB"[e["S"]]
            minb = -99
            st = None
            if fused and typ[0] != "X":
                own = typ != "AT" and e["j"] < 2
                minb = {"HA": K["drA" if own else "pA"] if main else -99, "HB": K["drB" if own else "pB"] if main else -99, "AT": K["pAT"]}[typ]
                if cfg.get("stage"):
                    st = h % NB
            if cfg.get("allst") and typ[0] in cfg["allst"]:
                st = nst % NB
                nst += 1
            UN.append(dict(h=h, i=e["r"], typ=typ, minb=minb, e=e, st=st, dl=h - 2))
    nxt = {}
    for u in UN:
        if not u["e"]["D"]:
            j = u["e"]["j"]
            u["jmp"] = (j - nxt.get(u["typ"], 2 if (main and u["typ"][0] == "H" and cfg.get("ownl")) else 0)) % (16 if u["e"]["ph"] == 1 else 14)
            nxt[u["typ"]] = j + 1
    A.e(f"s_sub_u32 s{sPW}, s{S_WAVE}, 4")
    A.e(f"s_lshl_b32 s{sD}, s{sPW}, 12")
    A.e(f"v_lshrrev_b32 v3, 4, v{VL}")
    A.e(f"v_and_b32 v2, 15, v{VL}")
    A.e(f"v_lshlrev_b32 v4, 1, v3")
    A.e(f"v_xor_b32 v2, v2, v4")
    A.e(f"v_lshlrev_b32 v2, 4, v2")

    def wrap14(s):
        return [f"s_add_u32 s{s}, s{s}, {U}", f"s_cmp_eq_u32 s{s}, {14 * U}", f"s_cselect_b32 s{s}, 0, s{s}"]

    def jmp16(s, n):
        return [f"s_add_u32 s{s}, s{s}, {n * 128}", f"s_and_b32 s{s}, s{s}, 2047"] if n else []

    def jmp14(s, n):
        return [f"s_add_u32 s{s}, s{s}, {n * U}", f"s_sub_u32 s{sBB}, s{s}, {14 * U}", f"s_cselect_b32 s{s}, s{s}, s{sBB}"] if n else []

    def pollF(r):
        return f"buffer_load_dword v{r}, v{VP1}, {sr(S_WS, 4)}, s{sPL} offen sc1"

    def tile_check(sp, o):
        sb = sBA
        return [f"s_lshr_b32 s{sb}, s{sp}, 15", f"s_add_u32 s{sb}, s{sb}, {o}", f"s_bitcmp1_b32 s{sMK}, s{sb}", "s_cbranch_scc1 L_tk@", f"s_mov_b32 s{S_TO}, 0x40000", "L_tl@:", pollF(VQ + 1), "s_waitcnt vmcnt(0)",
                f"v_cmp_ne_u32 vcc, 0, v{VQ + 1}", f"s_or_b32 s{sMK}, s{sMK}, vcc_lo", f"s_bitcmp1_b32 s{sMK}, s{sb}", "s_cbranch_scc1 L_tj@",
                f"s_sub_u32 s{S_TO}, s{S_TO}, 1", "s_cbranch_scc0 L_tl@", "L_tj@:", "L_tk@:"]

    def init_w1():
        A.e(f"s_mul_i32 s{S_T0}, s{S_Q}, 7")
        A.e(f"s_add_u32 s{S_T0}, s{S_T0}, s{S_NT}")
        A.e(f"s_lshl_b32 s{S_T0}, s{S_T0}, 8")
        A.e(f"s_mul_i32 s{S_T1}, s{sPW}, {16 * 7168}")
        A.e(f"s_add_u32 s{S_T0}, s{S_T0}, s{S_T1}")
        A.e(f"s_sub_u32 s{S_T0}, s{S_T0}, 256")
        A.e(f"v_mul_u32_u24 v4, 7168, v3")
        A.e(f"v_add3_u32 v{VW1[0]}, v4, v2, s{S_T0}")
        A.e(f"v_add_u32 v{VW1[1]}, {4 * 7168 - 1024}, v{VW1[0]}")
        A.e(f"v_xor_b32 v4, 128, v{VW1[0]}")
        A.e(f"v_add_u32 v{VW1[2]}, {8 * 7168 - 2048}, v4")
        A.e(f"v_add_u32 v{VW1[3]}, {12 * 7168 - 3072}, v4")
        rot = cfg.get("rot", 0)
        A.e(f"s_mul_i32 s{sKW}, s{S_Q}, {rot * 128}")
        A.e(f"s_mul_i32 s{S_T0}, s{S_PAR}, {cfg.get('rotp', 0) * 128}")
        A.e(f"s_add_u32 s{sKW}, s{sKW}, s{S_T0}")
        A.e(f"s_and_b32 s{sKW}, s{sKW}, 2047")
        A.e(f"s_mov_b32 s{sKA}, s{sKW}")
        A.e(f"s_mov_b32 s{sKB}, s{sKW}")

    def chunk(vd):
        A.e(f"v_and_b32 v{vd}, 7, v{VL}")
        A.e(f"v_lshrrev_b32 v6, 4, v{VL}")
        A.e(f"v_xor_b32 v{vd}, v{vd}, v6")
        A.e(f"v_lshlrev_b32 v{vd}, 4, v{vd}")

    def init_xa():
        A.e(f"v_lshrrev_b32 v4, 3, v{VL}")
        A.e(f"s_lshl_b32 s{S_T0}, s{sPW}, 5")
        A.e(f"v_add_u32 v4, s{S_T0}, v4")
        t_of(A, 4, 4, S_T0)
        chunk(5)
        A.e(f"v_lshl_add_u32 v{XA[0]}, v4, 11, v5")
        A.e(f"v_xor_b32 v6, 64, v{XA[0]}")
        A.e(f"v_add_u32 v{XA[1]}, {16 * 2048 - 1024}, v6")
        A.e(f"v_add_u32 v{XA[2]}, {32 * 2048 - 2048}, v{XA[0]}")
        A.e(f"v_add_u32 v{XA[3]}, {48 * 2048 - 3072}, v6")

    def init_xb():
        mirror_t(A, CT, 4, 6)
        A.e(f"v_lshl_add_u32 v{XB[0]}, v{CT}, 11, v5")
        A.e(f"v_sub_u32 v4, 2048, v4")
        A.e(f"v_lshl_add_u32 v4, v4, 11, v5")
        A.e(f"v_xor_b32 v6, 64, v4")
        A.e(f"v_subrev_u32 v{XB[1]}, {16 * 2048 + 1024}, v6")
        A.e(f"v_subrev_u32 v{XB[2]}, {32 * 2048 + 2048}, v4")
        A.e(f"v_subrev_u32 v{XB[3]}, {48 * 2048 + 3072}, v6")

    def init_p1_rest():
        A.e(f"v_and_b32 v{VFA}, 31, v{VL}")
        A.e(f"v_lshlrev_b32 v{VFA}, 2, v{VFA}")
        A.e(f"s_lshr_b32 s{S_T0}, s{sPW}, 1")
        A.e(f"s_lshl_b32 s{S_T0}, s{S_T0}, 5")
        A.e(f"s_and_b32 s{S_T1}, s{sPW}, 1")
        A.e(f"s_lshl3_add_u32 s{S_T0}, s{S_T1}, s{S_T0}")
        A.e(f"v_lshrrev_b32 v4, 3, v{VL}")
        A.e(f"v_add_u32 v4, s{S_T0}, v4")
        A.e(f"v_and_b32 v5, 1, v{VL}")
        A.e(f"v_lshl_add_u32 v4, v5, 4, v4")
        A.e(f"v_bfe_u32 v5, v{VL}, 1, 1")
        A.e(f"v_lshl_add_u32 v4, v5, 6, v4")
        t_of(A, 4, 4, S_T0)
        mirror_t(A, 5, 4, 6)
        A.e(f"v_and_b32 v6, 4, v{VL}")
        A.e(f"v_cmp_ne_u32 vcc, 0, v6")
        A.e(f"v_cndmask_b32 v4, v4, v5, vcc")
        A.e(f"v_lshlrev_b32 v{VSA}, 3, v4")

    def init_fl():
        A.e(f"s_lshl_b32 s{sFLG}, s{S_G}, 7")
        A.e(f"s_lshl_b32 s{S_T0}, s{S_NT}, 2")
        A.e(f"s_add_u32 s{sFLG}, s{sFLG}, s{S_T0}")
        A.e(f"s_add_u32 s{sFLG}, s{sFLG}, {WS_FLAG}")
        A.e(f"v_add_u32 v4, s{sPW}, v{VL}")
        A.e(f"v_min_u32 v4, 1, v4")
        A.e(f"v_lshlrev_b32 v{VFO}, 30, v4")
        A.e(f"v_mov_b32 v{VONE}, 1")

    def init_p2():
        A.e(f"v_lshrrev_b32 v3, 4, v{VL}")
        A.e(f"v_and_b32 v2, 15, v{VL}")
        A.e(f"v_lshlrev_b32 v4, 1, v3")
        A.e(f"v_xor_b32 v2, v2, v4")
        A.e(f"v_lshlrev_b32 v2, 4, v2")
        A.e(f"s_lshl_b32 s{S_T0}, s{S_QB}, 7")
        A.e(f"v_xor_b32 v2, s{S_T0}, v2")
        A.e(f"s_mul_i32 s{S_T0}, s{S_Q}, {14 * 64}")
        A.e(f"s_lshr_b32 s{S_T1}, s{sPW}, 1")
        A.e(f"s_lshl_b32 s{S_T1}, s{S_T1}, 5")
        A.e(f"s_add_u32 s{S_T0}, s{S_T0}, s{S_T1}")
        A.e(f"s_and_b32 s{S_T1}, s{sPW}, 1")
        A.e(f"s_lshl_b32 s{S_T1}, s{S_T1}, 3")
        A.e(f"s_add_u32 s{S_T0}, s{S_T0}, s{S_T1}")
        A.e(f"s_lshl_b32 s{S_T0}, s{S_T0}, 11")
        A.e(f"s_lshl_b32 s{S_T1}, s{S_NT}, 8")
        A.e(f"s_add_u32 s{S_T0}, s{S_T0}, s{S_T1}")
        A.e(f"v_lshl_add_u32 v4, v3, 11, v2")
        A.e(f"v_add_u32 v{VW2[0]}, s{S_T0}, v4")
        A.e(f"v_add_u32 v{VW2[1]}, {16 * 2048 - 1024}, v{VW2[0]}")
        A.e(f"v_xor_b32 v4, 128, v{VW2[0]}")
        A.e(f"v_add_u32 v{VW2[2]}, {4 * 2048 - 2048}, v4")
        A.e(f"v_add_u32 v{VW2[3]}, {20 * 2048 - 3072}, v4")
        A.e(f"s_lshl_b32 s{S_T0}, s{S_PAR}, 2")
        A.e(f"s_add_u32 s{S_T0}, s{S_T0}, s{S_MLO}")
        A.e(f"s_mul_i32 s{S_T0}, s{S_T0}, 112")
        A.e(f"s_mul_i32 s{S_T1}, s{S_Q}, 14")
        A.e(f"s_add_u32 s{S_T0}, s{S_T0}, s{S_T1}")
        A.e(f"s_lshl_b32 s{S_T0}, s{S_T0}, 14")
        A.e(f"v_lshl_add_u32 v{VWR[0]}, v{VL}, 4, s{sD}")
        A.e(f"v_add_u32 v{VWR[1]}, {3 * U}, v{VWR[0]}")
        A.e(f"v_add_u32 v{VWR[2]}, {6 * U}, v{VWR[0]}")
        A.e(f"v_add_u32 v{VHA}, s{S_T0}, v{VWR[0]}")
        A.e(f"v_add_u32 v{VHB}, {56 * U}, v{VHA}")
        A.e(f"s_max_u32 s{S_T0}, s{S_NT}, 1")
        A.e(f"s_sub_u32 s{S_T0}, s{S_T0}, 1")
        A.e(f"s_lshl_b32 s{sHA}, s{S_T0}, 15")
        A.e(f"s_mov_b32 s{sW2}, s{sHA}")
        if main and cfg.get("ownl"):
            for t in wrap14(sHA) + wrap14(sHA):
                A.e(t)
        A.e(f"s_mov_b32 s{sMK}, 0")
        A.e(f"s_mov_b32 s{sHB}, s{sHA}")
        A.e(f"s_lshl_b32 s{sPL}, s{S_G}, 7")
        A.e(f"s_add_u32 s{sPL}, s{sPL}, {WS_FLAG}")
        A.e(f"v_and_b32 v{VP1}, 15, v{VL}")
        A.e(f"v_lshlrev_b32 v{VP1}, 2, v{VP1}")
        A.e(f"s_mul_i32 s{sQD}, s{S_MLO}, {cfg.get('qdm', 1)}")
        A.e(f"s_add_u32 s{sQD}, s{sQD}, s{S_Q}")
        A.e(f"s_and_b32 s{sQD}, s{sQD}, 3")
        A.e(f"s_lshl_b32 s{S_T0}, s{sQD}, 3")
        A.e(f"s_and_b32 s{S_T1}, s{S_NT}, {cfg.get('qdn', 1)}")
        A.e(f"s_lshl1_add_u32 s{sQD}, s{sQD}, s{S_T1}")
        A.e(f"s_lshl_b32 s{sQD}, s{sQD}, 7")
        A.e(f"v_add_u32 v{VP2}, s{S_T0}, v{VL}")
        A.e(f"v_cmp_gt_u32 vcc, 8, v{VL}")
        A.e(f"v_cndmask_b32 v{VP2}, 0, v{VP2}, vcc")
        A.e(f"v_lshlrev_b32 v{VP2}, 7, v{VP2}")
        A.e(f"v_add_u32 v{VP2}, {WS_FLAG}, v{VP2}")

    def init_dft():
        A.e(f"s_lshl_b32 s{S_T0}, s{sPW}, 5")
        A.e(f"v_lshrrev_b32 v4, 3, v{VL}")
        A.e(f"v_add_u32 v4, s{S_T0}, v4")
        t_of(A, 4, 4, S_T0)
        chunk(5)
        A.e(f"v_lshl_add_u32 v{VC[0]}, v4, 12, v5")
        A.e(f"v_xor_b32 v6, 64, v{VC[0]}")
        A.e(f"v_add_u32 v{VC[1]}, {16 * 4096 - 1024}, v6")
        A.e(f"v_add_u32 v{VC[2]}, {32 * 4096 - 2048}, v{VC[0]}")
        A.e(f"v_add_u32 v{VC[3]}, {48 * 4096 - 3072}, v6")
        mirror_t(A, CT, 4, 6)
        A.e(f"v_lshl_add_u32 v{VCI[0]}, v{CT}, 12, v5")
        A.e(f"v_sub_u32 v4, 2048, v4")
        A.e(f"v_lshl_add_u32 v4, v4, 12, v5")
        A.e(f"v_xor_b32 v6, 64, v4")
        A.e(f"v_subrev_u32 v{VCI[1]}, {16 * 4096 + 1024}, v6")
        A.e(f"v_subrev_u32 v{VCI[2]}, {32 * 4096 + 2048}, v4")
        A.e(f"v_subrev_u32 v{VCI[3]}, {48 * 4096 + 3072}, v6")
        A.e(f"s_cmp_ge_u32 s{S_NT}, 4")
        A.e(f"s_cselect_b64 vcc, -1, 0")
        for i in range(4):
            A.e(f"v_cndmask_b32 v{VCI[i]}, v{VCI[i]}, v{VC[i]}, vcc")
        A.e(f"s_lshl_b32 s{S_T0}, s{sPW}, 5")
        A.e(f"s_lshl_b32 s{S_T2}, s{S_QB}, 6")
        A.e(f"s_xor_b32 s{S_T0}, s{S_T0}, s{S_T2}")
        A.e(f"s_lshl_b32 s{S_T1}, s{S_NT}, 7")
        A.e(f"s_add_u32 s{S_T1}, s{S_T0}, s{S_T1}")
        A.e(f"s_mov_b32 s{S_T0}, 0")
        A.e(f"s_mul_i32 s{S_T2}, s{S_PAR}, {AT_TP}")
        A.e(f"s_add_u32 s{S_T0}, s{S_T0}, s{S_T2}")
        A.e(f"s_add_u32 s{S_T0}, s{S_T0}, {WS_AT}")
        A.e(f"s_mov_b32 s{S_T3}, {AT_PE}")
        A.e(f"v_lshrrev_b32 v3, 4, v{VL}")
        A.e(f"v_lshl_add_u32 v3, v3, 9, s{S_T0}")
        for c2 in range(2):
            A.e(f"v_and_b32 v4, 15, v{VL}")
            A.e(f"v_add_u32 v4, s{S_T1}, v4")
            if c2:
                A.e(f"v_add_u32 v4, 16, v4")
            L = []
            mirror_e(L, 4, 5)
            for t in L:
                A.e(t)
            A.e(f"v_add_u32 v4, v3, v4")
            if c2:
                A.e(f"v_subrev_u32 v4, 2048, v4")
            A.e(f"v_mov_b32 v{VAT[2 * c2]}, v4")
            A.e(f"v_add_u32 v{VAT[2 * c2 + 1]}, 1024, v4")
        assert WS_BT - WS_AT == 1 << 21

    ax, aw1, aw2, ac = cfg.get("auxX", ""), cfg.get("auxW1", ""), cfg.get("auxW2", ""), cfg.get("auxC", "")

    def mkpieces(u):
        typ = u["typ"]
        pre, post = [], []
        aux = ""
        if typ[0] == "X":
            V, s = (XA, sKA) if typ == "XA" else (XB, sKB)
            srd_, aux = S_X, ax
            pre += jmp16(s, u["jmp"])
            post = [f"s_add_u32 s{s}, s{s}, 128", f"s_and_b32 s{s}, s{s}, 2047"]
        elif typ[0] == "H":
            V, s = ([VHA] * 4, sHA) if typ == "HA" else ([VHB] * 4, sHB)
            srd_, aux = S_WS, sc
            post = wrap14(s)
            pre += jmp14(s, u["jmp"])
            if (u["e"]["j"] % 2 == 0 or u["jmp"]) and not (main and u["e"]["j"] < 2 and (typ == "HA" or cfg.get("ownchk", 0) == 0)):
                pre += tile_check(s, 1 if typ == "HA" else 9)
        elif typ == "AT":
            V, s, srd_, aux = VAT, sK3, S_WS, sc
            pre = [f"s_lshl_b32 s{sK3}, s{sQD}, 5", f"s_xor_b32 s{sK3}, s{sK3}, {int(u['e']['j'][1]) * 4096 + ((u['e']['j'][0] == 'I') << 21)}"]
        elif typ == "W1":
            pre += jmp16(sKW, u["jmp"])
            pre.append(f"s_mul_i32 s{sW}, s{sKW}, {64 * 7168 // 128}")
            V, srd_, s, aux = VW1, S_W1, sW, aw1
            post = [f"s_add_u32 s{sKW}, s{sKW}, 128", f"s_and_b32 s{sKW}, s{sKW}, 2047"]
        elif typ == "W2":
            pre += jmp14(sW2, u["jmp"])
            pre.append(f"s_lshl_b32 s{sW}, s{sW2}, 3")
            V, srd_, s, aux = VW2, S_W2, sW, aw2
            post = wrap14(sW2)
        else:
            V, srd_, s, aux = (VC, S_CR, sDC, ac) if u["e"]["j"][0] == "R" else (VCI, S_CI, sDC, ac)
            pre = [f"s_xor_b32 s{sDC}, s{sQD}, {int(u['e']['j'][1]) * 128}"]
        if u["st"] is None:
            vm = [f"buffer_load_dwordx4 v{V[p]}, {sr(srd_, 4)}, s{s} offen offset:{p * 1024}{aux} lds" for p in range(4)]
        else:
            b = SB + 16 * u["st"]
            vm = [f"buffer_load_dwordx4 {vr(b + 4 * p, 4)}, v{V[p]}, {sr(srd_, 4)}, s{s} offen offset:{p * 1024} sc1" for p in range(4)]
        return [(pre if p == 0 else [], vm[p], post if p == 3 else []) for p in range(4)]

    byI = {u["i"]: u for u in UN}
    Q = list(UN)
    m0 = [None]
    lastst = {}

    def can(u, b):
        if "pcs" in u:
            return True
        if u["minb"] > b:
            return False
        if u["st"] is not None:
            p = lastst.get(u["st"])
            return p is None or p["h"] - 2 < b
        fb = UT[u["i"]]["fb"]
        return fb < h0 or fb <= b

    def next_piece(b, only=None):
        seen = set()
        u = None
        for c in Q[:12]:
            k = "W" if c["typ"] in ("W1", "W2") else c["typ"]
            if k not in seen and (only is None or c["typ"] == only) and can(c, b):
                u = c
                break
            seen.add(k)
        if u is None:
            return False
        if "pcs" not in u:
            u["pcs"] = mkpieces(u)
            if u["st"] is not None:
                lastst[u["st"]] = u
        pre, vm, post = u["pcs"].pop(0)
        if u["st"] is None and m0[0] != UT[u["i"]]["slot"]:
            m0[0] = UT[u["i"]]["slot"]
            A.e(f"s_add_u32 m0, s{sD}, {m0[0] * U}")
        for t in pre:
            if t.endswith(":"):
                A.label(t[:-1])
            else:
                A.e(t)
        if not (cfg.get("novm") and u["typ"][0] in cfg["novm"]):
            A.vm_issue(vm, u["i"])
        for t in post:
            A.e(t)
        if not u["pcs"]:
            Q.remove(u)
            u["iss"] = True
        return True

    def issue_some(b, lim, only=None):
        while lim > 0 and next_piece(b, only):
            lim -= 1

    def due(b):
        return sum(len(u.get("pcs", [0] * 4)) for u in Q if u["dl"] <= b)

    def pub_w(hh):
        F = []
        for u in UN:
            if u["h"] == hh and u["st"] is not None:
                b = SB + 16 * u["st"]
                sl = UT[u["i"]]["slot"]

                def need(u=u):
                    assert u.get("iss"), ("not issued", u)
                    A.vm_need([u["i"]])
                F.append((0, need))
                for p in range(4):
                    t = f"ds_write_b128 v{VWR[sl // 3]}, {vr(b + 4 * p, 4)} offset:{(sl % 3) * U + p * 1024}"
                    F.append((26, lambda t=t: A.ds_issue(t, "w")))
        return F

    def pub_d(b):
        for u in UN:
            if u["dl"] <= b and u["st"] is None:
                assert u.get("iss"), ("not issued", u)
                A.vm_need([u["i"]])

    pollS = f"buffer_load_dword v{VFL}, v{VFA}, {sr(S_DBG, 4)}, 0 offen sc1"
    bC = K["cs"] - 1
    bS = bC - cfg.get("stat_lead", 6)

    def flag(off):
        A.vm_issue(f"buffer_store_dword v{VONE}, v{VFO}, {sr(S_WS, 4)}, s{sFLG} offen offset:{off} sc1", "F")

    spf = {}
    if main and h1 == H and cfg.get("spf"):
        b0, per = cfg["spf"]
        sPB, sPT, sPO = 88, 89, 90
        spf[b0 - 1] = [f"s_lshl2_add_u32 s{sPB}, s{S_MLO}, s{sPW}", f"s_lshl1_add_u32 s{sPB}, s{sPB}, s{S_PAR}", f"s_lshl_b32 s{sPB}, s{sPB}, 13",
                       f"s_mul_i32 s{S_T0}, s{S_Q}, {896 * 8}", f"s_add_u32 s{S_T0}, s{S_T0}, s{S_NT}", f"s_lshl_b32 s{S_T0}, s{S_T0}, 8",
                       f"s_add_u32 s{sPB}, s{sPB}, s{S_T0}", f"s_sub_u32 s{sPT}, s{S_NT}, 1", f"s_lshl_b32 s{sPT}, s{sPT}, 18"]
        PFL = []
        for k in range(56):
            L = []
            if k % 8 == 0:
                L += [f"s_add_u32 s{sPO}, s{sPB}, s{sPT}", f"s_add_u32 s{sPT}, s{sPT}, {1 << 18}", f"s_cmp_eq_u32 s{sPT}, {7 << 18}", f"s_cselect_b32 s{sPT}, 0, s{sPT}"]
            L.append(f"s_buffer_load_dwordx2 s[92:93], {sr(S_W2, 4)}, s{sPO} offset:{(k % 8 >> 1) * 2048 + (k & 1) * 128 + 60}")
            PFL.append(L)
        if cfg.get("spc") is not None:
            spf[b0 - 1] += [f"s_lshl2_add_u32 s{S_T0}, s{S_NT}, s{sPW}", f"s_lshl_b32 s{S_T1}, s{S_MLO}, 7", f"s_add_u32 s{S_T0}, s{S_T0}, s{S_T1}",
                            f"s_sub_u32 s{S_T0}, s{S_T0}, 4", f"s_lshl1_add_u32 s{S_T0}, s{S_T0}, s{S_PAR}", f"s_lshl_b32 s{S_T0}, s{S_T0}, 12",
                            f"s_and_b32 s{S_T1}, s{sQD}, 0x300", f"s_add_u32 s91, s{S_T0}, s{S_T1}", f"s_sub_u32 s94, s{S_T1}, s{S_T0}", f"s_add_u32 s94, s94, {(2048 - 224) * 4096}"]
            CL = [[f"s_buffer_load_dwordx2 s[92:93], {sr(sd, 4)}, s{sb} offset:{i * 56 * 4096 + ln * 128 + 60}"]
                  for grp in (((S_CR, 91),), ((S_CI, 91), (S_CI, 94))) for ln in range(2) for sd, sb in grp for i in range(5)]
            PFL = PFL[:cfg["spc"]] + CL + PFL[cfg["spc"]:]
        for k, L in enumerate(PFL):
            spf.setdefault(b0 + int(k / per), []).extend(L)
    ramp = list(cfg.get("ramp", [12, 12, 12]))
    lim = cfg.get("lim", 8)
    bgp = cfg.get("bgp", [K["pA"] - 1, K["pA"] + 1, K["pA"] + 3, K["pB"] - 1, K["pB"] + 1, K["pB"] + 3])
    polls = {
             "pAT": (f"buffer_load_dword v{VQ + 3}, v{VP2}, {sr(S_WS, 4)}, 0 offen offset:96 sc1", VQ + 3)}
    if main:
        init_w1()
        issue_some(-99, 4)
        init_xa()
        issue_some(-99, 4)
        init_xb()
        issue_some(-99, ramp[0] - 8)
        init_p1_rest()
        init_fl()
        if h1 > K["p2"]:
            init_p2()
            init_dft()
    else:
        init_p2()
        init_fl()
        lead = cfg.get("lead2", 1)
        if fused:
            A.e(f"v_and_b32 v{VFA}, 31, v{VL}")
            A.e(f"v_lshlrev_b32 v{VFA}, 2, v{VFA}")
            A.vm_issue(pollS, "PS")
            issue_some(-99, 4 * lead, "W2")
            init_dft()
            if HS[h0]["D"]:
                issue_some(-99, 8, "C")
                check_poll(A, "S", pollS, VFL, "PS")
                A.vm_issue(polls["pAT"][0], "pAT")
                check_poll(A, "pAT", polls["pAT"][0], polls["pAT"][1], "pAT")
                issue_some(h0 - 3, 8, "AT")
                ramp[0] = 0
            issue_some(h0 - 3, ramp[0])
        else:
            issue_some(-99, ramp[0])
            init_dft()
    stamp(A, 1, cfg)
    for c_, fn in pub_w(h0):
        fn()
    pub_d(h0 - 2)
    if A.ds:
        A.ds_drain()
    last = h1 - 1
    for b in range(h0 - 1, last + 1):
        A.block()
        A.e("s_barrier")
        if cfg.get("finep"):
            A.e("s_memtime s[96:97]")
        if fused:
            if main and b == K["drA"]:
                flag(0)
                flag(64)
            if main and b == K["drB"]:
                flag(32)
            if not main and b == K["scr"] + 14:
                flag(64)
            for nm, (ld_, rg) in polls.items():
                if b == K[nm]:
                    check_poll(A, nm, ld_, rg, nm)
            if b - 1 in bgp and b - 1 >= h0 - 1:
                A.vm_need(["BG"])
                A.e(f"v_cmp_ne_u32 vcc, 0, v{VQ}")
                A.e(f"s_or_b32 s{sMK}, s{sMK}, vcc_lo")
            if b in bgp:
                A.vm_issue(pollF(VQ), "BG")
            for nm, (ld_, rg) in polls.items():
                if b == K[nm] - 1 and b != h0 - 1:
                    A.vm_issue(ld_, nm)
        F = pub_w(b + 2)
        k = b - (h0 - 1) + 1
        lm = lim
        du = due(b)
        nv = max(ramp[k] if k < len(ramp) else lm, du) - du
        issue_some(b, du)
        gap = cfg.get("gap", 60)
        done = 0
        acc_ = 0
        for c_, fn in F:
            while done < nv and acc_ >= done * gap:
                next_piece(b)
                done += 1
            fn()
            acc_ += c_
        issue_some(b, nv - done)
        for t in spf.get(b, []):
            A.e(t)
        if cfg.get("finep"):
            A.e("s_memtime s[98:99]")
        if fused and not main:
            if b == h0 - 1 and not HS[h0]["D"]:
                assert K["pAT"] - 1 >= b
                check_poll(A, "S", pollS, VFL, "PS")
        if main:
            if b == bS:
                A.vm_issue(pollS, "PS")
            if b == bS + 3:
                check_poll(A, "S", pollS, VFL, "PS")
                A.e(f"s_mov_b32 s{S_T0}, {WS_ST}")
                A.e(f"s_lshl_b32 s{S_T1}, s{sPW}, 8")
                A.e(f"s_add_u32 m0, s{S_T1}, {L_PM}")
                m0[0] = None
                A.vm_issue(f"buffer_load_dword v{VSA}, {sr(S_WS, 4)}, s{S_T0} offen sc1 lds", "SD")
                A.e(f"s_mov_b32 s{S_T0}, {WS_ST + 4}")
                A.e(f"s_add_u32 m0, s{S_T1}, {L_PM + 1024}")
                A.vm_issue(f"buffer_load_dword v{VSA}, {sr(S_WS, 4)}, s{S_T0} offen sc1 lds", "SD")
            if b == bC:
                A.vm_need(["SD"])
        if fused:
            for nm, (ld_, rg) in polls.items():
                if b == K[nm] - 1 and b == h0 - 1:
                    A.vm_issue(ld_, nm)
            if b >= K["scr"] and (b - K["scr"]) % 2 == 0 and b < K["scr"] + 12:
                k_ = (b - K["scr"]) // 2
                if k_ == 0:
                    A.e(f"s_mul_i32 s{sSC}, s2, {cfg.get('pst', 3 * U)}")
                    A.e(f"s_add_u32 s{sSC}, s{sSC}, {WS_PART + cfg.get('scro', 0)}")
                    for i_ in range(4):
                        A.e(f"v_mov_b32 v{SB + i_}, -1")
                for i_ in range(2):
                    A.vm_issue(f"buffer_store_dwordx4 {vr(SB, 4)}, v{VWR[0]}, {sr(S_WS, 4)}, s{sSC} offen offset:{(k_ & 1) * 2048 + i_ * 1024}{cfg.get('scrx', ' sc1')}", "SCR")
                if k_ & 1:
                    A.e(f"s_add_u32 s{sSC}, s{sSC}, {U}")
            if b == (K["drA"] - 1 if main else K["scr"] + 13):
                A.vm_need(["SCR"])
        pub_d(b)
        if A.ds:
            A.ds_drain()
        if cfg.get("finep"):
            A.e("s_memtime s[100:101]")
            A.e("s_waitcnt lgkmcnt(0)")
            for i_ in range(3 if (b + 1 - h0 < 64 or cfg["fine"] == 2) else 0):
                A.e(f"v_writelane_b32 v{253 + i_}, s{96 + 2 * i_}, {(b + 1 - h0) & 63}")
        if b == K["dft"]:
            stamp(A, 3, cfg)
    A.block()
    assert not Q
    return A


def common(A, cfg, end):
    A.e("s_cmp_ge_u32 s2, 256")
    A.e(f"s_cbranch_scc1 {end}")
    A.e("s_load_dwordx2 s[4:5], s[0:1], 0")
    A.e("s_load_dwordx4 s[88:91], s[0:1], 48")
    A.e("s_load_dwordx2 s[6:7], s[0:1], 80")
    A.e("s_load_dwordx4 s[8:11], s[0:1], 8")
    A.e("s_load_dwordx4 s[12:15], s[0:1], 24")
    A.e("s_load_dwordx4 s[92:95], s[0:1], 64")
    A.e("v_lshrrev_b32 v1, 6, v0")
    A.e(f"s_and_b32 s{S_Q}, s2, 3")
    A.e(f"v_readfirstlane_b32 s{S_WAVE}, v1")
    A.e(f"s_bfe_u32 s{S_PAR}, s2, 0x10002")
    A.e("v_and_b32 v1, 63, v0")
    A.e(f"s_bfe_u32 s{S_MLO}, s2, 0x20003")
    A.e(f"s_lshr_b32 s{S_NT}, s2, 5")
    A.e(f"s_and_b32 s{S_G}, s2, 31")
    A.e(f"s_lshr_b32 s{S_QB}, s2, 7")
    A.e(f"s_xor_b32 s{S_QB}, s{S_QB}, s2")
    A.e(f"s_and_b32 s{S_QB}, s{S_QB}, 1")
    if cfg.get("stamps"):
        A.e(f"v_mov_b32 v{STAMP_V}, 0")
    A.e("s_waitcnt lgkmcnt(0)")
    srd(A, S_W1, 88, 1024 * 3584 * 2)
    srd(A, S_X, 4, 2048 * 1024 * 2)
    srd(A, S_WS, 6, WS_BYTES)
    srd(A, S_W2, 90, 1024 * 3584 * 2)
    srd(A, S_DBG, 94, 256)
    srd(A, S_O, 92, 2048 * 1024 * 2)
    srd(A, S_CR, 8, 2048 * 2048 * 2)
    srd(A, S_CI, 10, 2048 * 2048 * 2)
    k1h.stamp(A, 0, enable=cfg.get("stamps"))


def fin(A, cfg, off):
    if cfg.get("stamps"):
        A.e("s_waitcnt vmcnt(0)")
        k1h.stamp(A, 4, enable=True)
        A.e("s_getreg_b32 s61, hwreg(HW_REG_XCC_ID)")
        A.e(f"v_writelane_b32 v{STAMP_V}, s61, 7")
        A.e(f"s_lshl_b32 s60, s2, 3")
        A.e(f"s_add_u32 s60, s60, s{S_WAVE}")
        A.e(f"s_lshl_b32 s60, s60, 8")
        A.e(f"s_add_u32 s60, s60, {WS_DBG + off}")
        A.e("v_and_b32 v1, 63, v0")
        A.e("v_lshlrev_b32 v1, 2, v1")
        A.e(f"buffer_store_dword v{STAMP_V}, v1, {sr(S_WS, 4)}, s60 offen")
        if cfg.get("fine"):
            for i_, r in enumerate((41, 42, 253, 254, 255)):
                A.e(f"s_add_u32 s60, s60, {2 << 20}")
                A.e(f"buffer_store_dword v{r}, v1, {sr(S_WS, 4)}, s60 offen")


def zero_line(A):
    A.e(f"v_and_b32 v2, 0x17, v{VL}")
    A.e(f"v_cmp_eq_u32 vcc, 0, v2")
    A.e(f"v_cndmask_b32 v2, 0, 1, vcc")
    A.e(f"v_lshrrev_b32 v4, 5, v0")
    A.e(f"v_min_u32 v4, 1, v4")
    A.e(f"v_lshlrev_b32 v3, 2, v{VL}")
    A.e(f"v_lshl_add_u32 v3, v4, 30, v3")
    A.e(f"s_lshl_b32 s{S_T0}, s{S_G}, 7")
    A.e(f"s_add_u32 s{S_T0}, s{S_T0}, {WS_FLAG}")
    A.vm_issue(f"buffer_store_dword v2, v3, {sr(S_WS, 4)}, s{S_T0} offen sc1", "Z")


def scrub_s(cfg):
    L = [f"s_mul_i32 s{S_T0}, s2, {cfg.get('pst', 3 * U)}", f"s_lshl_b32 s{S_T1}, s{S_WAVE}, 11", f"s_add_u32 s{S_T0}, s{S_T0}, s{S_T1}",
         f"s_add_u32 s{S_T0}, s{S_T0}, {WS_PART}", f"v_lshlrev_b32 v2, 4, v{VL}"] + [f"v_mov_b32 v{8 + i}, -1" for i in range(4)]
    for d in range(3):
        L += [f"buffer_store_dwordx4 v[8:11], v2, {sr(S_WS, 4)}, s{S_T0} offen offset:{1024 * i} sc1" for i in range(2)] + [f"s_add_u32 s{S_T0}, s{S_T0}, {U}"]
    return L


def at_flag(A):
    A.e("s_waitcnt vmcnt(0) lgkmcnt(0)")
    A.e("s_barrier")
    A.e(f"v_min_u32 v2, 1, v0")
    A.e(f"v_lshlrev_b32 v2, 30, v2")
    A.e(f"v_mov_b32 v3, 1")
    A.e(f"s_lshl_b32 s{S_T0}, s{S_G}, 7")
    A.e(f"s_add_u32 s{S_T0}, s{S_T0}, {WS_FLAG}")
    A.e(f"buffer_store_dword v3, v2, {sr(S_WS, 4)}, s{S_T0} offen offset:96 sc1")


def uniq(L):
    nb, nl, out = {}, {}, []
    for t in L:
        if t.endswith("@"):
            k = t.split()[-1]
            nb[k] = nb.get(k, 0) + 1
            t = t[:-1] + f"_{nb[k]}"
        elif t.endswith("@:"):
            k = t[:-1]
            nl[k] = nl.get(k, 0) + 1
            t = t[:-2] + f"_{nl[k]}:"
        out.append(t)
    return out


def join(name, M, Jn, rl):
    bm, bj = M.blocks(), Jn.blocks()
    k = 0
    while k < min(len(bm), len(bj)) - 1 and bm[len(bm) - 1 - k] == bj[len(bj) - 1 - k]:
        k += 1
    lab = f"L_{name}_join"
    main = roll(bm[:len(bm) - k], name + "a", rl) + [lab + ":"] + roll(bm[len(bm) - k:], name + "b", rl)
    pre = roll(bj[:len(bj) - k], name + "c", rl) + [f"    s_branch {lab}"]
    return main, pre, len(bj) - k


HEADER = """; out = x + Re(DFT_seq(DFT_hid(LN x))) + relu(LN(x) w1) w2      (generated code)
; Symmetries of the constant DFT matrices that are used (C = seq tables, D = hidden tables):
;   Dr[e,1024-d]=Dr[e,d], Di[e,1024-d]=-Di[e,d], D[e,512+-d]=(-1)^e-type mirror, same mirrors in e;
;   Cr[t,2048-s]=Cr[t,s], Ci[t,2048-s]=-Ci[t,s], C[t,1024+-s]=(-1)^t-type mirror, same mirrors in t.
; folded (sums / differences of mirrored samples) before each product."""


def build(cfg):
    import k1s
    fused = cfg.get("fused", True)
    rl = cfg.get("roll", True)
    HS, K = make_sched(cfg)
    A = Asm()
    names = ["pk_kernel"] if fused else ["k1_kernel", "k2_kernel"]
    for nm in names:
        A.raw(f"; @launch kernel={nm} grid=(256,1,1) block=(512,1,1) lds=163840")
    for l in HEADER.split("\n"):
        A.raw(l)
    A.raw('.amdgcn_target "amdgcn-amd-amdhsa--gfx950"')
    A.raw(".text")
    scfg = dict(cfg)
    scfg["zflag"] = False
    scfg["early"] = True
    if fused:
        L0 = pf_w2(cfg, 253, 252)
        scfg["hook"] = L0[:-1] + [f"s_cmp_ge_u32 s{S_WAVE}, 4", "s_cbranch_scc1 L_nopf", L0[-1][1], "L_nopf:"]
    scfg.setdefault("s_store_aux", " sc1")
    H, hp2 = K["H"], K["p2"]
    if fused:
        kernel_begin(A, names[0])
        common(A, cfg, "L_end")
        C, P = consumer(cfg, HS, K, 0, H, True), producer(cfg, HS, K, 0, H, True)
        C2, P2 = consumer(cfg, HS, K, hp2, H, True), producer(cfg, HS, K, hp2, H, True)
        cm, cp, nc = join("c", C, C2, rl)
        pm, pp, np_ = join("p", P, P2, rl)
        print("join after blocks: consumer", nc, "producer", np_, {k: v for k, v in K.items() if k not in ("UT", "LA")}, file=sys.stderr)
        A.e(f"s_cmp_eq_u32 s{S_NT}, 0")
        A.e("s_cbranch_scc1 L_special")
        A.e(f"s_cmp_ge_u32 s{S_WAVE}, 4")
        A.e("s_cbranch_scc1 L_prod")
        A.L += cm
        A.e("s_branch L_fin")
        A.label("L_prod")
        A.L += pm
        A.e("s_branch L_fin")
        A.label("L_special")
        zero_line(A)
        k1s.k1_special(A, scfg)
        at_flag(A)
        if cfg.get("pf3", 1):
            L1 = pf_w2(cfg, 4, VPF)
            for t in L1[:-1]:
                A.e(t)
            A.e(f"s_cmp_ge_u32 s{S_WAVE}, 4")
            A.e("s_cbranch_scc1 L_nopf3")
            A.e(L1[-1][1])
            A.e(f"s_mul_i32 s{S_T2}, s{S_PAR}, {-56 * 2048}")
            A.e(f"s_add_u32 s{S_T2}, s{S_T2}, {28 * 2048}")
            A.e(f"v_add_u32 v4, s{S_T2}, v4")
            A.e(L1[-1][1])
            A.label("L_nopf3")
        k1h.stamp(A, 12, enable=cfg.get("stamps"))
        A.e(f"s_cmp_ge_u32 s{S_WAVE}, 4")
        A.e("s_cbranch_scc1 L_prod2")
        A.L += cp
        A.label("L_prod2")
        A.L += pp
        ool = {}
        for s in (C, P, C2, P2):
            ool.update(s.ool)
        for L in ool.values():
            A.L += L
        A.label("L_fin")
        fin(A, cfg, 0)
        A.label("L_end")
        A.e("s_endpgm")
    else:
        for ki, (h0, h1) in enumerate(((0, hp2), (hp2, H))):
            nm = names[ki]
            kernel_begin(A, nm)
            common(A, cfg, f"L_end{ki}")
            C, P = consumer(cfg, HS, K, h0, h1, False), producer(cfg, HS, K, h0, h1, False)
            if ki == 0:
                A.e(f"s_cmp_eq_u32 s{S_NT}, 0")
                A.e("s_cbranch_scc1 L_special")
            A.e(f"s_cmp_ge_u32 s{S_WAVE}, 4")
            A.e(f"s_cbranch_scc1 L_prod{ki}")
            A.L += roll(C.blocks(), f"c{ki}", rl)
            A.e(f"s_branch L_fin{ki}")
            A.label(f"L_prod{ki}")
            A.L += roll(P.blocks(), f"p{ki}", rl)
            A.e(f"s_branch L_fin{ki}")
            for s in (C, P):
                for L in s.ool.values():
                    A.L += L
            if ki == 0:
                A.label("L_special")
                zero_line(A)
                k1s.k1_special(A, scfg)
                at_flag(A)
            A.label(f"L_fin{ki}")
            fin(A, cfg, ki << 20)
            A.label(f"L_end{ki}")
            A.e("s_endpgm")
    A.raw('.section .rodata,"a"')
    for nm in names:
        descriptor(A, nm)
    A.L = uniq(A.L)
    return A.text(cfg.get("hv", False))


if __name__ == "__main__":
    cfg = dict(stamps=("stamps" in sys.argv))
    for a in sys.argv[2:]:
        if "=" in a:
            k, v = a.split("=", 1)
            try:
                v = eval(v)
            except Exception:
                pass
            cfg[k] = v
    open(sys.argv[1], "w").write(build(cfg))
```

```python
import sys
from asmlib import *
from k1h import WS_H, WS_AT, WS_BT, AT_BLK, AT_PE, AT_TP, WS_ST, WS_FLAG, WS_PART, WS_DBG, WS_BYTES, STAMP_V
import k1h

U = 16384
NS = 9
L_PM = NS * U
L_TM = L_PM + 4096
OOB = 0x40000000
WS_CS = 21 << 20
S_X, S_W1, S_WS, S_CS, S_DBG, S_W2, S_O, S_CR, S_CI = 16, 20, 24, 28, 64, 68, 72, 76, 80
S_WAVE, S_Q, S_PAR, S_MLO, S_NT, S_G = 32, 33, 34, 35, 36, 37
S_T0, S_T1, S_T2, S_T3 = 38, 39, 84, 85
S_CNT, S_TO, S_QB = 86, 87, 3
VL = 1
MF = "v_mfma_f32_16x16x32_bf16"


class St(Asm):
    def __init__(self):
        super().__init__()
        self.bidx = [0]
        self.ool = {}

    def block(self):
        self.bidx.append(len(self.L))

    def blocks(self):
        b = self.bidx + [len(self.L)]
        return [self.L[b[i]:b[i + 1]] for i in range(len(b) - 1)]


def stamp(A, idx, cfg):
    k1h.stamp(A, idx, enable=cfg.get("stamps", False))
    if cfg.get("stamps", False):
        A.ds = []


def roll(blocks, name, enable=True):
    out = []
    i = 0
    n = len(blocks)
    nl = 0
    while i < n:
        best = None
        if enable:
            for p in range(1, 13):
                k = 1
                while i + (k + 1) * p <= n and blocks[i + k * p:i + (k + 1) * p] == blocks[i:i + p]:
                    k += 1
                if k >= 2:
                    sav = (k - 1) * sum(len(b) for b in blocks[i:i + p])
                    if sav > 40 and (best is None or sav > best[0]):
                        best = (sav, p, k)
        if best:
            _, p, k = best
            nl += 1
            lab = f"L_{name}_r{nl}"
            out.append(f"    s_mov_b32 s{S_CNT}, {k - 1}")
            out.append(lab + ":")
            for b in blocks[i:i + p]:
                out += b
            out.append(f"    s_sub_u32 s{S_CNT}, s{S_CNT}, 1")
            out.append(f"    s_cbranch_scc0 {lab}")
            i += p * k
        else:
            out += blocks[i]
            i += 1
    return out


def make_sched(cfg):
    q1 = cfg.get("q1", "P0-7 A8-15 B12-15 B8-11*")
    q2 = cfg.get("q2", "A0-3 PR0 PR1 PI0 PI1 B0-3 P4-9 A10-13 B10-13")
    HS = []
    UT = []

    def unit(h):
        UT.append(dict(first=h, last=h))
        return len(UT) - 1

    for ph, q in ((1, q1), (2, q2)):
        sq = []
        for w in q.replace(",", " ").split():
            re_ = w.endswith("*")
            w = w.rstrip("*")
            if w[1] in "RI":
                js = [w[1:]]
            else:
                lo, hi = (w[1:].split("-") * 2)[:2] if "-" not in w else w[1:].split("-")
                js = list(range(int(lo), int(hi) + 1))
            for j in js:
                sq += [(S, j, re_) for S in ((0, 1) if w[0] == "P" else ("AB".index(w[0]),))]
        ea = {}
        for S, j, re_ in sq:
            h = len(HS)
            D = isinstance(j, str)
            if j not in ea or re_:
                e = dict(kind="g", ph=ph, S=S, j=j, D=D, d=unit(h), ld=True, newd=True, r=unit(h), ldr=True, newp=True, h=h)
                ea[j] = e
            else:
                f = ea[j]
                big = f["h"] != h - 1
                if big:
                    UT[f["d"]]["last"] = h
                    if D:
                        UT[f["r"]]["last"] = h
                e = dict(kind="g", ph=ph, S=S, j=j, D=D, d=f["d"], ld=False, newd=big, r=f["r"] if D else unit(h), ldr=not D, newp=big or not D, h=h)
            HS.append(e)
        assert len(set((S, j) for S, j, _ in sq)) == len(sq)
    assert len(HS) == 68
    free = [(-99, i, i) for i in range(NS)]
    for u in UT:
        u["need"] = u["first"] - 2
    for e in HS:
        e["own"] = e["ph"] == 2 and e["j"] in (0, 1) and cfg.get("ownl", False)
        if e["own"]:
            UT[e["r"]]["need"] = max(h for h, f in enumerate(HS) if f["ph"] == 1 and f["S"] == e["S"])
    for n_, u in enumerate(sorted(UT, key=lambda u: u["need"] + (cfg.get("ownlate", 0) if u["need"] != u["first"] - 2 else 0))):
        free.sort()
        fb, _, sl = free.pop(0)
        u["slot"], u["fb"] = sl, fb
        assert fb <= u["need"], (n_, u)
        free.append((u["last"], NS + n_, sl))
    K = {}
    K["UT"] = UT
    LA = [h for h, e in enumerate(HS) if e["ph"] == 1 and e["S"] == 0]
    K["LA"] = LA
    K["aend"] = LA[-1] + 1
    K["cs"] = cfg.get("cs", LA[-1] - 1)
    K["p2"] = 32
    K["dft"] = 64
    K["a2end"] = max(h for h, e in enumerate(HS) if e["ph"] == 2 and e["S"] == 0)
    K["H"] = len(HS)
    f2 = lambda S, own: min(h for h, e in enumerate(HS) if e["ph"] == 2 and e["S"] == S and not e["D"] and (e["j"] < 2) == own)
    K["drA"] = cfg.get("drA", min(K["aend"] + 4, f2(0, True) - 2))
    K["pA"] = cfg.get("pA", max(K["drA"] + 1, f2(0, False) - 3))
    K["drB"] = cfg.get("drB", min(min(h for h, e in enumerate(HS) if e["ph"] == 2 and e["S"] == 1), f2(1, True) - 2))
    K["pB"] = cfg.get("pB", max(K["drB"] + 1, f2(1, False) - 4))
    K["pAT"] = cfg.get("pAT", min(h for h, e in enumerate(HS) if e["D"]) - 5)
    K["drT"] = cfg.get("drT", 33)
    K["pX"] = cfg.get("pX", K["a2end"] - 2)
    K["scr"] = cfg.get("scr", 3)
    return HS, K


def join_sched(cfg, HS, K):
    c2 = dict(cfg)
    c2["q2"] = cfg["q2j"]
    HJ, KJ = make_sched(c2)
    hj = max(h for h in range(len(HS)) if (HS[h]["S"], HS[h]["j"], HS[h]["newd"], HS[h]["ld"]) != (HJ[h]["S"], HJ[h]["j"], HJ[h]["newd"], HJ[h]["ld"])) + 1
    lm, lj = [[u for u in k["UT"] if u["first"] >= hj] for k in (K, KJ)]
    assert len(lm) == len(lj)
    lim = {}
    for a, b in zip(lm, lj):
        b["slot"], b["fb"] = a["slot"], a["fb"]
        lim.setdefault(a["slot"], a["fb"])
    early = sorted((u for u in KJ["UT"] if K["p2"] <= u["first"] < hj), key=lambda u: -u["last"])
    for u, (sl, fb) in zip(early, sorted(lim.items(), key=lambda x: -x[1])):
        assert u["last"] <= fb, (u, fb)
        u["slot"], u["fb"] = sl, -99
    for u, w in zip(early[NS:], sorted(early[:NS], key=lambda u: -u["first"])):
        assert u["last"] <= w["need"]
        u["slot"], u["fb"], w["fb"] = w["slot"], -99, u["last"]
    K2 = dict(K)
    K2["UT"] = KJ["UT"]
    return HJ, K2


PF, TF, TMF, PC = 64, 96, 48, 44
ACC = [128, 192]
AXR, AH, AAT, ATT, APM, ATM, VST = [8, 9], 10, 11, [12, 13, 14, 15], 18, 19, 20
ATU = [24, 25, 26, 27]
GRP = {"X": AXR, "H": [AH], "A": [AAT], "T": ATT, "U": ATU}
VPA, VPV, VPA2, VPV2 = 21, 22, 23, 40
VO = [[24, 25], [26, 27]]
VR = [[28, 29], [30, 31]]
PXR, TXR = 32, 48
XR = [[56, 60], [28, 44]]
sWM, sWN, sHS, sXS, sXR, sFL, sSG, sLO, sHI = 40, 41, 42, 43, 44, 45, 46, 47, 48
sCT, sCB = 53, 54
VCA, SEN, MR, CSR = 16, 28, 32, 48
VM0 = 22


def acc(S, rb, cb):
    return ACC[S] + rb * 16 + cb * 4


def t_of(A, vd, vi, tmp):
    A.e(f"s_lshr_b32 s{tmp}, s{S_Q}, 1")
    A.e(f"s_lshl_b32 s{tmp}, s{tmp}, 6")
    A.e(f"v_xor_b32 v{vd}, s{tmp}, v{vi}")
    A.e(f"s_lshl_b32 s{tmp}, s{S_MLO}, 8")
    A.e(f"s_add_u32 s{tmp}, s{tmp}, s{S_PAR}")
    A.e(f"v_lshl_add_u32 v{vd}, v{vd}, 1, s{tmp}")


def mirror_t(A, vd, vs, vt):
    A.e(f"v_sub_u32 v{vd}, 2048, v{vs}")
    A.e(f"v_mov_b32 v{vt}, 1024")
    A.e(f"v_cmp_eq_u32 vcc, 0, v{vs}")
    A.e(f"v_cndmask_b32 v{vd}, v{vd}, v{vt}, vcc")


def mirror_e(L, vc, vt):
    L.append(f"v_sub_u32 v{vt}, 1024, v{vc}")
    L.append(f"v_min_u32 v{vc}, v{vc}, v{vt}")
    L.append(f"v_lshrrev_b32 v{vt}, 6, v{vc}")
    L.append(f"v_mul_u32_u24 v{vt}, {AT_BLK}, v{vt}")
    L.append(f"v_and_b32 v6, 1, v{vc}")
    L.append(f"v_mad_u32_u24 v{vt}, v6, s{S_T3}, v{vt}")
    L.append(f"v_bfe_u32 v{vc}, v{vc}, 1, 5")
    L.append(f"v_lshl_add_u32 v{vc}, v{vc}, 4, v{vt}")


VPF = 43


def pf_addr(cfg, vd, pitch, rows):
    return [f"s_and_b32 s{S_T2}, s{S_WAVE}, 3", f"s_lshl2_add_u32 s{S_T2}, s{S_MLO}, s{S_T2}", f"s_lshl1_add_u32 s{S_T2}, s{S_T2}, s{S_PAR}",
            f"s_mul_i32 s{S_T2}, s{S_T2}, {rows}", f"v_lshrrev_b32 v2, 1, v{VL}", f"v_add_u32 v2, s{S_T2}, v2", f"v_mul_u32_u24 v2, {pitch}, v2",
            f"v_and_b32 v3, 1, v{VL}", f"v_lshl_add_u32 v2, v3, 7, v2",
            f"v_add_u32 v3, {64 - 2 * rows}, v{VL}", f"v_lshrrev_b32 v3, 6, v3", f"v_lshl_add_u32 v{vd}, v3, 30, v2"]


def pf_w1(cfg, va, s, ns):
    L = pf_addr(cfg, va, 7168, 2 * ns)
    L += [f"s_mul_i32 s{s}, s{S_Q}, {cfg.get('rot', 0) * 64}",
          f"s_mul_i32 s{S_T3}, s{S_Q}, 7", f"s_add_u32 s{S_T3}, s{S_T3}, s{S_NT}", f"s_sub_u32 s{S_T3}, s{S_T3}, 1", f"s_lshl_b32 s{S_T3}, s{S_T3}, 8",
          f"v_add_u32 v{va}, s{S_T3}, v{va}"]
    assert cfg.get('rot', 0) % ns == 0 and cfg.get('rotp', 0) == 0
    return L, [f"s_and_b32 s{s}, s{s}, 1023", f"s_mul_i32 s{S_T3}, s{s}, 7168", f"s_add_u32 s{s}, s{s}, {64 * ns}",
               ("vm", f"buffer_load_dword v{VPF}, v{va}, {sr(S_W1, 4)}, s{S_T3} offen{cfg.get('pfaux', '')}", "PF")]


def pf_x(cfg, va, s, ns):
    nw = cfg.get("pfxw", 112)
    L = [f"s_sub_u32 s{S_T2}, s{S_NT}, 1"] + ([f"s_lshl2_add_u32 s{S_T2}, s{S_T2}, s{S_Q}"] if nw == 112 else []) + [f"s_lshl2_add_u32 s{S_T2}, s{S_T2}, s{S_WAVE}",
         f"v_lshrrev_b32 v2, {ns.bit_length() - 1}, v{VL}", f"v_mul_u32_u24 v2, {nw}, v2", f"v_add_u32 v4, s{S_T2}, v2", f"v_and_b32 v2, 127, v4",
         f"s_lshl_b32 s{S_T3}, s{S_MLO}, 8", f"s_add_u32 s{S_T3}, s{S_T3}, s{S_PAR}", f"v_lshl_add_u32 v2, v2, 1, s{S_T3}",
         f"v_sub_u32 v3, 2048, v2", f"v_and_b32 v3, 2047, v3",
         ("atom", [f"v_cmp_lt_u32 vcc, 127, v4", "v_cndmask_b32 v2, v2, v3, vcc"]),
         f"v_and_b32 v3, {ns - 1}, v{VL}", f"v_lshlrev_b32 v3, 7, v3", f"v_lshl_add_u32 v2, v2, 11, v3",
         f"v_lshrrev_b32 v3, 8, v4", f"v_min_u32 v3, 1, v3", f"v_lshl_add_u32 v{va}, v3, 30, v2",
         f"s_mul_i32 s{s}, s{S_Q}, {cfg.get('rot', 0) * 128 if nw != 112 else 0}"]
    assert (256 + nw - 1) // nw * ns <= 64
    return L, [f"s_and_b32 s{s}, s{s}, 2047", ("vm", f"buffer_load_dword v{VPF}, v{va}, {sr(S_X, 4)}, s{s} offen{cfg.get('pfaux', '')}", "PF"), f"s_add_u32 s{s}, s{s}, {128 * ns}"]


def pf_d(cfg):
    return [("atom", [f"s_cmp_eq_u32 s{sWM}, 1", f"s_cselect_b32 s{S_CS}, s14, s12", f"s_cselect_b32 s{S_CS + 1}, s15, s13"]),
            f"s_and_b32 s{S_CS + 1}, s{S_CS + 1}, 0xffff", f"s_mov_b32 s{S_CS + 2}, {1024 * 2048}", f"s_mov_b32 s{S_CS + 3}, 0x00020000",
            f"s_lshr_b32 s{S_T2}, s2, 3", f"s_sub_u32 s{S_T2}, s{S_T2}, 4", f"s_lshl1_add_u32 s{S_T2}, s{S_T2}, s{sWN}",
            f"v_lshrrev_b32 v2, 2, v{VL}", f"v_mul_u32_u24 v2, 56, v2", f"v_add_u32 v2, s{S_T2}, v2",
            f"v_and_b32 v3, 3, v{VL}", f"v_lshlrev_b32 v3, 7, v3", f"v_lshl_add_u32 v3, v2, 11, v3",
            f"v_lshrrev_b32 v2, 8, v2", f"v_min_u32 v2, 1, v2", f"v_lshl_add_u32 v2, v2, 30, v3",
            ("vm", f"buffer_load_dword v{VPF}, v2, {sr(S_CS, 4)}, 0 offen", "PF")]


def pf_s(cfg):
    return [f"s_lshl2_add_u32 s{S_T2}, s{S_G}, s{S_WAVE}", f"s_lshl_b32 s{S_T2}, s{S_T2}, 2", f"v_lshrrev_b32 v2, 4, v{VL}", f"v_add_u32 v2, s{S_T2}, v2",
            f"s_and_b32 s{S_T2}, s{S_NT}, 1", f"s_sub_u32 s{S_T2}, s{S_T2}, 1", f"v_xor_b32 v2, s{S_T2}, v2",
            f"s_lshr_b32 s{S_T3}, s{S_NT}, 1", f"s_lshl_b32 s{S_T3}, s{S_T3}, 10", f"s_sub_u32 s{S_T3}, s{S_T3}, s{S_T2}", f"v_add_u32 v2, s{S_T3}, v2",
            f"v_and_b32 v2, 2047, v2", f"v_and_b32 v3, 15, v{VL}", f"v_lshlrev_b32 v3, 7, v3", f"v_lshl_add_u32 v2, v2, 11, v3",
            ("atom", [f"s_cmp_ge_u32 s{S_NT}, 5", f"s_cselect_b32 s{S_T2}, {OOB}, 0"]), f"v_add_u32 v2, s{S_T2}, v2",
            ("vm", f"buffer_load_dword v{VPF}, v2, {sr(S_X, 4)}, 0 offen", "PF")]


def pf_i(cfg, n):
    return [f"s_lshr_b32 s{S_T2}, s2, 3", f"s_sub_u32 s{S_T2}, s{S_T2}, 4", f"s_lshl2_add_u32 s{S_T2}, s{S_T2}, s{S_WAVE}", f"s_lshl_b32 s{S_T2}, s{S_T2}, 10",
            f"v_and_b32 v2, 7, v{VL}", f"v_lshl_add_u32 v2, v2, 7, s{S_T2}", f"v_min_u32 v2, L_end-pk_kernel, v2",
            ("atom", ["s_getpc_b64 s[58:59]", f"L_pc{n}:", f"s_sub_u32 s58, s58, L_pc{n}-pk_kernel", "s_subb_u32 s59, s59, 0"]),
            ("vm", f"global_load_dword v{VPF}, v2, s[58:59]", "PF")]


def pf_w2(cfg, va, vd=VPF):
    L = pf_addr(cfg, va, 2048, 28)
    L += [f"s_mul_i32 s{S_T3}, s{S_Q}, {896 * 8}", f"s_add_u32 s{S_T3}, s{S_T3}, s{S_NT}", f"s_lshl_b32 s{S_T3}, s{S_T3}, 8"]
    return L + [("vm", f"buffer_load_dword v{vd}, v{va}, {sr(S_W2, 4)}, s{S_T3} offen{cfg.get('pfaux', '')}", "PF")]


def pf_c(cfg):
    return [f"s_and_b32 s{S_T2}, s{S_NT}, 3",
            ("atom", [f"s_cmp_eq_u32 s{S_T2}, 1", f"s_cselect_b32 s{S_CS}, s{S_CR}, s{S_CI}", f"s_cselect_b32 s{S_CS + 1}, s{S_CR + 1}, s{S_CI + 1}"]),
            f"s_mov_b32 s{S_CS + 2}, s{S_CR + 2}", f"s_mov_b32 s{S_CS + 3}, s{S_CR + 3}",
            f"s_lshl_b32 s{S_T2}, s{S_WAVE}, 6", f"v_and_b32 v2, 62, v{VL}", f"v_add_u32 v2, s{S_T2}, v2",
            f"s_lshl_b32 s{S_T2}, s{S_MLO}, 8", f"s_add_u32 s{S_T2}, s{S_T2}, s{S_PAR}", f"v_add_u32 v2, s{S_T2}, v2",
            f"v_sub_u32 v3, 2048, v2", f"v_and_b32 v3, 2047, v3", f"s_lshr_b32 s{S_T2}, s{S_NT}, 1",
            ("atom", [f"s_cmp_eq_u32 s{S_T2}, 1", "s_cselect_b64 vcc, -1, 0", "v_cndmask_b32 v2, v2, v3, vcc"]),
            f"v_and_b32 v3, 1, v{VL}", f"v_lshlrev_b32 v3, 7, v3", f"v_lshl_add_u32 v2, v2, 12, v3", f"s_lshl_b32 s{S_T2}, s{S_Q}, 8",
            ("vm", f"buffer_load_dword v{VPF}, v2, {sr(S_CS, 4)}, s{S_T2} offen", "PF")]


def check_poll(A, name, load, vreg, tag):
    A.e(f"s_mov_b32 s{S_TO}, 0x40000")
    A.vm_need([tag])
    A.label("L_pl@")
    A.e(f"v_cmp_ne_u32 vcc, 0, v{vreg}")
    A.e("s_cmp_eq_u64 vcc, -1")
    A.e("s_cbranch_scc1 L_ok@")
    A.e(load)
    A.e("s_waitcnt vmcnt(0)")
    A.e(f"s_sub_u32 s{S_TO}, s{S_TO}, 1")
    A.e("s_cbranch_scc0 L_pl@")
    A.label("L_ok@")


def consumer(cfg, HS, K, h0, h1, fused):
    A = St()
    main = h0 == 0
    sc = " sc1" if fused else ""
    A.e(f"s_setprio {cfg.get('prio', 1)}")
    A.e(f"s_lshr_b32 s{sWM}, s{S_WAVE}, 1")
    A.e(f"s_and_b32 s{sWN}, s{S_WAVE}, 1")
    if main and cfg.get("pfs", 0):
        for it in pf_s(cfg):
            if isinstance(it, str):
                A.e(it)
            elif it[0] == "vm":
                A.vm_issue(it[1], it[2])
            else:
                for t in it[1]:
                    A.e(t)
    A.e(f"v_and_b32 v2, 15, v{VL}")
    A.e(f"v_lshrrev_b32 v3, 4, v{VL}")
    A.e(f"s_lshl_b32 s{S_T0}, s{sWM}, 12")
    A.e(f"s_lshl_b32 s{S_T1}, s{sWN}, 12")
    A.e(f"v_lshlrev_b32 v{VST}, 4, v{VL}")
    base = {"X": 0, "H": 0, "A": 0, "T": 0, "U": 0}
    A.e(f"v_bfe_u32 v4, v{VL}, 2, 2")
    A.e(f"v_lshl_add_u32 v5, v3, 3, v4")
    A.e(f"v_lshlrev_b32 v5, 8, v5")
    A.e(f"v_and_b32 v6, 1, v3")
    A.e(f"v_lshl_add_u32 v4, v6, 2, v4")
    A.e(f"s_lshl_b32 s{S_T2}, s{sWN}, 1")
    A.e(f"v_xor_b32 v4, s{S_T2}, v4")
    A.e(f"v_lshl_add_u32 v5, v4, 5, v5")
    A.e(f"v_and_b32 v4, 3, v{VL}")
    A.e(f"v_lshl_add_u32 v{ATT[0]}, v4, 3, v5")
    for cb in range(1, 4):
        A.e(f"v_xor_b32 v{ATT[cb]}, {(cb >> 1) * 128 + (cb & 1) * 32}, v{ATT[0]}")
    A.e(f"v_lshrrev_b32 v4, 1, v2")
    A.e(f"v_xor_b32 v4, v3, v4")
    A.e(f"v_lshl_add_u32 v5, v2, 7, s{S_T0}")
    if fused and not main:
        base["X"] = K["xbase"]
        A.e(f"v_add_u32 v5, {base['X'] * U}, v5")
    A.e(f"v_lshl_add_u32 v{AXR[0]}, v4, 4, v5")
    A.e(f"v_xor_b32 v{AXR[1]}, 64, v{AXR[0]}")
    A.e(f"v_add_u32 v{AH}, s{S_T0}, v{VST}")
    A.e(f"v_add_u32 v{AAT}, s{S_T1}, v{VST}")
    if main:
        A.e(f"s_lshl_b32 s{S_T2}, s{sWM}, 9")
        A.e(f"s_add_u32 s{S_T2}, s{S_T2}, {L_PM}")
        A.e(f"v_lshl_add_u32 v{APM}, v2, 5, s{S_T2}")
        A.e(f"s_lshl_b32 s{S_T2}, s{S_WAVE}, 11")
        A.e(f"v_and_b32 v4, 7, v{VL}")
        A.e(f"v_lshl_add_u32 v4, v3, 3, v4")
        A.e(f"v_lshl_add_u32 v4, v4, 4, s{S_T2}")
        A.e(f"v_xor_b32 v{VCA}, 4096, v4")
        A.e(f"v_add_u32 v{ATM}, {L_TM}, v4")
        A.e(f"v_add_u32 v{VCA}, {L_TM}, v{VCA}")
        for i in range(4):
            A.e(f"v_mov_b32 v{PC + i}, 0x3f803f80")
        A.e(f"s_lshl_b32 s{sCT}, s{sWM}, 13")
        A.e(f"s_lshl_b32 s{sCB}, s{sWM}, 6")

        def swap():
            for r in ATT:
                A.e(f"v_xor_b32 v{r}, s{sCT}, v{r}")
            for r in AXR:
                A.e(f"v_xor_b32 v{r}, s{sCB}, v{r}")
        swap()
        for cb in range(4):
            A.e(f"v_xor_b32 v{ATU[cb]}, 8192, v{ATT[cb]}")
        A.e(f"s_lshl_b32 s{S_T2}, s{S_PAR}, 2")
        A.e(f"s_add_u32 s{S_T2}, s{S_T2}, s{S_MLO}")
        A.e(f"s_mul_i32 s{S_T2}, s{S_T2}, 56")
        A.e(f"s_mul_i32 s{S_T3}, s{S_Q}, 7")
        A.e(f"s_add_u32 s{S_T2}, s{S_T2}, s{S_T3}")
        A.e(f"s_add_u32 s{S_T2}, s{S_T2}, s{S_NT}")
        A.e(f"s_sub_u32 s{S_T2}, s{S_T2}, 1")
        A.e(f"s_lshl_b32 s{sHS}, s{S_T2}, 15")
        A.e(f"s_add_u32 s{sHS}, s{sHS}, s{S_T0}")
        A.e(f"s_lshl_b32 s{S_T2}, s{sWN}, 10")
        A.e(f"s_add_u32 s{sHS}, s{sHS}, s{S_T2}")
        assert WS_H == 0
    A.e(f"s_lshl_b32 s{S_T2}, s{sWM}, 5")
    A.e(f"v_add_u32 v4, s{S_T2}, v2")
    t_of(A, 4, 4, S_T2)
    A.e(f"v_bfrev_b32 v5, 1")
    A.e(f"v_cmp_eq_u32 vcc, 0, v4")
    A.e(f"v_cndmask_b32 v{VM0}, 0, v5, vcc")
    A.e(f"v_cmp_eq_u32 vcc, 128, v4")
    A.e(f"v_cndmask_b32 v{VM0 + 1}, 0, v5, vcc")

    vals = {}
    groups = []
    cur_t = None

    def val(key, reg, reads, pub, unit=None, grp=None):
        vals[key] = dict(key=key, reg=reg, reads=reads, pub=pub, slot=None if unit is None else K["UT"][unit]["slot"], grp=grp, first=None, last=None)
        return key

    fixes = {}
    for h in range(h0, h1):
        e = HS[h]
        if e["newd"]:
            cur_t = {}
            for k32 in range(2):
                for cb in range(4):
                    rg = TF + 4 * (4 * k32 + cb)
                    alt = k32 and e["ph"] == 1
                    if e["D"]:
                        cur_t[k32, cb] = val(("T", h, k32, cb), rg, [(f"ds_read_b128 {vr(rg, 4)}, v{AAT}", (cb >> 1) * 8192 + (cb & 1) * 2048 + k32 * 1024)], h - 1, e["d"], "A")
                    else:
                        cur_t[k32, cb] = val(("T", h, k32, cb), rg,
                                             [(f"ds_read_b64_tr_b16 {vr(rg + 2 * u, 2)}, v{(ATU if alt else ATT)[cb]}", (0 if alt else k32 * 8192) + u * 1024) for u in range(2)],
                                             h - 1, e["d"], "U" if alt else "T")
        for k32 in range(2):
            for rb in range(4):
                rg = PF + 4 * (4 * k32 + rb)
                o = (rb >> 1) * 8192 + (rb & 1) * 2048
                xl = e["ph"] == 1 or e["D"]
                rd = (f"ds_read_b128 {vr(rg, 4)}, v{AXR[k32]}", o) if xl else (f"ds_read_b128 {vr(rg, 4)}, v{AH}", o + k32 * 1024)
                p = val(("P", h, k32, rb), rg, [rd], h - 1, e["r"], "X" if xl else "H") if e["newp"] else ("P", h - 1, k32, rb)
                if e["D"] and e["S"] == 1:
                    if e["j"][0] == "I":
                        fixes[h, 4 * k32 + rb] = (p, [f"v_xor_b32 v{rg + i}, 0x80008000, v{rg + i}" for i in range(4)])
                    elif rb & 1 == 0:
                        fixes[h, 4 * k32 + rb] = (p, [f"v_xor_b32 v{rg + i}, v{VM0 + (rb >> 1)}, v{rg + i}" for i in range(4)])
                groups.append((h, [(acc(e["S"], rb, cb), cur_t[k32, cb], p) for cb in range(4)]))
                if h in K["LA"] and rb == 0 and (k32 == 0 or h >= K["LA"][-2]):
                    groups.append((h, [(CSR + 4 * cb, cur_t[k32, cb], "PC") for cb in range(4)]))
    if cfg.get("lord", 1):
        for hl in (K["a2end"], K["H"] - 1):
            ix = [n_ for n_, g in enumerate(groups) if g[0] == hl]
            G = {(k32, rb): groups[ix[4 * k32 + rb]][1] for k32 in range(2) for rb in range(4)}
            new = [G[0, 2], G[0, 3], G[1, 2], G[1, 3], G[0, 0][2:] + G[0, 1][2:], G[1, 0][2:] + G[1, 1][2:], G[0, 0][:2] + G[0, 1][:2], G[1, 0][:2] + G[1, 1][:2]]
            for n_, g in zip(ix, new):
                groups[n_] = (hl, g)
    seq = []
    cnt = {}
    for h, ms in groups:
        for mf in ms:
            i = cnt.get(h, 0)
            cnt[h] = i + 1
            seq.append((h, i, mf))
    for n_, (h, i, (a, t, p)) in enumerate(seq):
        for k in (t, p):
            if k in vals:
                v = vals[k]
                if v["first"] is None:
                    v["first"] = n_
                v["last"] = n_
    order = sorted(vals.values(), key=lambda v: v["first"])
    prev = {}
    for v in order:
        v["prev"] = prev.get(v["reg"])
        prev[v["reg"]] = v
        v["q"] = list(v["reads"])
    pend = list(order)

    extras = []
    prebar = {}

    def X(at, items, dl=None):
        extras.append(dict(at=at, items=list(items), dl=dl))

    def PB(h, fn):
        prebar.setdefault(h, []).append(fn)

    H = K["H"]
    hp2, hd = K["p2"], K["dft"]
    haux = cfg.get("h_aux", " sc1")
    PST = cfg.get("pst", 3 * U)

    def ep_items(S, rb):
        L = []
        for rel in range(2):
            a = acc(S, rb, 2 * rel)
            if rb & 1 == 0 or True:
                L.append(f"s_add_u32 s{S_T0 + rel}, s{sHS}, {S * 56 * U + rel * U + (rb >> 1) * 8192}")
            L += [f"v_cvt_pk_bf16_f32 v{a + i}, v{a + 2 * i}, v{a + 2 * i + 1}" for i in range(4)]
            L += [f"v_pk_max_i16 v{a + i}, v{a + i}, 0" for i in range(4)]
            L.append(("vm", f"buffer_store_dwordx4 {vr(a, 4)}, v{VST}, {sr(S_WS, 4)}, s{S_T0 + rel} offen offset:{(rb & 1) * 2048}{haux}", ("H", S)))
            if cfg.get("ownl"):
                L.append(("ds", f"ds_write_b128 v{VPA + rel}, {vr(a, 4)} offset:{(rb >> 1) * 8192 + (rb & 1) * 2048}", ("HW", S)))
        return L

    def send_items(S, rb):
        L = []
        for relc in range(2):
            d = 2 * (rb >> 1) + relc
            if d == 0:
                continue
            a = acc(S, rb, 2 * relc)
            L += [f"v_cvt_pk_bf16_f32 v{a + i}, v{a + 2 * i}, v{a + 2 * i + 1}" for i in range(4)]
            L.append(("vm", f"buffer_store_dwordx4 {vr(a, 4)}, v{VST}, {sr(S_WS, 4)}, s{49 + d} offen offset:{(S * 2 + (rb & 1)) * 1024}{cfg.get('snd_aux', ' sc1')}", "SND"))
        return L

    RV = [acc(0, 0, 2), acc(0, 0, 3), acc(0, 1, 2), acc(0, 1, 3)] + [acc(0, 2, 0) + 4 * i for i in range(8)]

    def rvr(S, rb2, d):
        return RV[(S * 2 + rb2) * 3 + d]

    def rcv(S, rb2, d):
        return f"buffer_load_dwordx4 {vr(rvr(S, rb2, d), 4)}, v{VST}, {sr(S_WS, 4)}, s{55 + d} offen offset:{(S * 2 + rb2) * 1024} sc1"

    def lastpos(S, rb, hmax, lo=0):
        best = None
        for n_, (h, i, (a, t, p)) in enumerate(seq):
            if h < hmax and acc(S, rb, 0) + lo <= a < acc(S, rb, 0) + 16:
                best = n_
        return best

    def at_after(n_, d=3):
        n_ = n_ + d
        if n_ >= len(seq):
            return (h1, 0)
        return seq[n_][:2]

    def uses(S, rb):
        return [n_ for n_, (h, i, (a, t, p)) in enumerate(seq) if acc(S, rb, 0) <= a < acc(S, rb, 0) + 16]

    BA = cfg.get("bar_at", 7)

    def inv():
        A.e(f"s_cmp_lg_u32 s{S_WAVE}, 0")
        A.e("s_cbranch_scc1 L_iv@")
        A.e("buffer_inv sc1")
        A.label("L_iv@")

    def drain0():
        A.vm = []
        A.e("s_waitcnt vmcnt(0)")

    if main:
        l3, l2, l1 = K["LA"][-3:]
        X((l3, 12), [("ds", f"ds_write_b128 v{ATM}, {vr(CSR + 4 * cb, 4)} offset:{512 * cb}", "CW") for cb in range(4)], dl=(l3, 30))
        PB(l3 + 1, lambda: A.ds_need(["CW"]))
        for i in range(2):
            X((l3 + 1, BA + 12 * i), [("ds", f"ds_read_b128 {vr(MR + 4 * c2, 4)}, v{VCA} offset:{512 * (2 * i + c2)}", "CR") for c2 in range(2)], dl=(l3 + 1, BA + 12 * i + 4))
            X((l3 + 1, BA + 12 * i + 8), [("need", "CR")] + [f"v_add_f32 v{CSR + 8 * i + k}, v{CSR + 8 * i + k}, v{MR + k}" for k in range(8)], dl=(l3 + 1, BA + 12 * i + 12))
        hc = K["cs"]
        assert hc <= l1
        for S in range(2):
            for rb in range(4):
                at = max(at_after(lastpos(S, rb, hp2)), (l1, 31))
                pc_ = int(rb * cfg.get("pace", (0, 0))[S] * 32)
                at = max(at, ((hp2 if S else K["aend"]) + pc_ // 32, pc_ % 32)) if pc_ else at
                osel = "op_sel:[0,1,0] op_sel_hi:[1,1,1]" if rb & 1 else "op_sel_hi:[1,0,1]"
                osm = "op_sel:[0,1] op_sel_hi:[1,1]" if rb & 1 else "op_sel_hi:[1,0]"
                if rb == 0:
                    X(max((hc, BA), (l3 + 2, 0)) if S == 0 else (hp2 - 1, 0), [("ds", f"ds_read_b128 {vr(MR + 4 * i, 4)}, v{APM} offset:{16 * S + 1024 * i}", "M") for i in range(2)])
                L = [("need", "M"), f"v_and_b32 v{MR + rb}, 0xffff0000, v{MR + rb}"]
                a_ = acc(S, rb, 0)
                L += [f"v_pk_fma_f32 {vr(a_ + k, 2)}, {vr(CSR + k, 2)}, {vr(MR + (rb & 2), 2)}, {vr(a_ + k, 2)} {osel} neg_lo:[0,1,0] neg_hi:[0,1,0]" for k in range(0, 16, 2)]
                L += [f"v_pk_mul_f32 {vr(a_ + k, 2)}, {vr(a_ + k, 2)}, {vr(MR + 4 + (rb & 2), 2)} {osm}" for k in range(0, 16, 2)]
                if rb == 0 and cfg.get("ownl"):
                    oh = [h for h, e in enumerate(HS) if e["own"] and e["S"] == S]
                    L0 = [f"s_lshl_b32 s{S_T2}, s{sWM}, 12", f"s_lshl_b32 s{S_T3}, s{sWN}, 10", f"s_add_u32 s{S_T2}, s{S_T2}, s{S_T3}"]
                    for rel in range(2):
                        L0 += [f"s_add_u32 s{S_T3}, s{S_T2}, {K['UT'][HS[oh[rel]]['r']]['slot'] * U}", f"v_add_u32 v{VPA + rel}, s{S_T3}, v{VST}"]
                    L = L0 + L
                    PB(oh[0] - 1, lambda S=S: A.ds_need([("HW", S)]))
                X(at, L + ep_items(S, rb), dl=(K["drB" if S else "drA"] - cfg.get("epl", 1), 0))
        if h1 > hp2:
            PB(hp2 - 1, swap)
        extras.sort(key=lambda x: x["at"])
    if main:
        p1, px, p2 = cfg.get("pf1", [-1, -1, 2, 2]), cfg.get("pfx", [-1, -1, 2, 2]), cfg.get("pf2", 12)
        LL = [pf_w1(cfg, 28, 55, 16 // len(p1)), pf_x(cfg, 30, 57, 16 // len(px))]
        for i_ in range(max(len(p1), len(px))):
            for (L0, L1), pp in zip(LL, (p1, px)):
                if i_ == 0:
                    X((-1, 0), L0, dl=(-1, 0))
                if i_ < len(pp):
                    h = pp[i_]
                    X((-1 if h is None else h, 10 if h and h >= 0 else 0), L1 if h is not None else [t for t in L1 if isinstance(t, str)], dl=(-1 if h is None else h, 30))
        if p2:
            X((p2, 2), pf_w2(cfg, 29), dl=(p2, 30))
        for n_, h in enumerate(cfg.get("pfi", [])):
            X((h, 14), pf_i(cfg, n_), dl=(h, 30))
        if cfg.get("pfd") is not None:
            X((cfg["pfd"], 1), pf_d(cfg), dl=(cfg["pfd"], 30))
    if main and cfg.get("pfc") is not None:
        X((cfg.get("pfc"), 12), pf_c(cfg), dl=(cfg.get("pfc"), 30))
    extras.sort(key=lambda x: x["at"])
    pollA = f"buffer_load_dword v{VPV}, v{VPA}, {sr(S_WS, 4)}, s{sFL} offen sc1"
    pollB = f"buffer_load_dword v{VPV}, v{VPA}, {sr(S_WS, 4)}, s{sFL} offen offset:32 sc1"
    pollT = f"buffer_load_dword v{VPV2}, v{VPA2}, {sr(S_WS, 4)}, 0 offen offset:96 sc1"
    pollS = f"buffer_load_dword v{VPV2}, v{VPA2}, {sr(S_DBG, 4)}, 0 offen sc1"
    PI = cfg.get("poll_at", 12)
    PL = cfg.get("poll_lead", 2)

    if fused and main:
        PB(K["drA"], drain0)
        PB(K["drB"], drain0)
    if h1 == H:
        hs_ = cfg.get("hsu", 45)
        pollX = f"buffer_load_dword v{VCA + 1}, v{VCA}, {sr(S_WS, 4)}, s{sCB} offen sc1"
        L = []
        for d in (1, 2, 3):
            L += [f"s_xor_b32 s{S_T2}, s2, {d if not cfg.get('sndown') else 0}", f"s_mul_i32 s{49 + d}, s{S_T2}, {PST}"]
        L += [f"s_lshl_b32 s{S_T2}, s{S_WAVE}, 12", f"s_add_u32 s{S_T2}, s{S_T2}, {WS_PART}"]
        for d in (1, 2, 3):
            L += [f"s_add_u32 s{49 + d}, s{49 + d}, s{S_T2}", f"s_add_u32 s{49 + d}, s{49 + d}, {(d - 1) * U}"]
        L += [f"s_mul_i32 s{sXR}, s2, {PST}", f"s_add_u32 s{sXR}, s{sXR}, s{S_T2}"]
        L += [f"v_and_b32 v2, 15, v{VL}", f"s_lshl_b32 s{S_T2}, s{sWM}, 5", f"v_add_u32 v2, s{S_T2}, v2",
              f"s_lshr_b32 s{S_T2}, s{S_Q}, 1", f"s_lshl_b32 s{S_T2}, s{S_T2}, 6", f"v_xor_b32 v2, s{S_T2}, v2",
              f"s_lshl_b32 s{S_T2}, s{S_MLO}, 8", f"s_add_u32 s{S_T2}, s{S_T2}, s{S_PAR}", f"v_lshl_add_u32 v2, v2, 1, s{S_T2}",
              f"v_sub_u32 v3, 2048, v2", f"v_mov_b32 v4, 1024",
              ("atom", [f"v_cmp_eq_u32 vcc, 0, v2", f"v_cndmask_b32 v4, v3, v4, vcc"]),
              f"v_lshlrev_b32 v{VO[0][0]}, 11, v2", f"v_lshlrev_b32 v{VO[1][0]}, 11, v4",
              f"v_add_u32 v{VO[0][1]}, {32 * 2048}, v{VO[0][0]}", f"v_lshlrev_b32 v{VO[1][1]}, 11, v3",
              f"v_subrev_u32 v{VO[1][1]}, {32 * 2048}, v{VO[1][1]}"]
        L += [f"v_and_b32 v2, 3, v{VL}", f"v_xor_b32 v2, s{S_G}, v2", f"v_lshlrev_b32 v{VCA}, 7, v2",
              f"s_lshl_b32 s{sCB}, s{S_NT}, 2", f"s_add_u32 s{sCB}, s{sCB}, {WS_FLAG + 64}",
              f"s_lshr_b32 s{sSG}, s{S_NT}, 2", f"s_lshl_b32 s{sSG}, s{sSG}, 31"]
        X((hs_, 2), L, dl=(hs_ + 2, 0))
        L = [f"s_mov_b32 s{S_T3}, {AT_PE}"]
        L += [f"v_lshrrev_b32 v3, 4, v{VL}", f"v_min_u32 v2, 1, v3", f"v_lshlrev_b32 v2, 30, v2"]
        for rb2 in range(2):
            L += [f"v_lshl_add_u32 v4, v{VO[0][rb2]}, 1, v2"]
            for kind in range(2):
                L += [("vm", f"buffer_load_ushort v{PXR + 4 * kind + 2 * rb2}, v4, {sr(S_CI if kind else S_CR, 4)}, 0 offen offset:1024", "PX")]
        L += [f"s_lshl_b32 s{S_T0}, s{S_NT}, 7", f"s_lshl_b32 s{S_T1}, s{S_QB}, 6", f"s_add_u32 s{S_T0}, s{S_T0}, s{S_T1}",
              f"s_lshl_b32 s{S_T1}, s{sWN}, 5", f"s_add_u32 s{S_T0}, s{S_T0}, s{S_T1}",
              f"s_mov_b32 s{sLO}, {WS_AT + 32 * 1024}", f"s_mov_b32 s{sHI}, {WS_BT + AT_TP}"]
        for cb2 in range(2):
            L += [f"v_and_b32 v4, 15, v{VL}", f"v_add_u32 v4, s{S_T0}, v4"]
            if cb2:
                L += [f"v_add_u32 v4, 16, v4"]
            mirror_e(L, 4, 5)
            for kind in range(2):
                L += [("vm", f"buffer_load_ushort v{TXR + 4 * kind + 2 * cb2}, v4, {sr(S_WS, 4)}, s{sHI if kind else sLO} offen{sc}", "TX")]
        for i in range(4):
            L += [f"v_mov_b32 v{PXR + 2 * i + 1}, 0"] + ([f"v_mov_b32 v{TXR + 2 * i + 1}, 0"] if i < 2 else [])
        L += [f"v_and_b32 v2, 1, v3", f"v_lshlrev_b32 v2, 5, v2", f"v_lshrrev_b32 v3, 1, v3", f"v_lshl_add_u32 v2, v3, 4, v2",
              f"s_lshl_b32 s{S_T0}, s{S_T0}, 1", f"v_add_u32 v2, s{S_T0}, v2"]
        L += [f"v_add_u32 v{VO[S][rb2]}, v2, v{VO[S][rb2]}" for S in range(2) for rb2 in range(2)]
        for d in range(3):
            L.append(f"s_add_u32 s{55 + d}, s{sXR}, {d * U}")
        L += [("vm", f"buffer_load_dwordx4 {vr(XR[S][rb2], 4)}, v{VO[S][rb2]}, {sr(S_X, 4)}, 0 offen", "X") for S in range(2) for rb2 in range(2)]
        L += [f"s_mov_b32 s{sLO}, 0x00003f80", f"s_mov_b32 s{sHI}, 0x3f800000"]
        assert hs_ + 2 > K["pAT"]
        X((hs_ + 2, 2), L, dl=(hs_ + 5, 0))
        hx = hs_ + cfg.get("hxd", 8)
        L = [("vneed", ["PX", "TX", "X"])]
        for i in range(2):
            L += [f"v_lshl_or_b32 v{PXR + 4 + 2 * i}, v{PXR + 4 + 2 * i}, 16, v{PXR + 2 * i}", f"v_xor_b32 v{PXR + 4 + 2 * i}, s{sSG}, v{PXR + 4 + 2 * i}",
                  f"v_xor_b32 v{PXR + 2 * i}, 0x80000000, v{PXR + 4 + 2 * i}", f"v_lshl_or_b32 v{TXR + 2 * i}, v{TXR + 4 + 2 * i}, 16, v{TXR + 2 * i}"]
        for S in range(2):
            for rb2 in range(2):
                x = XR[S][rb2]
                L += [f"v_permlane16_swap_b32 v{x}, v{x + 2}", f"v_permlane16_swap_b32 v{x + 1}, v{x + 3}"]
        X((hx, 2), L, dl=(hx, 30))
        for S in sorted(range(2), key=lambda S: min(h for h in range(hx + 1, H) if HS[h]["S"] != S)):
            h = min(h for h in range(hx + 1, H) if HS[h]["S"] != S)
            L = [f"v_mfma_f32_16x16x16_bf16 {vr(acc(S, rb2, cb2), 4)}, {vr(TXR + 2 * cb2, 2)}, {vr(PXR + 4 * S + 2 * rb2, 2)}, {vr(acc(S, rb2, cb2), 4)}"
                 for rb2 in range(2) for cb2 in range(2)]
            X((h, 3), L, dl=(h, 8))
            L = [f"v_dot2c_f32_bf16 v{acc(S, rb2, 0) + i}, s{sHI if i & 1 else sLO}, v{XR[S][rb2] + (i >> 1)}" for rb2 in range(2) for i in range(8)]
            X((h, 13), L, dl=(h, 28))
        X((K["pX"] - PL, PI), [("vm", pollX, "PX2")], dl=(K["pX"] - PL, PI + 2))
        PB(K["pX"], lambda: check_poll(A, "X", pollX, VCA + 1, "PX2"))
        s0 = (K["pX"], BA + 1)
        for S in range(2):
            for rb in range(4):
                X(max(at_after(lastpos(S, rb, H, 8 if rb < 2 else 0)), s0), send_items(S, rb), dl=(K["a2end"] + cfg.get("sdl", 2), 0) if S == 0 else (H, 0))
        X(cfg.get("rcvA", (H - 1, 2)), [("vm", rcv(0, rb2, d), ("RV", 0, rb2)) for rb2 in range(2) for d in range(3)], dl=(H, 0))
        extras.sort(key=lambda x: x["at"])

    def emit_item(it):
        if isinstance(it, tuple):
            if it[0] == "vm":
                A.vm_issue(it[1], it[2])
                return 1
            if it[0] == "ds":
                A.ds_issue(it[1], it[2])
                return 1
            if it[0] == "vneed":
                A.vm_need(it[1])
                return 0
            if it[0] == "need":
                A.ds_need([it[1]])
                return 0
            for t in it[1]:
                A.label(t[:-1]) if t.endswith(":") else A.e(t)
            return len(it[1])
        A.e(it)
        return 0 if it.startswith("s_") else 1

    state = dict(pub=h0 - 2, n=-1)

    def ready(v):
        return v["pub"] <= state["pub"] and (v["prev"] is None or (v["prev"]["last"] <= state["n"] and not v["prev"]["q"]))

    def inwin(v):
        return v["slot"] is None or 0 <= v["slot"] - base[v["grp"]] <= 3

    def issue_one(v):
        cost = 0
        o = 0
        if v["slot"] is not None:
            g_ = v["grp"]
            if not inwin(v):
                nb_ = (v["slot"] // 4) * 4 if v["slot"] < 8 else 5
                d_ = (nb_ - base[g_]) * U
                for r in GRP[g_]:
                    A.e(f"v_add_u32 v{r}, {d_}, v{r}" if d_ > 0 else f"v_subrev_u32 v{r}, {-d_}, v{r}")
                base[g_] = nb_
                cost += len(GRP[g_])
            o = (v["slot"] - base[g_]) * U
        t_, o_ = v["q"].pop(0)
        if not cfg.get("nord"):
            A.ds_issue(f"{t_} offset:{o + o_}", v["key"])
        if not v["q"]:
            pend.remove(v)
        return cost + 1

    def dok(v):
        if inwin(v):
            return True
        for w in pend:
            if w is v:
                return True
            if w["grp"] == v["grp"]:
                return False
        return True

    def fill(cap, pos):
        while cap > 0:
            v = next((v for v in pend[:40] if ready(v) and dok(v)), None)
            if v is not None:
                cap -= issue_one(v)
                continue
            x = extras[0] if extras and extras[0]["at"] <= pos else None
            if x is None:
                break
            ns = 0
            while x["items"] and cap > 0 and ns < 2:
                c_ = emit_item(x["items"].pop(0))
                cap -= c_
                ns += c_ == 0
            if not x["items"]:
                extras.pop(0)
            if ns >= 2:
                break

    def flush(pos):
        last = -1
        for i_, x in enumerate(extras):
            if x["dl"] is not None and x["dl"] <= pos:
                last = i_
        for _ in range(last + 1):
            x = extras.pop(0)
            for it in x["items"]:
                emit_item(it)

    def barrier(h):
        if cfg.get("fr", 0) == 0:
            ks = []
            for v in order:
                if v["pub"] == h - 1 and v["slot"] is not None:
                    while v["q"]:
                        assert ready(v)
                        issue_one(v)
                    ks.append(v["key"])
            A.ds_need(ks)
        for fn in prebar.get(h, []):
            fn()
        if cfg.get("fine"):
            if h >= h0 and (h - h0 < 64 or cfg["fine"] == 2):
                A.e(f"v_writelane_b32 v41, s96, {(h - h0) & 63}")
                A.e(f"v_writelane_b32 v42, s98, {(h - h0) & 63}")
            A.e("s_memtime s[96:97]")
        A.e("s_barrier")
        if cfg.get("fine"):
            A.e("s_memtime s[98:99]")
        state["pub"] = h

    flush((-1, 99))
    barrier(h0 - 1)
    stamp(A, 1, cfg)
    fill(100, (h0, -1))
    inited = set()
    CAP = cfg.get("cap", 2)
    for n_, (h, i, (a, t, p)) in enumerate(seq):
        if i == 0:
            A.block()
            if h == hp2 + 1 and main:
                K["xbase"] = base["X"]
            if h == hp2:
                inited = set()
                stamp(A, 2, cfg)
            if h == hd:
                stamp(A, 3, cfg)
        flush((h, i))
        for k in (t, p):
            if k in vals:
                v = vals[k]
                while v["q"]:
                    assert ready(v), (k, h, i)
                    issue_one(v)
        A.ds_need([t, p])
        treg = vals[t]["reg"]
        preg = PC if p == "PC" else vals[p]["reg"]
        A.e(f"{MF} {vr(a, 4)}, {vr(treg, 4)}, {vr(preg, 4)}, {vr(a, 4) if a in inited else 0}")
        inited.add(a)
        state["n"] = n_
        fx = fixes.get((h, i // 4 + 1) if i < 28 else (h + 1, 0)) if h >= hp2 else None
        if fx:
            v = vals[fx[0]]
            while v["q"]:
                assert ready(v)
                issue_one(v)
            A.ds_need([fx[0]])
            A.e(fx[1][i & 3])
        if i == BA:
            barrier(h)
        ce = main and (K["aend"] <= h < K["drA"] or hp2 <= h < K["drB"])
        fill((cfg.get("cape", 2) if ce else CAP if h < H - 1 else cfg.get("capl", 3)) - (1 if fx else 0), (h, i))
    A.block()
    flush((10 ** 6, 0))
    for x in extras:
        for it in x["items"]:
            emit_item(it)
    if h1 < H:
        return A
    stamp(A, 5, cfg)
    A.e(f"s_mov_b32 s{S_TO}, 0x40000")
    for S in range(2):
        if S == 1:
            stamp(A, 6, cfg)
        for rb2 in range(2):
            if (S, rb2) == cfg.get("rcvB", (1, 0)):
                if cfg.get("rslp"):
                    A.e(f"s_sleep {cfg['rslp']}")
                for r_ in range(2):
                    for d in range(3):
                        A.vm_issue(rcv(1, r_, d), ("RV", 1, r_))
            A.vm_need([("RV", S, rb2)])
            nm = f"{S}{rb2}"
            A.label(f"L_rv_{nm}")
            w = [rvr(S, rb2, d) + i for d in range(3) for i in range(4)]
            A.e(f"v_max3_u32 v2, v{w[0]}, v{w[1]}, v{w[2]}")
            A.e(f"v_max3_u32 v3, v{w[3]}, v{w[4]}, v{w[5]}")
            A.e(f"v_max3_u32 v2, v2, v{w[6]}, v{w[7]}")
            A.e(f"v_max3_u32 v3, v3, v{w[8]}, v{w[9]}")
            A.e(f"v_max3_u32 v2, v2, v{w[10]}, v{w[11]}")
            A.e(f"v_max_u32 v2, v2, v3")
            A.e(f"v_cmp_eq_u32 vcc, -1, v2")
            A.e("s_nop 4")
            A.e(f"s_cbranch_vccnz L_rr_{nm}")
            A.label(f"L_rk_{nm}")
            again = [rcv(S, rb2, d) for d in range(3)] + ([rcv(S, 1, d) for d in range(3)] if rb2 == 0 else [])
            A.ool["rv" + nm] = [f"L_rr_{nm}:", f"    s_sub_u32 s{S_TO}, s{S_TO}, 1", f"    s_cbranch_scc1 L_rk_{nm}"] + \
                [f"    {t}" for t in again] + ["    s_waitcnt vmcnt(0)", f"    s_branch L_rv_{nm}"]
            k = acc(S, rb2, 0)
            for d in range(3):
                for i in range(8):
                    A.e(f"v_dot2c_f32_bf16 v{k + i}, s{sHI if i & 1 else sLO}, v{rvr(S, rb2, d) + (i >> 1)}")
            for i in range(4):
                A.e(f"v_cvt_pk_bf16_f32 v{k + i}, v{k + 2 * i}, v{k + 2 * i + 1}")
            A.e(f"v_permlane16_swap_b32 v{k}, v{k + 2}")
            A.e(f"v_permlane16_swap_b32 v{k + 1}, v{k + 3}")
            A.vm_issue(f"buffer_store_dwordx4 {vr(k, 4)}, v{VO[S][rb2]}, {sr(S_O, 4)}, 0 offen", "O")
    return A


XA, XB, VW1, VW2, VC = [8, 9, 10, 11], [12, 13, 14, 15], [16, 17, 18, 19], [20, 21, 22, 23], [24, 25, 26, 27]
VHA, VHB, VWR = 28, 29, [30, 31, 32]
VCF, VCL = 33, 34
VFA, VFL, VSA, VSD, VFO, VONE = 49, 50, 51, 52, 56, 57
CT = 58
VAT = [74, 75, 76, 77]
VCI = [84, 85, 86, 87]
sQD = 54
SB = 80
VP1, VP2, VQ = 35, 36, 37
sPL, sMK, sBA, sBB, sSC = 56, 57, 58, 59, 53
sPW, sKA, sKB, sKW, sW, sHA, sHB, sW2, sD, sDC, sONE, sFLG, sK3 = 40, 41, 42, 43, 44, 45, 46, 47, 48, 49, 50, 51, 52


def producer(cfg, HS, K, h0, h1, fused):
    A = St()
    main = h0 == 0
    NB = cfg.get("nb", 6)
    sc = " sc1" if fused else ""
    FR = cfg.get("fr", 0)
    H = K["H"]
    UT = K["UT"]
    if not main:
        K = dict(K)
        K["pAT"] = max(K["pAT"], h0) if not HS[h0]["D"] else -50
        K["scr"] = cfg.get("scr2", 36)
    UN = []
    nst = 0
    for h in range(h0, h1):
        e = HS[h]
        if e["ld"]:
            typ = "AT" if e["D"] else ("W1" if e["ph"] == 1 else "W2")
            UN.append(dict(h=h, i=e["d"], typ=typ, minb=K["pAT"] if e["D"] else -99, e=e, st=None, dl=h - 2))
        if e["D"]:
            if e["ldr"]:
                UN.append(dict(h=h, i=e["r"], typ="C", minb=-99, e=e, st=None, dl=h - 2))
        elif not (main and e["own"]):
            typ = ("X" if e["ph"] == 1 else "H") + "AB"[e["S"]]
            minb = -99
            st = None
            if fused and typ[0] != "X":
                own = typ != "AT" and e["j"] < 2
                minb = {"HA": K["drA" if own else "pA"] if main else -99, "HB": K["drB" if own else "pB"] if main else -99, "AT": K["pAT"]}[typ]
                if cfg.get("stage"):
                    st = h % NB
            if cfg.get("allst") and typ[0] in cfg["allst"]:
                st = nst % NB
                nst += 1
            UN.append(dict(h=h, i=e["r"], typ=typ, minb=minb, e=e, st=st, dl=h - 2))
    nxt = {}
    for u in UN:
        if not u["e"]["D"]:
            j = u["e"]["j"]
            u["jmp"] = (j - nxt.get(u["typ"], 2 if (main and u["typ"][0] == "H" and cfg.get("ownl")) else 0)) % (16 if u["e"]["ph"] == 1 else 14)
            nxt[u["typ"]] = j + 1
    A.e(f"s_sub_u32 s{sPW}, s{S_WAVE}, 4")
    A.e(f"s_lshl_b32 s{sD}, s{sPW}, 12")
    A.e(f"v_lshrrev_b32 v3, 4, v{VL}")
    A.e(f"v_and_b32 v2, 15, v{VL}")
    A.e(f"v_lshlrev_b32 v4, 1, v3")
    A.e(f"v_xor_b32 v2, v2, v4")
    A.e(f"v_lshlrev_b32 v2, 4, v2")

    def wrap14(s):
        return [f"s_add_u32 s{s}, s{s}, {U}", f"s_cmp_eq_u32 s{s}, {14 * U}", f"s_cselect_b32 s{s}, 0, s{s}"]

    def jmp16(s, n):
        return [f"s_add_u32 s{s}, s{s}, {n * 128}", f"s_and_b32 s{s}, s{s}, 2047"] if n else []

    def jmp14(s, n):
        return [f"s_add_u32 s{s}, s{s}, {n * U}", f"s_sub_u32 s{sBB}, s{s}, {14 * U}", f"s_cselect_b32 s{s}, s{s}, s{sBB}"] if n else []

    def pollF(r):
        return f"buffer_load_dword v{r}, v{VP1}, {sr(S_WS, 4)}, s{sPL} offen sc1"

    def tile_check(sp, o):
        sb = sBA
        return [f"s_lshr_b32 s{sb}, s{sp}, 15", f"s_add_u32 s{sb}, s{sb}, {o}", f"s_bitcmp1_b32 s{sMK}, s{sb}", "s_cbranch_scc1 L_tk@", f"s_mov_b32 s{S_TO}, 0x40000", "L_tl@:", pollF(VQ + 1), "s_waitcnt vmcnt(0)",
                f"v_cmp_ne_u32 vcc, 0, v{VQ + 1}", f"s_or_b32 s{sMK}, s{sMK}, vcc_lo", f"s_bitcmp1_b32 s{sMK}, s{sb}", "s_cbranch_scc1 L_tj@",
                f"s_sub_u32 s{S_TO}, s{S_TO}, 1", "s_cbranch_scc0 L_tl@", "L_tj@:", "L_tk@:"]

    def init_w1():
        A.e(f"s_mul_i32 s{S_T0}, s{S_Q}, 7")
        A.e(f"s_add_u32 s{S_T0}, s{S_T0}, s{S_NT}")
        A.e(f"s_lshl_b32 s{S_T0}, s{S_T0}, 8")
        A.e(f"s_mul_i32 s{S_T1}, s{sPW}, {16 * 7168}")
        A.e(f"s_add_u32 s{S_T0}, s{S_T0}, s{S_T1}")
        A.e(f"s_sub_u32 s{S_T0}, s{S_T0}, 256")
        A.e(f"v_mul_u32_u24 v4, 7168, v3")
        A.e(f"v_add3_u32 v{VW1[0]}, v4, v2, s{S_T0}")
        A.e(f"v_add_u32 v{VW1[1]}, {4 * 7168 - 1024}, v{VW1[0]}")
        A.e(f"v_xor_b32 v4, 128, v{VW1[0]}")
        A.e(f"v_add_u32 v{VW1[2]}, {8 * 7168 - 2048}, v4")
        A.e(f"v_add_u32 v{VW1[3]}, {12 * 7168 - 3072}, v4")
        rot = cfg.get("rot", 0)
        A.e(f"s_mul_i32 s{sKW}, s{S_Q}, {rot * 128}")
        A.e(f"s_mul_i32 s{S_T0}, s{S_PAR}, {cfg.get('rotp', 0) * 128}")
        A.e(f"s_add_u32 s{sKW}, s{sKW}, s{S_T0}")
        A.e(f"s_and_b32 s{sKW}, s{sKW}, 2047")
        A.e(f"s_mov_b32 s{sKA}, s{sKW}")
        A.e(f"s_mov_b32 s{sKB}, s{sKW}")

    def chunk(vd):
        A.e(f"v_and_b32 v{vd}, 7, v{VL}")
        A.e(f"v_lshrrev_b32 v6, 4, v{VL}")
        A.e(f"v_xor_b32 v{vd}, v{vd}, v6")
        A.e(f"v_lshlrev_b32 v{vd}, 4, v{vd}")

    def init_xa():
        A.e(f"v_lshrrev_b32 v4, 3, v{VL}")
        A.e(f"s_lshl_b32 s{S_T0}, s{sPW}, 5")
        A.e(f"v_add_u32 v4, s{S_T0}, v4")
        t_of(A, 4, 4, S_T0)
        chunk(5)
        A.e(f"v_lshl_add_u32 v{XA[0]}, v4, 11, v5")
        A.e(f"v_xor_b32 v6, 64, v{XA[0]}")
        A.e(f"v_add_u32 v{XA[1]}, {16 * 2048 - 1024}, v6")
        A.e(f"v_add_u32 v{XA[2]}, {32 * 2048 - 2048}, v{XA[0]}")
        A.e(f"v_add_u32 v{XA[3]}, {48 * 2048 - 3072}, v6")

    def init_xb():
        mirror_t(A, CT, 4, 6)
        A.e(f"v_lshl_add_u32 v{XB[0]}, v{CT}, 11, v5")
        A.e(f"v_sub_u32 v4, 2048, v4")
        A.e(f"v_lshl_add_u32 v4, v4, 11, v5")
        A.e(f"v_xor_b32 v6, 64, v4")
        A.e(f"v_subrev_u32 v{XB[1]}, {16 * 2048 + 1024}, v6")
        A.e(f"v_subrev_u32 v{XB[2]}, {32 * 2048 + 2048}, v4")
        A.e(f"v_subrev_u32 v{XB[3]}, {48 * 2048 + 3072}, v6")

    def init_p1_rest():
        A.e(f"v_and_b32 v{VFA}, 31, v{VL}")
        A.e(f"v_lshlrev_b32 v{VFA}, 2, v{VFA}")
        A.e(f"s_lshr_b32 s{S_T0}, s{sPW}, 1")
        A.e(f"s_lshl_b32 s{S_T0}, s{S_T0}, 5")
        A.e(f"s_and_b32 s{S_T1}, s{sPW}, 1")
        A.e(f"s_lshl3_add_u32 s{S_T0}, s{S_T1}, s{S_T0}")
        A.e(f"v_lshrrev_b32 v4, 3, v{VL}")
        A.e(f"v_add_u32 v4, s{S_T0}, v4")
        A.e(f"v_and_b32 v5, 1, v{VL}")
        A.e(f"v_lshl_add_u32 v4, v5, 4, v4")
        A.e(f"v_bfe_u32 v5, v{VL}, 1, 1")
        A.e(f"v_lshl_add_u32 v4, v5, 6, v4")
        t_of(A, 4, 4, S_T0)
        mirror_t(A, 5, 4, 6)
        A.e(f"v_and_b32 v6, 4, v{VL}")
        A.e(f"v_cmp_ne_u32 vcc, 0, v6")
        A.e(f"v_cndmask_b32 v4, v4, v5, vcc")
        A.e(f"v_lshlrev_b32 v{VSA}, 3, v4")

    def init_fl():
        A.e(f"s_lshl_b32 s{sFLG}, s{S_G}, 7")
        A.e(f"s_lshl_b32 s{S_T0}, s{S_NT}, 2")
        A.e(f"s_add_u32 s{sFLG}, s{sFLG}, s{S_T0}")
        A.e(f"s_add_u32 s{sFLG}, s{sFLG}, {WS_FLAG}")
        A.e(f"v_add_u32 v4, s{sPW}, v{VL}")
        A.e(f"v_min_u32 v4, 1, v4")
        A.e(f"v_lshlrev_b32 v{VFO}, 30, v4")
        A.e(f"v_mov_b32 v{VONE}, 1")

    def init_p2():
        A.e(f"v_lshrrev_b32 v3, 4, v{VL}")
        A.e(f"v_and_b32 v2, 15, v{VL}")
        A.e(f"v_lshlrev_b32 v4, 1, v3")
        A.e(f"v_xor_b32 v2, v2, v4")
        A.e(f"v_lshlrev_b32 v2, 4, v2")
        A.e(f"s_lshl_b32 s{S_T0}, s{S_QB}, 7")
        A.e(f"v_xor_b32 v2, s{S_T0}, v2")
        A.e(f"s_mul_i32 s{S_T0}, s{S_Q}, {14 * 64}")
        A.e(f"s_lshr_b32 s{S_T1}, s{sPW}, 1")
        A.e(f"s_lshl_b32 s{S_T1}, s{S_T1}, 5")
        A.e(f"s_add_u32 s{S_T0}, s{S_T0}, s{S_T1}")
        A.e(f"s_and_b32 s{S_T1}, s{sPW}, 1")
        A.e(f"s_lshl_b32 s{S_T1}, s{S_T1}, 3")
        A.e(f"s_add_u32 s{S_T0}, s{S_T0}, s{S_T1}")
        A.e(f"s_lshl_b32 s{S_T0}, s{S_T0}, 11")
        A.e(f"s_lshl_b32 s{S_T1}, s{S_NT}, 8")
        A.e(f"s_add_u32 s{S_T0}, s{S_T0}, s{S_T1}")
        A.e(f"v_lshl_add_u32 v4, v3, 11, v2")
        A.e(f"v_add_u32 v{VW2[0]}, s{S_T0}, v4")
        A.e(f"v_add_u32 v{VW2[1]}, {16 * 2048 - 1024}, v{VW2[0]}")
        A.e(f"v_xor_b32 v4, 128, v{VW2[0]}")
        A.e(f"v_add_u32 v{VW2[2]}, {4 * 2048 - 2048}, v4")
        A.e(f"v_add_u32 v{VW2[3]}, {20 * 2048 - 3072}, v4")
        A.e(f"s_lshl_b32 s{S_T0}, s{S_PAR}, 2")
        A.e(f"s_add_u32 s{S_T0}, s{S_T0}, s{S_MLO}")
        A.e(f"s_mul_i32 s{S_T0}, s{S_T0}, 112")
        A.e(f"s_mul_i32 s{S_T1}, s{S_Q}, 14")
        A.e(f"s_add_u32 s{S_T0}, s{S_T0}, s{S_T1}")
        A.e(f"s_lshl_b32 s{S_T0}, s{S_T0}, 14")
        A.e(f"v_lshl_add_u32 v{VWR[0]}, v{VL}, 4, s{sD}")
        A.e(f"v_add_u32 v{VWR[1]}, {3 * U}, v{VWR[0]}")
        A.e(f"v_add_u32 v{VWR[2]}, {6 * U}, v{VWR[0]}")
        A.e(f"v_add_u32 v{VHA}, s{S_T0}, v{VWR[0]}")
        A.e(f"v_add_u32 v{VHB}, {56 * U}, v{VHA}")
        A.e(f"s_max_u32 s{S_T0}, s{S_NT}, 1")
        A.e(f"s_sub_u32 s{S_T0}, s{S_T0}, 1")
        A.e(f"s_lshl_b32 s{sHA}, s{S_T0}, 15")
        A.e(f"s_mov_b32 s{sW2}, s{sHA}")
        if main and cfg.get("ownl"):
            for t in wrap14(sHA) + wrap14(sHA):
                A.e(t)
        A.e(f"s_mov_b32 s{sMK}, 0")
        A.e(f"s_mov_b32 s{sHB}, s{sHA}")
        A.e(f"s_lshl_b32 s{sPL}, s{S_G}, 7")
        A.e(f"s_add_u32 s{sPL}, s{sPL}, {WS_FLAG}")
        A.e(f"v_and_b32 v{VP1}, 15, v{VL}")
        A.e(f"v_lshlrev_b32 v{VP1}, 2, v{VP1}")
        A.e(f"s_mul_i32 s{sQD}, s{S_MLO}, {cfg.get('qdm', 1)}")
        A.e(f"s_add_u32 s{sQD}, s{sQD}, s{S_Q}")
        A.e(f"s_and_b32 s{sQD}, s{sQD}, 3")
        A.e(f"s_lshl_b32 s{S_T0}, s{sQD}, 3")
        A.e(f"s_and_b32 s{S_T1}, s{S_NT}, {cfg.get('qdn', 1)}")
        A.e(f"s_lshl1_add_u32 s{sQD}, s{sQD}, s{S_T1}")
        A.e(f"s_lshl_b32 s{sQD}, s{sQD}, 7")
        A.e(f"v_add_u32 v{VP2}, s{S_T0}, v{VL}")
        A.e(f"v_cmp_gt_u32 vcc, 8, v{VL}")
        A.e(f"v_cndmask_b32 v{VP2}, 0, v{VP2}, vcc")
        A.e(f"v_lshlrev_b32 v{VP2}, 7, v{VP2}")
        A.e(f"v_add_u32 v{VP2}, {WS_FLAG}, v{VP2}")

    def init_dft():
        A.e(f"s_lshl_b32 s{S_T0}, s{sPW}, 5")
        A.e(f"v_lshrrev_b32 v4, 3, v{VL}")
        A.e(f"v_add_u32 v4, s{S_T0}, v4")
        t_of(A, 4, 4, S_T0)
        chunk(5)
        A.e(f"v_lshl_add_u32 v{VC[0]}, v4, 12, v5")
        A.e(f"v_xor_b32 v6, 64, v{VC[0]}")
        A.e(f"v_add_u32 v{VC[1]}, {16 * 4096 - 1024}, v6")
        A.e(f"v_add_u32 v{VC[2]}, {32 * 4096 - 2048}, v{VC[0]}")
        A.e(f"v_add_u32 v{VC[3]}, {48 * 4096 - 3072}, v6")
        mirror_t(A, CT, 4, 6)
        A.e(f"v_lshl_add_u32 v{VCI[0]}, v{CT}, 12, v5")
        A.e(f"v_sub_u32 v4, 2048, v4")
        A.e(f"v_lshl_add_u32 v4, v4, 12, v5")
        A.e(f"v_xor_b32 v6, 64, v4")
        A.e(f"v_subrev_u32 v{VCI[1]}, {16 * 4096 + 1024}, v6")
        A.e(f"v_subrev_u32 v{VCI[2]}, {32 * 4096 + 2048}, v4")
        A.e(f"v_subrev_u32 v{VCI[3]}, {48 * 4096 + 3072}, v6")
        A.e(f"s_cmp_ge_u32 s{S_NT}, 4")
        A.e(f"s_cselect_b64 vcc, -1, 0")
        for i in range(4):
            A.e(f"v_cndmask_b32 v{VCI[i]}, v{VCI[i]}, v{VC[i]}, vcc")
        A.e(f"s_lshl_b32 s{S_T0}, s{sPW}, 5")
        A.e(f"s_lshl_b32 s{S_T2}, s{S_QB}, 6")
        A.e(f"s_xor_b32 s{S_T0}, s{S_T0}, s{S_T2}")
        A.e(f"s_lshl_b32 s{S_T1}, s{S_NT}, 7")
        A.e(f"s_add_u32 s{S_T1}, s{S_T0}, s{S_T1}")
        A.e(f"s_mov_b32 s{S_T0}, 0")
        A.e(f"s_mul_i32 s{S_T2}, s{S_PAR}, {AT_TP}")
        A.e(f"s_add_u32 s{S_T0}, s{S_T0}, s{S_T2}")
        A.e(f"s_add_u32 s{S_T0}, s{S_T0}, {WS_AT}")
        A.e(f"s_mov_b32 s{S_T3}, {AT_PE}")
        A.e(f"v_lshrrev_b32 v3, 4, v{VL}")
        A.e(f"v_lshl_add_u32 v3, v3, 9, s{S_T0}")
        for c2 in range(2):
            A.e(f"v_and_b32 v4, 15, v{VL}")
            A.e(f"v_add_u32 v4, s{S_T1}, v4")
            if c2:
                A.e(f"v_add_u32 v4, 16, v4")
            L = []
            mirror_e(L, 4, 5)
            for t in L:
                A.e(t)
            A.e(f"v_add_u32 v4, v3, v4")
            if c2:
                A.e(f"v_subrev_u32 v4, 2048, v4")
            A.e(f"v_mov_b32 v{VAT[2 * c2]}, v4")
            A.e(f"v_add_u32 v{VAT[2 * c2 + 1]}, 1024, v4")
        assert WS_BT - WS_AT == 1 << 21

    ax, aw1, aw2, ac = cfg.get("auxX", ""), cfg.get("auxW1", ""), cfg.get("auxW2", ""), cfg.get("auxC", "")

    def mkpieces(u):
        typ = u["typ"]
        pre, post = [], []
        aux = ""
        if typ[0] == "X":
            V, s = (XA, sKA) if typ == "XA" else (XB, sKB)
            srd_, aux = S_X, ax
            pre += jmp16(s, u["jmp"])
            post = [f"s_add_u32 s{s}, s{s}, 128", f"s_and_b32 s{s}, s{s}, 2047"]
        elif typ[0] == "H":
            V, s = ([VHA] * 4, sHA) if typ == "HA" else ([VHB] * 4, sHB)
            srd_, aux = S_WS, sc
            post = wrap14(s)
            pre += jmp14(s, u["jmp"])
            if (u["e"]["j"] % 2 == 0 or u["jmp"]) and not (main and u["e"]["j"] < 2 and (typ == "HA" or cfg.get("ownchk", 0) == 0)):
                pre += tile_check(s, 1 if typ == "HA" else 9)
        elif typ == "AT":
            V, s, srd_, aux = VAT, sK3, S_WS, sc
            pre = [f"s_lshl_b32 s{sK3}, s{sQD}, 5", f"s_xor_b32 s{sK3}, s{sK3}, {int(u['e']['j'][1]) * 4096 + ((u['e']['j'][0] == 'I') << 21)}"]
        elif typ == "W1":
            pre += jmp16(sKW, u["jmp"])
            pre.append(f"s_mul_i32 s{sW}, s{sKW}, {64 * 7168 // 128}")
            V, srd_, s, aux = VW1, S_W1, sW, aw1
            post = [f"s_add_u32 s{sKW}, s{sKW}, 128", f"s_and_b32 s{sKW}, s{sKW}, 2047"]
        elif typ == "W2":
            pre += jmp14(sW2, u["jmp"])
            pre.append(f"s_lshl_b32 s{sW}, s{sW2}, 3")
            V, srd_, s, aux = VW2, S_W2, sW, aw2
            post = wrap14(sW2)
        else:
            V, srd_, s, aux = (VC, S_CR, sDC, ac) if u["e"]["j"][0] == "R" else (VCI, S_CI, sDC, ac)
            pre = [f"s_xor_b32 s{sDC}, s{sQD}, {int(u['e']['j'][1]) * 128}"]
        if u["st"] is None:
            vm = [f"buffer_load_dwordx4 v{V[p]}, {sr(srd_, 4)}, s{s} offen offset:{p * 1024}{aux} lds" for p in range(4)]
        else:
            b = SB + 16 * u["st"]
            vm = [f"buffer_load_dwordx4 {vr(b + 4 * p, 4)}, v{V[p]}, {sr(srd_, 4)}, s{s} offen offset:{p * 1024} sc1" for p in range(4)]
        return [(pre if p == 0 else [], vm[p], post if p == 3 else []) for p in range(4)]

    byI = {u["i"]: u for u in UN}
    Q = list(UN)
    m0 = [None]
    lastst = {}

    def can(u, b):
        if "pcs" in u:
            return True
        if u["minb"] > b:
            return False
        if u["st"] is not None:
            p = lastst.get(u["st"])
            return p is None or p["h"] - 2 < b
        fb = UT[u["i"]]["fb"]
        return fb < h0 or fb <= b

    def next_piece(b, only=None):
        seen = set()
        u = None
        for c in Q[:12]:
            k = "W" if c["typ"] in ("W1", "W2") else c["typ"]
            if k not in seen and (only is None or c["typ"] == only) and can(c, b):
                u = c
                break
            seen.add(k)
        if u is None:
            return False
        if "pcs" not in u:
            u["pcs"] = mkpieces(u)
            if u["st"] is not None:
                lastst[u["st"]] = u
        pre, vm, post = u["pcs"].pop(0)
        if u["st"] is None and m0[0] != UT[u["i"]]["slot"]:
            m0[0] = UT[u["i"]]["slot"]
            A.e(f"s_add_u32 m0, s{sD}, {m0[0] * U}")
        for t in pre:
            if t.endswith(":"):
                A.label(t[:-1])
            else:
                A.e(t)
        if not (cfg.get("novm") and u["typ"][0] in cfg["novm"]):
            A.vm_issue(vm, u["i"])
        for t in post:
            A.e(t)
        if not u["pcs"]:
            Q.remove(u)
            u["iss"] = True
        return True

    def issue_some(b, lim, only=None):
        while lim > 0 and next_piece(b, only):
            lim -= 1

    def due(b):
        return sum(len(u.get("pcs", [0] * 4)) for u in Q if u["dl"] <= b)

    def pub_w(hh):
        F = []
        for u in UN:
            if u["h"] == hh and u["st"] is not None:
                b = SB + 16 * u["st"]
                sl = UT[u["i"]]["slot"]

                def need(u=u):
                    assert u.get("iss"), ("not issued", u)
                    A.vm_need([u["i"]])
                F.append((0, need))
                for p in range(4):
                    t = f"ds_write_b128 v{VWR[sl // 3]}, {vr(b + 4 * p, 4)} offset:{(sl % 3) * U + p * 1024}"
                    F.append((26, lambda t=t: A.ds_issue(t, "w")))
        return F

    def pub_d(b):
        for u in UN:
            if u["dl"] <= b and u["st"] is None:
                assert u.get("iss"), ("not issued", u)
                A.vm_need([u["i"]])

    pollS = f"buffer_load_dword v{VFL}, v{VFA}, {sr(S_DBG, 4)}, 0 offen sc1"
    bC = K["cs"] - 1
    bS = bC - cfg.get("stat_lead", 6)

    def flag(off):
        A.vm_issue(f"buffer_store_dword v{VONE}, v{VFO}, {sr(S_WS, 4)}, s{sFLG} offen offset:{off} sc1", "F")

    spf = {}
    if main and h1 == H and cfg.get("spf"):
        b0, per = cfg["spf"]
        sPB, sPT, sPO = 88, 89, 90
        spf[b0 - 1] = [f"s_lshl2_add_u32 s{sPB}, s{S_MLO}, s{sPW}", f"s_lshl1_add_u32 s{sPB}, s{sPB}, s{S_PAR}", f"s_lshl_b32 s{sPB}, s{sPB}, 13",
                       f"s_mul_i32 s{S_T0}, s{S_Q}, {896 * 8}", f"s_add_u32 s{S_T0}, s{S_T0}, s{S_NT}", f"s_lshl_b32 s{S_T0}, s{S_T0}, 8",
                       f"s_add_u32 s{sPB}, s{sPB}, s{S_T0}", f"s_sub_u32 s{sPT}, s{S_NT}, 1", f"s_lshl_b32 s{sPT}, s{sPT}, 18"]
        PFL = []
        for k in range(56):
            L = []
            if k % 8 == 0:
                L += [f"s_add_u32 s{sPO}, s{sPB}, s{sPT}", f"s_add_u32 s{sPT}, s{sPT}, {1 << 18}", f"s_cmp_eq_u32 s{sPT}, {7 << 18}", f"s_cselect_b32 s{sPT}, 0, s{sPT}"]
            L.append(f"s_buffer_load_dwordx2 s[92:93], {sr(S_W2, 4)}, s{sPO} offset:{(k % 8 >> 1) * 2048 + (k & 1) * 128 + 60}")
            PFL.append(L)
        if cfg.get("spc") is not None:
            spf[b0 - 1] += [f"s_lshl2_add_u32 s{S_T0}, s{S_NT}, s{sPW}", f"s_lshl_b32 s{S_T1}, s{S_MLO}, 7", f"s_add_u32 s{S_T0}, s{S_T0}, s{S_T1}",
                            f"s_sub_u32 s{S_T0}, s{S_T0}, 4", f"s_lshl1_add_u32 s{S_T0}, s{S_T0}, s{S_PAR}", f"s_lshl_b32 s{S_T0}, s{S_T0}, 12",
                            f"s_and_b32 s{S_T1}, s{sQD}, 0x300", f"s_add_u32 s91, s{S_T0}, s{S_T1}", f"s_sub_u32 s94, s{S_T1}, s{S_T0}", f"s_add_u32 s94, s94, {(2048 - 224) * 4096}"]
            CL = [[f"s_buffer_load_dwordx2 s[92:93], {sr(sd, 4)}, s{sb} offset:{i * 56 * 4096 + ln * 128 + 60}"]
                  for grp in (((S_CR, 91),), ((S_CI, 91), (S_CI, 94))) for ln in range(2) for sd, sb in grp for i in range(5)]
            PFL = PFL[:cfg["spc"]] + CL + PFL[cfg["spc"]:]
        for k, L in enumerate(PFL):
            spf.setdefault(b0 + int(k / per), []).extend(L)
    ramp = list(cfg.get("ramp", [12, 12, 12]))
    lim = cfg.get("lim", 8)
    bgp = cfg.get("bgp", [K["pA"] - 1, K["pA"] + 1, K["pA"] + 3, K["pB"] - 1, K["pB"] + 1, K["pB"] + 3])
    polls = {
             "pAT": (f"buffer_load_dword v{VQ + 3}, v{VP2}, {sr(S_WS, 4)}, 0 offen offset:96 sc1", VQ + 3)}
    if main:
        init_w1()
        issue_some(-99, 4)
        init_xa()
        issue_some(-99, 4)
        init_xb()
        issue_some(-99, ramp[0] - 8)
        init_p1_rest()
        init_fl()
        if h1 > K["p2"]:
            init_p2()
            init_dft()
    else:
        init_p2()
        init_fl()
        lead = cfg.get("lead2", 1)
        if fused:
            A.e(f"v_and_b32 v{VFA}, 31, v{VL}")
            A.e(f"v_lshlrev_b32 v{VFA}, 2, v{VFA}")
            A.vm_issue(pollS, "PS")
            issue_some(-99, 4 * lead, "W2")
            init_dft()
            if HS[h0]["D"]:
                issue_some(-99, 8, "C")
                check_poll(A, "S", pollS, VFL, "PS")
                A.vm_issue(polls["pAT"][0], "pAT")
                check_poll(A, "pAT", polls["pAT"][0], polls["pAT"][1], "pAT")
                issue_some(h0 - 3, 8, "AT")
                ramp[0] = 0
            issue_some(h0 - 3, ramp[0])
        else:
            issue_some(-99, ramp[0])
            init_dft()
    stamp(A, 1, cfg)
    for c_, fn in pub_w(h0):
        fn()
    pub_d(h0 - 2)
    if A.ds:
        A.ds_drain()
    last = h1 - 1
    for b in range(h0 - 1, last + 1):
        A.block()
        A.e("s_barrier")
        if cfg.get("finep"):
            A.e("s_memtime s[96:97]")
        if fused:
            if main and b == K["drA"]:
                flag(0)
                flag(64)
            if main and b == K["drB"]:
                flag(32)
            if not main and b == K["scr"] + 14:
                flag(64)
            for nm, (ld_, rg) in polls.items():
                if b == K[nm]:
                    check_poll(A, nm, ld_, rg, nm)
            if b - 1 in bgp and b - 1 >= h0 - 1:
                A.vm_need(["BG"])
                A.e(f"v_cmp_ne_u32 vcc, 0, v{VQ}")
                A.e(f"s_or_b32 s{sMK}, s{sMK}, vcc_lo")
            if b in bgp:
                A.vm_issue(pollF(VQ), "BG")
            for nm, (ld_, rg) in polls.items():
                if b == K[nm] - 1 and b != h0 - 1:
                    A.vm_issue(ld_, nm)
        F = pub_w(b + 2)
        k = b - (h0 - 1) + 1
        lm = lim
        du = due(b)
        nv = max(ramp[k] if k < len(ramp) else lm, du) - du
        issue_some(b, du)
        gap = cfg.get("gap", 60)
        done = 0
        acc_ = 0
        for c_, fn in F:
            while done < nv and acc_ >= done * gap:
                next_piece(b)
                done += 1
            fn()
            acc_ += c_
        issue_some(b, nv - done)
        for t in spf.get(b, []):
            A.e(t)
        if cfg.get("finep"):
            A.e("s_memtime s[98:99]")
        if fused and not main:
            if b == h0 - 1 and not HS[h0]["D"]:
                assert K["pAT"] - 1 >= b
                check_poll(A, "S", pollS, VFL, "PS")
        if main:
            if b == bS:
                A.vm_issue(pollS, "PS")
            if b == bS + 3:
                check_poll(A, "S", pollS, VFL, "PS")
                A.e(f"s_mov_b32 s{S_T0}, {WS_ST}")
                A.e(f"s_lshl_b32 s{S_T1}, s{sPW}, 8")
                A.e(f"s_add_u32 m0, s{S_T1}, {L_PM}")
                m0[0] = None
                A.vm_issue(f"buffer_load_dword v{VSA}, {sr(S_WS, 4)}, s{S_T0} offen sc1 lds", "SD")
                A.e(f"s_mov_b32 s{S_T0}, {WS_ST + 4}")
                A.e(f"s_add_u32 m0, s{S_T1}, {L_PM + 1024}")
                A.vm_issue(f"buffer_load_dword v{VSA}, {sr(S_WS, 4)}, s{S_T0} offen sc1 lds", "SD")
            if b == bC:
                A.vm_need(["SD"])
        if fused:
            for nm, (ld_, rg) in polls.items():
                if b == K[nm] - 1 and b == h0 - 1:
                    A.vm_issue(ld_, nm)
            if b >= K["scr"] and (b - K["scr"]) % 2 == 0 and b < K["scr"] + 12:
                k_ = (b - K["scr"]) // 2
                if k_ == 0:
                    A.e(f"s_mul_i32 s{sSC}, s2, {cfg.get('pst', 3 * U)}")
                    A.e(f"s_add_u32 s{sSC}, s{sSC}, {WS_PART + cfg.get('scro', 0)}")
                    for i_ in range(4):
                        A.e(f"v_mov_b32 v{SB + i_}, -1")
                for i_ in range(2):
                    A.vm_issue(f"buffer_store_dwordx4 {vr(SB, 4)}, v{VWR[0]}, {sr(S_WS, 4)}, s{sSC} offen offset:{(k_ & 1) * 2048 + i_ * 1024}{cfg.get('scrx', ' sc1')}", "SCR")
                if k_ & 1:
                    A.e(f"s_add_u32 s{sSC}, s{sSC}, {U}")
            if b == (K["drA"] - 1 if main else K["scr"] + 13):
                A.vm_need(["SCR"])
        pub_d(b)
        if A.ds:
            A.ds_drain()
        if cfg.get("finep"):
            A.e("s_memtime s[100:101]")
            A.e("s_waitcnt lgkmcnt(0)")
            for i_ in range(3 if (b + 1 - h0 < 64 or cfg["fine"] == 2) else 0):
                A.e(f"v_writelane_b32 v{253 + i_}, s{96 + 2 * i_}, {(b + 1 - h0) & 63}")
        if b == K["dft"]:
            stamp(A, 3, cfg)
    A.block()
    assert not Q
    return A


def common(A, cfg, end):
    A.e("s_cmp_ge_u32 s2, 256")
    A.e(f"s_cbranch_scc1 {end}")
    A.e("s_load_dwordx2 s[4:5], s[0:1], 0")
    A.e("s_load_dwordx4 s[88:91], s[0:1], 48")
    A.e("s_load_dwordx2 s[6:7], s[0:1], 80")
    A.e("s_load_dwordx4 s[8:11], s[0:1], 8")
    A.e("s_load_dwordx4 s[12:15], s[0:1], 24")
    A.e("s_load_dwordx4 s[92:95], s[0:1], 64")
    A.e("v_lshrrev_b32 v1, 6, v0")
    A.e(f"s_and_b32 s{S_Q}, s2, 3")
    A.e(f"v_readfirstlane_b32 s{S_WAVE}, v1")
    A.e(f"s_bfe_u32 s{S_PAR}, s2, 0x10002")
    A.e("v_and_b32 v1, 63, v0")
    A.e(f"s_bfe_u32 s{S_MLO}, s2, 0x20003")
    A.e(f"s_lshr_b32 s{S_NT}, s2, 5")
    A.e(f"s_and_b32 s{S_G}, s2, 31")
    A.e(f"s_lshr_b32 s{S_QB}, s2, 7")
    A.e(f"s_xor_b32 s{S_QB}, s{S_QB}, s2")
    A.e(f"s_and_b32 s{S_QB}, s{S_QB}, 1")
    if cfg.get("stamps"):
        A.e(f"v_mov_b32 v{STAMP_V}, 0")
    A.e("s_waitcnt lgkmcnt(0)")
    srd(A, S_W1, 88, 1024 * 3584 * 2)
    srd(A, S_X, 4, 2048 * 1024 * 2)
    srd(A, S_WS, 6, WS_BYTES)
    srd(A, S_W2, 90, 1024 * 3584 * 2)
    srd(A, S_DBG, 94, 256)
    srd(A, S_O, 92, 2048 * 1024 * 2)
    srd(A, S_CR, 8, 2048 * 2048 * 2)
    srd(A, S_CI, 10, 2048 * 2048 * 2)
    k1h.stamp(A, 0, enable=cfg.get("stamps"))


def fin(A, cfg, off):
    if cfg.get("stamps"):
        A.e("s_waitcnt vmcnt(0)")
        k1h.stamp(A, 4, enable=True)
        A.e("s_getreg_b32 s61, hwreg(HW_REG_XCC_ID)")
        A.e(f"v_writelane_b32 v{STAMP_V}, s61, 7")
        A.e(f"s_lshl_b32 s60, s2, 3")
        A.e(f"s_add_u32 s60, s60, s{S_WAVE}")
        A.e(f"s_lshl_b32 s60, s60, 8")
        A.e(f"s_add_u32 s60, s60, {WS_DBG + off}")
        A.e("v_and_b32 v1, 63, v0")
        A.e("v_lshlrev_b32 v1, 2, v1")
        A.e(f"buffer_store_dword v{STAMP_V}, v1, {sr(S_WS, 4)}, s60 offen")
        if cfg.get("fine"):
            for i_, r in enumerate((41, 42, 253, 254, 255)):
                A.e(f"s_add_u32 s60, s60, {2 << 20}")
                A.e(f"buffer_store_dword v{r}, v1, {sr(S_WS, 4)}, s60 offen")


def zero_line(A):
    A.e(f"v_and_b32 v2, 0x17, v{VL}")
    A.e(f"v_cmp_eq_u32 vcc, 0, v2")
    A.e(f"v_cndmask_b32 v2, 0, 1, vcc")
    A.e(f"v_lshrrev_b32 v4, 5, v0")
    A.e(f"v_min_u32 v4, 1, v4")
    A.e(f"v_lshlrev_b32 v3, 2, v{VL}")
    A.e(f"v_lshl_add_u32 v3, v4, 30, v3")
    A.e(f"s_lshl_b32 s{S_T0}, s{S_G}, 7")
    A.e(f"s_add_u32 s{S_T0}, s{S_T0}, {WS_FLAG}")
    A.vm_issue(f"buffer_store_dword v2, v3, {sr(S_WS, 4)}, s{S_T0} offen sc1", "Z")


def scrub_s(cfg):
    L = [f"s_mul_i32 s{S_T0}, s2, {cfg.get('pst', 3 * U)}", f"s_lshl_b32 s{S_T1}, s{S_WAVE}, 11", f"s_add_u32 s{S_T0}, s{S_T0}, s{S_T1}",
         f"s_add_u32 s{S_T0}, s{S_T0}, {WS_PART}", f"v_lshlrev_b32 v2, 4, v{VL}"] + [f"v_mov_b32 v{8 + i}, -1" for i in range(4)]
    for d in range(3):
        L += [f"buffer_store_dwordx4 v[8:11], v2, {sr(S_WS, 4)}, s{S_T0} offen offset:{1024 * i} sc1" for i in range(2)] + [f"s_add_u32 s{S_T0}, s{S_T0}, {U}"]
    return L


def at_flag(A):
    A.e("s_waitcnt vmcnt(0) lgkmcnt(0)")
    A.e("s_barrier")
    A.e(f"v_min_u32 v2, 1, v0")
    A.e(f"v_lshlrev_b32 v2, 30, v2")
    A.e(f"v_mov_b32 v3, 1")
    A.e(f"s_lshl_b32 s{S_T0}, s{S_G}, 7")
    A.e(f"s_add_u32 s{S_T0}, s{S_T0}, {WS_FLAG}")
    A.e(f"buffer_store_dword v3, v2, {sr(S_WS, 4)}, s{S_T0} offen offset:96 sc1")


def uniq(L):
    nb, nl, out = {}, {}, []
    for t in L:
        if t.endswith("@"):
            k = t.split()[-1]
            nb[k] = nb.get(k, 0) + 1
            t = t[:-1] + f"_{nb[k]}"
        elif t.endswith("@:"):
            k = t[:-1]
            nl[k] = nl.get(k, 0) + 1
            t = t[:-2] + f"_{nl[k]}:"
        out.append(t)
    return out


def join(name, M, Jn, rl):
    bm, bj = M.blocks(), Jn.blocks()
    k = 0
    while k < min(len(bm), len(bj)) - 1 and bm[len(bm) - 1 - k] == bj[len(bj) - 1 - k]:
        k += 1
    lab = f"L_{name}_join"
    main = roll(bm[:len(bm) - k], name + "a", rl) + [lab + ":"] + roll(bm[len(bm) - k:], name + "b", rl)
    pre = roll(bj[:len(bj) - k], name + "c", rl) + [f"    s_branch {lab}"]
    return main, pre, len(bj) - k


HEADER = """; out = x + Re(DFT_seq(DFT_hid(LN x))) + relu(LN(x) w1) w2      (generated code)
; Symmetries of the constant DFT matrices that are used (C = seq tables, D = hidden tables):
;   Dr[e,1024-d]=Dr[e,d], Di[e,1024-d]=-Di[e,d], D[e,512+-d]=(-1)^e-type mirror, same mirrors in e;
;   Cr[t,2048-s]=Cr[t,s], Ci[t,2048-s]=-Ci[t,s], C[t,1024+-s]=(-1)^t-type mirror, same mirrors in t.
; folded (sums / differences of mirrored samples) before each product."""


def build(cfg):
    import k1s
    fused = cfg.get("fused", True)
    rl = cfg.get("roll", True)
    HS, K = make_sched(cfg)
    A = Asm()
    names = ["pk_kernel"] if fused else ["k1_kernel", "k2_kernel"]
    for nm in names:
        A.raw(f"; @launch kernel={nm} grid=(256,1,1) block=(512,1,1) lds=163840")
    for l in HEADER.split("\n"):
        A.raw(l)
    A.raw('.amdgcn_target "amdgcn-amd-amdhsa--gfx950"')
    A.raw(".text")
    scfg = dict(cfg)
    scfg["zflag"] = False
    scfg["early"] = True
    if fused:
        L0 = pf_w2(cfg, 253, 252)
        scfg["hook"] = L0[:-1] + [f"s_cmp_ge_u32 s{S_WAVE}, 4", "s_cbranch_scc1 L_nopf", L0[-1][1], "L_nopf:"]
    scfg.setdefault("s_store_aux", " sc1")
    H, hp2 = K["H"], K["p2"]
    if fused:
        kernel_begin(A, names[0])
        common(A, cfg, "L_end")
        C, P = consumer(cfg, HS, K, 0, H, True), producer(cfg, HS, K, 0, H, True)
        HJ, KJ = join_sched(cfg, HS, K) if cfg.get("q2j") else (HS, K)
        C2, P2 = consumer(cfg, HJ, KJ, hp2, H, True), producer(cfg, HJ, KJ, hp2, H, True)
        cm, cp, nc = join("c", C, C2, rl)
        pm, pp, np_ = join("p", P, P2, rl)
        print("join after blocks: consumer", nc, "producer", np_, {k: v for k, v in K.items() if k not in ("UT", "LA")}, file=sys.stderr)
        A.e(f"s_cmp_eq_u32 s{S_NT}, 0")
        A.e("s_cbranch_scc1 L_special")
        A.e(f"s_cmp_ge_u32 s{S_WAVE}, 4")
        A.e("s_cbranch_scc1 L_prod")
        A.L += cm
        A.e("s_branch L_fin")
        A.label("L_prod")
        A.L += pm
        A.e("s_branch L_fin")
        A.label("L_special")
        zero_line(A)
        k1s.k1_special(A, scfg)
        at_flag(A)
        if cfg.get("pf3", 1):
            L1 = pf_w2(cfg, 4, VPF)
            for t in L1[:-1]:
                A.e(t)
            A.e(f"s_cmp_ge_u32 s{S_WAVE}, 4")
            A.e("s_cbranch_scc1 L_nopf3")
            A.e(L1[-1][1])
            A.e(f"s_mul_i32 s{S_T2}, s{S_PAR}, {-56 * 2048}")
            A.e(f"s_add_u32 s{S_T2}, s{S_T2}, {28 * 2048}")
            A.e(f"v_add_u32 v4, s{S_T2}, v4")
            A.e(L1[-1][1])
            A.label("L_nopf3")
        k1h.stamp(A, 12, enable=cfg.get("stamps"))
        A.e(f"s_cmp_ge_u32 s{S_WAVE}, 4")
        A.e("s_cbranch_scc1 L_prod2")
        A.L += cp
        A.label("L_prod2")
        A.L += pp
        ool = {}
        for s in (C, P, C2, P2):
            ool.update(s.ool)
        for L in ool.values():
            A.L += L
        A.label("L_fin")
        fin(A, cfg, 0)
        A.label("L_end")
        A.e("s_endpgm")
    else:
        for ki, (h0, h1) in enumerate(((0, hp2), (hp2, H))):
            nm = names[ki]
            kernel_begin(A, nm)
            common(A, cfg, f"L_end{ki}")
            C, P = consumer(cfg, HS, K, h0, h1, False), producer(cfg, HS, K, h0, h1, False)
            if ki == 0:
                A.e(f"s_cmp_eq_u32 s{S_NT}, 0")
                A.e("s_cbranch_scc1 L_special")
            A.e(f"s_cmp_ge_u32 s{S_WAVE}, 4")
            A.e(f"s_cbranch_scc1 L_prod{ki}")
            A.L += roll(C.blocks(), f"c{ki}", rl)
            A.e(f"s_branch L_fin{ki}")
            A.label(f"L_prod{ki}")
            A.L += roll(P.blocks(), f"p{ki}", rl)
            A.e(f"s_branch L_fin{ki}")
            for s in (C, P):
                for L in s.ool.values():
                    A.L += L
            if ki == 0:
                A.label("L_special")
                zero_line(A)
                k1s.k1_special(A, scfg)
                at_flag(A)
            A.label(f"L_fin{ki}")
            fin(A, cfg, ki << 20)
            A.label(f"L_end{ki}")
            A.e("s_endpgm")
    A.raw('.section .rodata,"a"')
    for nm in names:
        descriptor(A, nm)
    A.L = uniq(A.L)
    return A.text(cfg.get("hv", False))


if __name__ == "__main__":
    cfg = dict(stamps=("stamps" in sys.argv))
    for a in sys.argv[2:]:
        if "=" in a:
            k, v = a.split("=", 1)
            try:
                v = eval(v)
            except Exception:
                pass
            cfg[k] = v
    open(sys.argv[1], "w").write(build(cfg))
```

```python
from asmlib import *
from k1h import *

KSTR = 32 * 528
L_T2 = 4 * KSTR
L_RA = 69888
L_XR = L_RA + 65536
OOB = 0x40000000


def k1_special(A, cfg):
    dbg = cfg.get("stamps", False)
    aux = cfg.get("s_store_aux", "")
    VL, T0, T1, T2_, T3 = 1, 2, 3, 4, 5
    VC = 6
    RO = [8, 9, 10, 11]
    Q = 64
    SH = 12
    VP = [20, 21]
    sQB, sKind, sPE, sHB, sTmp, sTmp2, sNB, sSrc, sOut = 40, 41, 42, 43, 44, 45, 46, 47, 48
    sSlot = [50, 51, 52, 53]
    sOne = 54
    A.c("---- K1 special ----")
    A.e(f"s_mov_b32 s{sQB}, s2")
    A.e(f"s_lshr_b32 s{sKind}, s{S_WAVE}, 1")
    A.e(f"s_and_b32 s{sPE}, s{sKind}, 1")
    A.e(f"s_and_b32 s{sHB}, s{S_WAVE}, 1")
    A.e(f"s_cmp_ge_u32 s{S_WAVE}, 4")
    A.e(f"s_cselect_b32 s12, s14, s12")
    A.e(f"s_cselect_b32 s13, s15, s13")
    srd(A, S_D, 12, 1024 * 1024 * 2)
    A.e(f"v_and_b32 v{VC}, 31, v{VL}")
    A.e(f"v_lshrrev_b32 v{T0}, 5, v{VL}")
    A.e(f"s_lshl_b32 s{sTmp}, s{sQB}, 4")
    A.e(f"s_lshl_b32 s{sTmp2}, s{S_WAVE}, 1")
    A.e(f"s_add_u32 s{sTmp}, s{sTmp}, s{sTmp2}")
    A.e(f"v_add_u32 v{T0}, s{sTmp}, v{T0}")
    A.e(f"v_lshlrev_b32 v{RO[0]}, 11, v{T0}")
    A.e(f"v_cmp_eq_u32 s[56:57], 0, v{T0}")
    A.e(f"v_sub_u32 v{RO[1]}, {2048*2048}, v{RO[0]}")
    A.e(f"v_sub_u32 v{RO[2]}, {1024*2048}, v{RO[0]}")
    A.e(f"v_add_u32 v{RO[3]}, {1024*2048}, v{RO[0]}")
    A.e(f"v_mov_b32 v{T1}, {512*2048}")
    A.e(f"v_mov_b32 v{T2_}, {1536*2048}")
    A.e(f"v_cndmask_b32 v{RO[1]}, v{RO[1]}, v{T1}, s[56:57]")
    A.e(f"v_cndmask_b32 v{RO[3]}, v{RO[3]}, v{T2_}, s[56:57]")
    A.e(f"v_lshlrev_b32 v{T0}, 4, v{VC}")
    A.e(f"v_sub_u32 v{T1}, 1008, v{T0}")
    A.e(f"v_cmp_eq_u32 s[58:59], 0, v{VC}")
    A.e(f"v_mov_b32 v{T2_}, {OOB}")
    A.e(f"v_cndmask_b32 v{T2_}, v{T1}, v{T2_}, s[58:59]")
    for i in range(8):
        A.e(f"v_mov_b32 v{SH+i}, 0")
    for r in range(4):
        a, b = 22 + 2*(r & 1), 23 + 2*(r & 1)
        A.e(f"v_add_u32 v{a}, v{RO[r]}, v{T0}")
        A.e(f"v_add_u32 v{b}, v{RO[r]}, v{T1}")
        A.vm_issue(f"buffer_load_dwordx4 {vr(Q+16*r+0, 4)}, v{a}, {sr(S_X,4)}, 0 offen", ("Q", r))
        A.vm_issue(f"buffer_load_dwordx4 {vr(Q+16*r+8, 4)}, v{b}, {sr(S_X,4)}, 0 offen", ("Q", r))
        A.vm_issue(f"buffer_load_dwordx4 {vr(Q+16*r+12, 4)}, v{a}, {sr(S_X,4)}, 0 offen offset:1024", ("Q", r))
        A.vm_issue(f"buffer_load_dwordx4 {vr(Q+16*r+4, 4)}, v{b}, {sr(S_X,4)}, 0 offen offset:1024", ("Q", r))
    for r in range(4):
        a = 22 + (r & 1)
        A.e(f"v_add_u32 v{a}, v{RO[r]}, v{T2_}")
        A.vm_issue(f"buffer_load_short_d16_hi v{SH+2*r}, v{a}, {sr(S_X,4)}, 0 offen offset:1040", ("SH", r))
        A.vm_issue(f"buffer_load_short_d16_hi v{SH+2*r+1}, v{a}, {sr(S_X,4)}, 0 offen offset:16", ("SH", r))
    A.e(f"v_lshrrev_b32 v{T0}, 3, v{VL}")
    A.e(f"v_lshlrev_b32 v{T0}, 12, v{T0}")
    A.e(f"v_and_b32 v{T1}, 7, v{VL}")
    A.e(f"v_lshrrev_b32 v{T2_}, 4, v{VL}")
    A.e(f"v_xor_b32 v{T1}, v{T1}, v{T2_}")
    A.e(f"v_lshl_add_u32 v{VP[0]}, v{T1}, 4, v{T0}")
    A.e(f"v_xor_b32 v{VP[1]}, 64, v{VP[0]}")
    A.e(f"v_add_u32 v{VP[1]}, {8*4096}, v{VP[1]}")
    sBlk, sOutB, sOutM, sMask = 62, 55, 63, 49
    A.e(f"s_bfe_u32 s{sBlk}, s{sQB}, 0x10003")
    A.e(f"s_lshl1_add_u32 s{sBlk}, s{sHB}, s{sBlk}")
    A.e(f"s_lshl_b32 s{sSrc}, s{sBlk}, 6")
    A.e(f"s_add_u32 s{sSrc}, s{sSrc}, s{sPE}")
    A.e(f"s_lshl_b32 s{sSrc}, s{sSrc}, 11")
    A.e(f"s_lshl_b32 s{sTmp}, s{S_WAVE}, 13")
    A.e(f"s_add_u32 s{sSlot[0]}, s{sTmp}, {L_RA}")
    A.e(f"s_add_u32 s{sSlot[1]}, s{sTmp}, {L_RA + 4096}")
    A.e(f"s_mov_b32 s{sSlot[2]}, s{sTmp}")
    A.e(f"s_add_u32 s{sSlot[3]}, s{sTmp}, 4096")

    def dma_slot(q, nxt, tag):
        for p in range(4):
            A.e(f"s_add_u32 m0, s{sSlot[q]}, {p*1024}")
            A.e(f"s_add_u32 s{sTmp}, s{sSrc}, {(p >> 1)*16*4096 + q*128}")
            A.vm_issue(f"buffer_load_dwordx4 v{VP[p & 1]}, {sr(S_D,4)}, s{sTmp} offen{cfg.get('auxD', '')} lds", tag)

    PX = 28
    A.e(f"v_lshlrev_b32 v{T0}, 12, v{VC}")
    A.e(f"v_lshrrev_b32 v{T1}, 5, v{VL}")
    A.e(f"v_lshl_add_u32 v{T0}, v{T1}, 30, v{T0}")
    A.e(f"s_lshl_b32 s{sTmp}, s{sPE}, 11")
    A.vm_issue(f"buffer_load_ushort v{PX}, v{T0}, {sr(S_D,4)}, s{sTmp} offen offset:512", "PX")
    for i in range(1, 4):
        A.e(f"v_mov_b32 v{PX+i}, 0")
    A.e(f"s_lshl_b32 s{sTmp}, s{S_WAVE}, 10")
    A.e(f"s_add_u32 m0, s{sTmp}, {L_XR}")
    A.e(f"v_lshlrev_b32 v{T0}, 4, v{VL}")
    A.e(f"s_mov_b32 s{sTmp}, {256*2048}")
    A.vm_issue(f"buffer_load_dwordx4 v{T0}, {sr(S_D,4)}, s{sTmp} offen lds", "XR")
    stamp(A, 1, enable=dbg)
    ST = 32
    A.e(f"s_mov_b32 s{sOne}, 0x3f803f80")
    for i in range(8):
        A.e(f"v_mov_b32 v{ST+i}, 0")
    for r in range(0, 4, 2):
        A.vm_need([("Q", r), ("Q", r+1)])
        dma_slot(r >> 1, 0, ("D", r >> 1))
        for i in range(16):
            for rr in (r, r+1):
                A.e(f"v_dot2c_f32_bf16 v{ST+2*rr}, s{sOne}, v{Q+16*rr+i}")
                A.e(f"v_dot2c_f32_bf16 v{ST+2*rr+1}, v{Q+16*rr+i}, v{Q+16*rr+i}")
    for sh in (8, 4, 2, 1):
        for i in range(8):
            A.e(f"v_add_f32_dpp v{ST+i}, v{ST+i}, v{ST+i} row_ror:{sh} row_mask:0xf bank_mask:0xf")
    for i in range(8):
        A.e(f"v_mov_b32 v{ST+8+i}, v{ST+i}")
    for i in range(8):
        A.e(f"v_permlane16_swap_b32 v{ST+i}, v{ST+8+i}")
    for i in range(8):
        A.e(f"v_add_f32 v{ST+i}, v{ST+i}, v{ST+8+i}")
    PUB, MB = 40, 48
    for r in range(4):
        A.e(f"v_mul_f32 v{ST+2*r}, {1.0/1024}, v{ST+2*r}")
        A.e(f"v_mul_f32 v{ST+2*r+1}, {1.0/1024}, v{ST+2*r+1}")
    for r in range(4):
        A.e(f"v_fma_f32 v{ST+2*r+1}, -v{ST+2*r}, v{ST+2*r}, v{ST+2*r+1}")
    for r in range(4):
        A.e(f"v_max_f32 v{ST+2*r+1}, 0, v{ST+2*r+1}")
    for r in range(4):
        A.e(f"v_cvt_pk_bf16_f32 v{ST+2*r+1}, v{ST+2*r+1}, v{ST+2*r+1}")
    for r in range(4):
        A.e(f"v_and_b32 v{ST+2*r+1}, 0xffff0000, v{ST+2*r+1}")
    for r in range(4):
        A.e(f"v_add_f32 v{ST+2*r+1}, 0x3727c5ac, v{ST+2*r+1}")
    for r in range(4):
        A.e(f"v_cvt_pk_bf16_f32 v{ST+2*r+1}, v{ST+2*r+1}, v{ST+2*r+1}")
    for r in range(4):
        A.e(f"v_and_b32 v{ST+2*r+1}, 0xffff0000, v{ST+2*r+1}")
    for r in range(4):
        A.e(f"v_sqrt_f32 v{ST+2*r+1}, v{ST+2*r+1}")
    for r in range(4):
        A.e(f"v_cvt_pk_bf16_f32 v{PUB+2*r}, v{ST+2*r}, v{ST+2*r}")
    for r in range(4):
        A.e(f"v_cvt_pk_bf16_f32 v{ST+2*r+1}, v{ST+2*r+1}, v{ST+2*r+1}")
    for r in range(4):
        A.e(f"v_and_b32 v{ST+2*r+1}, 0xffff0000, v{ST+2*r+1}")
    for r in range(4):
        A.e(f"v_rcp_f32 v{PUB+2*r+1}, v{ST+2*r+1}")
    for r in range(4):
        A.e(f"v_and_b32 v{MB+r}, 0xffff0000, v{PUB+2*r}")
        A.e(f"v_lshrrev_b32 v{RO[r]}, 8, v{RO[r]}")
    A.e(f"s_mov_b32 s{sTmp2}, {WS_ST}")
    A.e(f"s_mov_b64 exec, s[58:59]")
    for r in range(4):
        A.vm_issue(f"buffer_store_dwordx2 {vr(PUB+2*r, 2)}, v{RO[r]}, {sr(S_WS,4)}, s{sTmp2} offen sc1", "ST")
    A.e(f"s_mov_b64 exec, -1")
    WA, WB = 52, 56
    Rr = [PUB + 2*r + 1 for r in range(4)]
    A.e(f"v_mov_b32 v{WA}, v{Rr[0]}")
    A.e(f"v_cndmask_b32 v{WA+1}, v{Rr[1]}, 0, s[56:57]")
    A.e(f"v_mov_b32 v{WA+2}, v{Rr[2]}")
    A.e(f"v_cndmask_b32 v{WA+3}, v{Rr[3]}, 0, s[56:57]")
    A.e(f"v_cndmask_b32 v{WB}, v{Rr[0]}, 0, s[56:57]")
    A.e(f"v_cndmask_b32 v{WB+1}, -v{Rr[1]}, v{Rr[1]}, s[56:57]")
    A.e(f"v_cndmask_b32 v{WB+2}, v{Rr[2]}, 0, s[56:57]")
    A.e(f"v_xor_b32 v{WB+3}, 0x80000000, v{Rr[3]}")
    KG, KH, KT = 32, 34, 36
    A.e(f"v_mul_f32 v{KG+1}, v{WA}, v{MB}")
    A.e(f"v_mul_f32 v{KH+1}, v{WA+2}, v{MB+2}")
    A.e(f"v_mul_f32 v{KT+1}, v{Rr[1]}, v{MB+1}")
    A.e(f"v_fmac_f32 v{KG+1}, v{WA+1}, v{MB+1}")
    A.e(f"v_fmac_f32 v{KH+1}, v{WA+3}, v{MB+3}")
    A.e(f"v_fmac_f32 v{KT+1}, v{Rr[3]}, v{MB+3}")
    G8A, H8A, T8, G8B, H8B = 60, 61, 62, 38, 39
    A.e(f"v_mul_f32 v{G8A}, -2.0, v{KG+1}")
    A.e(f"v_mul_f32 v{H8A}, -2.0, v{KH+1}")
    A.e(f"v_mul_f32 v{T8}, -2.0, v{KT+1}")
    A.e(f"v_mov_b32 v{G8B}, 0")
    A.e(f"v_mov_b32 v{H8B}, 0")
    for K, E in ((KG, G8A), (KH, H8A), (KT, T8)):
        A.e(f"v_mul_f32 v{K+1}, -4.0, v{K+1}")
    for K, E in ((KG, G8A), (KH, H8A), (KT, T8)):
        A.e(f"v_cndmask_b32 v{K}, v{K+1}, v{E}, s[58:59]")
    U0, U1, U2, U3 = 128, 136, 146, 156
    G, H, TT = 164, 196, 228
    PA = 244

    def bc(reg):
        b = reg & ~1
        return vr(b, 2), reg & 1

    def flag():
        A.e(f"s_cmp_lg_u32 s{S_WAVE}, 0")
        A.e(f"s_cbranch_scc1 L_k1s_noflag")
        A.e(f"s_lshl_b32 s{sTmp}, s{sQB}, 2")
        A.e(f"v_mov_b32 v{T0}, s{sTmp}")
        A.e(f"v_mov_b32 v{T1}, 1")
        A.e(f"s_mov_b64 exec, 1")
        A.e(f"buffer_store_dword v{T1}, v{T0}, {sr(S_DBG,4)}, 0 offen sc1")
        if cfg.get("zflag", True):
            A.e(f"s_lshl_b32 s{sTmp}, s{sQB}, 7")
            A.e(f"s_add_u32 s{sTmp}, s{sTmp}, {WS_FLAG}")
            A.e(f"v_mov_b32 v{T2_}, 0")
            A.e(f"buffer_store_dword v{T2_}, v{T2_}, {sr(S_WS,4)}, s{sTmp} offen")
        A.e(f"s_mov_b64 exec, -1")
        if not cfg.get("early"):
            A.e("s_waitcnt vmcnt(0)")
        A.label("L_k1s_noflag")

    for r in range(4):
        q = Q + 16*r
        if r == cfg.get("early_r", 1) and cfg.get("early"):
            A.vm_drain()
            A.e("s_barrier")
            stamp(A, 5, enable=dbg)
            flag()
            A.e(f"s_mul_i32 s{sTmp}, s2, {3*16384}")
            A.e(f"s_mul_i32 s{sTmp2}, s{S_WAVE}, {6*1024}")
            A.e(f"s_add_u32 s{sTmp}, s{sTmp}, s{sTmp2}")
            A.e(f"s_add_u32 s{sTmp}, s{sTmp}, {WS_PART}")
            A.e(f"s_add_u32 s{sTmp2}, s{sTmp}, 3072")
            A.e(f"v_lshlrev_b32 v{T0}, 4, v{VL}")
            for i in range(4):
                A.e(f"v_mov_b32 v{252+i}, -1")
            for i in range(6):
                A.e(f"buffer_store_dwordx4 v[252:255], v{T0}, {sr(S_WS,4)}, s{sTmp if i < 3 else sTmp2} offen offset:{(i % 3)*1024} sc1")
        A.vm_need([("SH", r)])
        for k in range(8):
            op = f"v_and_b32 v{{}}, 0xffff0000, v{{}}" if k & 1 else f"v_lshlrev_b32 v{{}}, 16, v{{}}"
            A.e(op.format(U0 + k, q + (k >> 1)))
            A.e(op.format(U3 + k, q + 12 + (k >> 1)))
            A.e(op.format(U1 + 8 - k, q + 4 + (k >> 1)))
            A.e(op.format(U2 + 8 - k, q + 8 + (k >> 1)))
        A.e(f"v_mov_b32 v{U1}, v{SH+2*r}")
        A.e(f"v_mov_b32 v{U2}, v{SH+2*r+1}")
        ACC = G if r < 2 else H
        first = (r & 1) == 0
        wa, sa = bc(WA + r)
        wb, sb = bc(WB + r)
        wt, st_ = bc(Rr[r])
        K = KG if r < 2 else KH
        for j in range(0, 8, 2):
            p, u, m_, w = PA, PA+2, PA+4, PA+6
            A.e(f"v_pk_add_f32 {vr(p,2)}, {vr(U0+j,2)}, {vr(U1+j,2)}")
            A.e(f"v_pk_add_f32 {vr(u,2)}, {vr(U2+j,2)}, {vr(U3+j,2)}")
            A.e(f"v_pk_add_f32 {vr(m_,2)}, {vr(U0+j,2)}, {vr(U1+j,2)} neg_lo:[0,1] neg_hi:[0,1]")
            A.e(f"v_pk_add_f32 {vr(w,2)}, {vr(U2+j,2)}, {vr(U3+j,2)} neg_lo:[0,1] neg_hi:[0,1]")
            A.e(f"v_pk_add_f32 {vr(U0+j,2)}, {vr(p,2)}, {vr(u,2)}")
            A.e(f"v_pk_add_f32 {vr(U1+j,2)}, {vr(p,2)}, {vr(u,2)} neg_lo:[0,1] neg_hi:[0,1]")
            A.e(f"v_pk_add_f32 {vr(U2+j,2)}, {vr(m_,2)}, {vr(w,2)} neg_lo:[0,1] neg_hi:[0,1]")
            A.e(f"v_pk_add_f32 {vr(U3+j,2)}, {vr(m_,2)}, {vr(w,2)}")
            for kind, U in enumerate((U0, U1, U2, U3)):
                wv, sv = (wa, sa) if kind < 2 else (wb, sb)
                d = vr(ACC + 8*kind + j, 2)
                if first and kind == 0:
                    k0 = 0 if j == 0 else 1
                    A.e(f"v_pk_fma_f32 {d}, {vr(U+j,2)}, {wv}, {vr(K,2)} op_sel:[0,{sv},{k0}] op_sel_hi:[1,{sv},1]")
                elif first:
                    A.e(f"v_pk_mul_f32 {d}, {vr(U+j,2)}, {wv} op_sel:[0,{sv}] op_sel_hi:[1,{sv}]")
                else:
                    A.e(f"v_pk_fma_f32 {d}, {vr(U+j,2)}, {wv}, {d} op_sel:[0,{sv},0] op_sel_hi:[1,{sv},1]")
            if not first:
                for kind, U in enumerate((U0, U1)):
                    d = vr(TT + 8*kind + j, 2)
                    if r == 1 and kind == 0:
                        k0 = 0 if j == 0 else 1
                        A.e(f"v_pk_fma_f32 {d}, {vr(U+j,2)}, {wt}, {vr(KT,2)} op_sel:[0,{st_},{k0}] op_sel_hi:[1,{st_},1]")
                    elif r == 1:
                        A.e(f"v_pk_mul_f32 {d}, {vr(U+j,2)}, {wt} op_sel:[0,{st_}] op_sel_hi:[1,{st_}]")
                    else:
                        A.e(f"v_pk_fma_f32 {d}, {vr(U+j,2)}, {wt}, {d} op_sel:[0,{st_},0] op_sel_hi:[1,{st_},1]")
        A.e(f"v_add_f32 v{PA}, v{U2+8}, v{U1+8}")
        A.e(f"v_sub_f32 v{PA+1}, v{U2+8}, v{U1+8}")
        A.e(f"v_fmac_f32 v{G8A if r < 2 else H8A}, v{WA+r}, v{PA}")
        A.e(f"v_fmac_f32 v{G8B if r < 2 else H8B}, v{WB+r}, v{PA+1}")
        if not first:
            A.e(f"v_fmac_f32 v{T8}, v{Rr[r]}, v{PA}")
    VTW = 22
    A.e(f"v_lshrrev_b32 v{T0}, 5, v{VL}")
    A.e(f"s_lshl_b32 s{sTmp}, s{S_WAVE}, 1")
    A.e(f"v_add_u32 v{T1}, s{sTmp}, v{T0}")
    A.e(f"v_mul_u32_u24 v{T1}, 528, v{T1}")
    A.e(f"v_lshl_add_u32 v{VTW}, v{VC}, 4, v{T1}")
    A.e(f"v_mul_u32_u24 v{T0}, 528, v{T0}")
    A.e(f"v_lshl_add_u32 v{VTW+1}, v{VC}, 4, v{T0}")
    A.e(f"v_add_u32 v{VTW+1}, {L_T2}, v{VTW+1}")
    O = Q
    n = 0
    for kind in range(4):
        for tp in range(2):
            neg = (tp == 1) if kind < 2 else (tp == 0)
            t = U0 + 8*(n & 1)
            o = O + 4*n
            n += 1
            for j in range(0, 8, 2):
                A.e(f"v_pk_add_f32 {vr(t+j,2)}, {vr(G+8*kind+j,2)}, {vr(H+8*kind+j,2)}" + (" neg_lo:[0,1] neg_hi:[0,1]" if neg else ""))
            for j in range(0, 8, 2):
                A.e(f"v_cvt_pk_bf16_f32 v{o + j//2}, v{t+j}, v{t+j+1}")
            A.e(f"ds_write_b128 v{VTW}, {vr(o,4)} offset:{kind*KSTR + tp*16*528}")
    Z = 96
    for i in range(20):
        if i & 3:
            A.e(f"v_mov_b32 v{Z+i}, 0")
    A.e(f"v_add_f32 v{PA}, v{G8A}, v{H8A}")
    A.e(f"v_sub_f32 v{PA+1}, v{G8A}, v{H8A}")
    A.e(f"v_sub_f32 v{PA+2}, v{G8B}, v{H8B}")
    A.e(f"v_add_f32 v{PA+3}, v{G8B}, v{H8B}")
    for i in range(4):
        A.e(f"v_cvt_pk_bf16_f32 v{Z+4*i}, v{PA+i}, 0")
    A.e(f"v_cvt_pk_bf16_f32 v{Z+16}, v{T8}, 0")
    for kind in range(2):
        for j in range(0, 8, 2):
            A.e(f"v_cvt_pk_bf16_f32 v{116 + 4*kind + j//2}, v{TT+8*kind+j}, v{TT+8*kind+j+1}")
    A.e(f"s_mov_b32 s60, 0x80000000")
    A.e(f"s_mov_b32 s61, 0x80000000")
    A.e(f"s_cmp_lg_u32 s{S_WAVE}, 0")
    A.e(f"s_cbranch_scc1 L_k1s_not2")
    for kind in range(2):
        A.e(f"ds_write_b128 v{VTW+1}, {vr(116+4*kind,4)} offset:{kind*1056}")
    A.e(f"s_mov_b64 exec, s[60:61]")
    for kind in range(2):
        A.e(f"ds_write_b128 v{VTW+1}, {vr(Z+16,4)} offset:{kind*1056 + 16}")
    A.label("L_k1s_not2")
    A.e(f"s_mov_b64 exec, s[60:61]")
    for kind in range(4):
        for tp in range(2):
            A.e(f"ds_write_b128 v{VTW}, {vr(Z + 4*((kind >> 1)*2 + tp), 4)} offset:{kind*KSTR + tp*16*528 + 16}")
    A.e(f"s_mov_b64 exec, -1")
    VTR, VTX, VT2R = 22, 23, 24
    A.e(f"v_and_b32 v{T0}, 19, v{VL}")
    A.e(f"v_bfe_u32 v{T1}, v{VL}, 2, 1")
    A.e(f"v_lshl_add_u32 v{T0}, v{T1}, 3, v{T0}")
    A.e(f"v_bfe_u32 v{T1}, v{VL}, 3, 1")
    A.e(f"v_lshl_add_u32 v{T0}, v{T1}, 2, v{T0}")
    A.e(f"v_mul_u32_u24 v{T0}, 528, v{T0}")
    A.e(f"s_mul_i32 s{sTmp}, s{sKind}, {KSTR}")
    A.e(f"v_lshrrev_b32 v{T1}, 5, v{VL}")
    A.e(f"s_mul_i32 s{sTmp2}, s{sPE}, 1056")
    A.e(f"s_add_u32 s{sTmp2}, s{sTmp2}, {L_T2}")
    A.e("s_waitcnt lgkmcnt(0)")
    A.e(f"v_add_u32 v{VTX}, s{sTmp}, v{T0}")
    A.e(f"v_lshl_add_u32 v{VTR}, v{T1}, 4, v{VTX}")
    A.e(f"v_lshlrev_b32 v{VT2R}, 4, v{T1}")
    A.e(f"v_add_u32 v{VT2R}, s{sTmp2}, v{VT2R}")
    A.e(f"v_mov_b32 v{VT2R+1}, s{sTmp2}")
    A.vm_drain()
    A.e("s_barrier")
    stamp(A, 2, enable=dbg)
    if not cfg.get("early"):
        flag()
    TF, T2F = 64, 132
    ACC, ACM, ACC2 = 200, 216, 232
    PF, PM = 48, 32
    for k in range(16):
        A.ds_issue(f"ds_read_b128 {vr(TF+4*k,4)}, v{VTR} offset:{32*k}", ("TF", k))
    A.ds_issue(f"ds_read_b128 {vr(TF+64,4)}, v{VTX} offset:512", ("TF", 16))
    APA, APB = [8, 9, 10, 11], [12, 13, 14, 15]
    A.e(f"v_lshlrev_b32 v{T0}, 7, v{VC}")
    A.e(f"v_lshrrev_b32 v{T1}, 5, v{VL}")
    A.e(f"v_bfe_u32 v{T2_}, v{VL}, 1, 3")
    A.e(f"v_xor_b32 v{T2_}, v{T1}, v{T2_}")
    A.e(f"v_lshl_add_u32 v{T0}, v{T2_}, 4, v{T0}")
    A.e(f"v_add_u32 v{APA[0]}, s{sSlot[0]}, v{T0}")
    A.e(f"v_add_u32 v{APB[0]}, s{sSlot[2]}, v{T0}")
    for j in range(1, 4):
        A.e(f"v_xor_b32 v{APA[j]}, {j << 5}, v{APA[0]}")
        A.e(f"v_xor_b32 v{APB[j]}, {j << 5}, v{APB[0]}")
    A.e(f"s_cmp_ge_u32 s{S_WAVE}, 4")
    A.e(f"s_cselect_b32 s{sOutB}, {WS_BT >> 20}, {WS_AT >> 20}")
    A.e(f"s_cselect_b32 s{sMask}, 15, 31")
    A.e(f"s_lshl_b32 s{sMask}, 1, s{sMask}")
    A.e(f"s_lshl_b32 s{sOutB}, s{sOutB}, 20")
    A.e(f"s_mul_i32 s{sTmp}, s{sPE}, {AT_PE}")
    A.e(f"s_add_u32 s{sOutB}, s{sOutB}, s{sTmp}")
    A.e(f"s_lshl_b32 s{sTmp}, s{sQB}, 10")
    A.e(f"s_add_u32 s{sOutB}, s{sOutB}, s{sTmp}")
    VO, VOM, VOX, VXR, PXM = 16, 17, 18, 19, 26
    A.e(f"v_lshlrev_b32 v{VO}, 4, v{VL}")
    A.e(f"s_sub_u32 s{sTmp}, 256, s{sPE}")
    A.e(f"v_sub_u32 v{T0}, s{sTmp}, v{VC}")
    A.e(f"v_lshrrev_b32 v{T2_}, 5, v{T0}")
    A.e(f"v_mul_u32_u24 v{T2_}, {AT_BLK}, v{T2_}")
    A.e(f"v_and_b32 v{T0}, 31, v{T0}")
    A.e(f"v_lshl_add_u32 v{T0}, v{T0}, 4, v{T2_}")
    A.e(f"v_lshl_add_u32 v{VOM}, v{T1}, 9, v{T0}")
    A.e(f"v_mov_b32 v{T0}, {OOB}")
    A.e(f"v_add_u32 v{T2_}, {4*AT_BLK}, v{VO}")
    A.e(f"v_cndmask_b32 v{VOX}, v{T0}, v{T2_}, s[58:59]")
    A.e(f"s_lshl_b32 s{sTmp}, s{S_WAVE}, 10")
    A.e(f"s_add_u32 s{sTmp}, s{sTmp}, {L_XR}")
    A.e(f"v_lshl_add_u32 v{VXR}, v{T1}, 4, s{sTmp}")
    A.ds_drain()
    A.e("s_barrier")
    dma_slot(2, 0, ("D", 2))
    dma_slot(3, 0, ("D", 3))
    A.e(f"s_xor_b32 s{sSrc}, s{sSrc}, {32*4096}")
    A.e(f"s_lshl_b32 s{sTmp}, s{sQB}, 2")
    A.e(f"s_add_u32 s{sTmp}, s{sTmp}, s{S_WAVE}")
    A.e(f"s_cmp_lt_u32 s{sTmp}, 4")
    A.e(f"s_cbranch_scc1 L_k1s_dual")
    vm0 = list(A.vm)

    def mf(d, a, b, c):
        A.e(f"v_mfma_f32_32x32x16_bf16 {vr(d,16)}, {vr(a,4)}, {vr(b,4)}, {vr(c,16) if c is not None else 0}")

    def out(acc, va, so):
        for i in range(8):
            A.e(f"v_cvt_pk_bf16_f32 v{248+i}, v{acc+2*i}, v{acc+2*i+1}")
        A.e(f"s_add_u32 s{sTmp}, s{so}, {AT_TP}")
        A.vm_issue(f"buffer_store_dwordx4 {vr(248,4)}, v{va}, {sr(S_WS,4)}, s{so} offen{aux}", "O")
        A.vm_issue(f"buffer_store_dwordx4 {vr(252,4)}, v{va}, {sr(S_WS,4)}, s{sTmp} offen{aux}", "O")

    def outv(lst):
        A.e(f"v_cvt_pk_bf16_f32 v{T0}, v{ACC2}, v{ACC2+1}")
        A.e(f"s_mov_b64 exec, 0xffffffff")
        for hi, va, so in lst:
            A.e(f"s_add_u32 s{sTmp}, s{so}, {32*1024}")
            A.vm_issue(f"buffer_store_short{'_d16_hi' if hi else ''} v{T0}, v{va}, {sr(S_WS,4)}, s{sTmp} offen{aux}", "O")
        A.e(f"s_mov_b64 exec, -1")

    def block(dual, last):
        A.e(f"s_mul_i32 s{sTmp}, s{sBlk}, {AT_BLK}")
        A.e(f"s_add_u32 s{sOut}, s{sOutB}, s{sTmp}")
        A.e(f"s_sub_u32 s{sOutM}, s{sOutB}, s{sTmp}")
        A.e(f"s_xor_b32 s{sBlk}, s{sBlk}, 1")
        for i in range(4):
            A.e(f"v_xor_b32 v{PM+i}, s{sMask}, v{PX+i}")
        mf(ACC, TF+64, PX, None)
        mf(ACM, TF+64, PM, None)
        if dual:
            mf(ACC2, T2F+64, PX, None)
        for q in range(4):
            A.vm_need([("D", q)])
            ap = APA if q < 2 else APB
            for j in range(4):
                A.ds_issue(f"ds_read_b128 {vr(PF+4*j,4)}, v{ap[j]} offset:{(q & 1)*4096}", ("PF", j))
            for j in range(4):
                A.ds_need([("PF", j)])
                if j == 3 and not last:
                    dma_slot(q, 1, ("D", q))
                k = 4*q + j
                mf(ACC, TF+4*k, PF+4*j, ACC)
                for i in range(4):
                    A.e(f"v_xor_b32 v{PM+4*j+i}, s{sMask}, v{PF+4*j+i}")
                if dual:
                    mf(ACC2, T2F+4*k, PF+4*j, ACC2)
                mf(ACM, TF+4*k, PM+4*j, ACM)
        out(ACC, VO, sOut)
        out(ACM, VOM, sOutM)
        if dual:
            outv([(0, VO, sOut), (1, VOM, sOutM)])

    def extra(dual):
        mf(ACC, TF+64, PX, None)
        if dual:
            mf(ACC2, T2F+64, PX, None)
        for q in range(4):
            for j in range(4):
                A.ds_issue(f"ds_read_b128 {vr(PF+4*j,4)}, v{VXR} offset:{32*(4*q+j)}", ("PF", j))
            for j in range(4):
                A.ds_need([("PF", j)])
                k = 4*q + j
                mf(ACC, TF+4*k, PF+4*j, ACC)
                if dual:
                    mf(ACC2, T2F+4*k, PF+4*j, ACC2)
        out(ACC, VOX, sOutB)
        if dual:
            outv([(0, VOX, sOutB)])

    def gemm(dual):
        nm = "d" if dual else "s"
        A.vm = list(vm0)
        if dual:
            for k in range(16):
                A.ds_issue(f"ds_read_b128 {vr(T2F+4*k,4)}, v{VT2R} offset:{32*k}", ("T2F", k))
            A.ds_issue(f"ds_read_b128 {vr(T2F+64,4)}, v{VT2R+1} offset:512", ("T2F", 16))
            A.e(f"v_lshlrev_b32 v{T0}, 31, v{VL}")
            A.ds_drain()
            for i in range(68):
                A.e(f"v_xor_b32 v{T2F+i}, v{T0}, v{T2F+i}")
        A.e(f"s_and_b32 s{sTmp}, s{S_WAVE}, 3")
        A.e(f"s_cmp_lg_u32 s{sTmp}, 1")
        A.e(f"s_cbranch_scc1 L_k1s_nox{nm}")
        extra(dual)
        A.label(f"L_k1s_nox{nm}")
        A.vm = list(vm0)
        block(dual, False)
        block(dual, True)

    gemm(False)
    A.e("s_branch L_k1s_done")
    A.label("L_k1s_dual")
    gemm(True)
    A.label("L_k1s_done")
    A.vm = []
    stamp(A, 3, enable=dbg)
```

```python
import sys
from asmlib import *
from k1h import WS_H, WS_AT, WS_BT, AT_BLK, AT_PE, AT_TP, WS_ST, WS_FLAG, WS_PART, WS_DBG, WS_BYTES, STAMP_V
import k1h

U = 16384
NS = 9
L_PM = NS * U
L_TM = L_PM + 4096
OOB = 0x40000000
WS_CS = 21 << 20
S_X, S_W1, S_WS, S_CS, S_DBG, S_W2, S_O, S_CR, S_CI = 16, 20, 24, 28, 64, 68, 72, 76, 80
S_WAVE, S_Q, S_PAR, S_MLO, S_NT, S_G = 32, 33, 34, 35, 36, 37
S_T0, S_T1, S_T2, S_T3 = 38, 39, 84, 85
S_CNT, S_TO = 86, 87
VL = 1
MF = "v_mfma_f32_16x16x32_bf16"


class St(Asm):
    def __init__(self):
        super().__init__()
        self.bidx = [0]
        self.ool = {}

    def block(self):
        self.bidx.append(len(self.L))

    def blocks(self):
        b = self.bidx + [len(self.L)]
        return [self.L[b[i]:b[i + 1]] for i in range(len(b) - 1)]


def stamp(A, idx, cfg):
    k1h.stamp(A, idx, enable=cfg.get("stamps", False))
    if cfg.get("stamps", False):
        A.ds = []


def roll(blocks, name, enable=True):
    out = []
    i = 0
    n = len(blocks)
    nl = 0
    while i < n:
        best = None
        if enable:
            for p in range(1, 13):
                k = 1
                while i + (k + 1) * p <= n and blocks[i + k * p:i + (k + 1) * p] == blocks[i:i + p]:
                    k += 1
                if k >= 2:
                    sav = (k - 1) * sum(len(b) for b in blocks[i:i + p])
                    if sav > 40 and (best is None or sav > best[0]):
                        best = (sav, p, k)
        if best:
            _, p, k = best
            nl += 1
            lab = f"L_{name}_r{nl}"
            out.append(f"    s_mov_b32 s{S_CNT}, {k - 1}")
            out.append(lab + ":")
            for b in blocks[i:i + p]:
                out += b
            out.append(f"    s_sub_u32 s{S_CNT}, s{S_CNT}, 1")
            out.append(f"    s_cbranch_scc0 {lab}")
            i += p * k
        else:
            out += blocks[i]
            i += 1
    return out


def make_sched(cfg):
    n, m = cfg.get("n", 4), cfg.get("m", 4)
    HS = []
    c = [0]

    def g(ph, S, load, **kw):
        e = dict(kind="g", ph=ph, S=S, d=None, **kw)
        if load:
            e["d"] = c[0]
            c[0] += 1
        e["r"] = c[0]
        c[0] += 1
        HS.append(e)

    for k in range(16 - n):
        g(1, 0, True, cs=True)
        g(1, 1, False)
    for k in range(n):
        g(1, 0, True, cs=True)
    for k in range(n):
        g(1, 1, True, rewind=(k == 0))
    for j in range(m):
        g(2, 0, True, j=j)
    for j in range(m, 14):
        g(2, 0, True, j=j)
        g(2, 1, False, j=j)
    for j in range(m):
        g(2, 1, True, j=j)
    for kd in range(8):
        HS.append(dict(kind="dft", ph=3, r=c[0] + 1, d=c[0], kd=kd))
        c[0] += 2
    K = {}
    K["aend"] = max(h for h, e in enumerate(HS) if e["ph"] == 1 and e["S"] == 0) + 1
    K["drC"] = cfg.get("drC", 17)
    K["cs"] = K["drC"] + cfg.get("csl", 6)
    K["p2"] = [h for h, e in enumerate(HS) if e["ph"] == 2][0]
    K["dft"] = [h for h, e in enumerate(HS) if e["ph"] == 3][0]
    K["a2end"] = max(h for h, e in enumerate(HS) if e["ph"] == 2 and e["S"] == 0)
    K["H"] = len(HS)
    K["drA"] = K["aend"] + cfg.get("drA", 4)
    K["drB"] = K["p2"] + cfg.get("drB", 4)
    ra = [h for h, e in enumerate(HS) if e["ph"] == 2 and e["S"] == 0 and e["j"] == 2][0]
    rb = [h for h, e in enumerate(HS) if e["ph"] == 2 and e["S"] == 1][0]
    K["pA"] = max(ra - cfg.get("leadA", 5), K["drA"] + 1)
    K["pB"] = max(rb - cfg.get("leadB", 5), K["drB"] + 1)
    K["pAT"] = K["dft"] - cfg.get("leadAT", 8)
    K["pX"] = K["a2end"] - 1
    K["acq"] = 999
    K["dma"] = 999
    return HS, K


PF, TF, TMF, PC = 64, 96, 48, 44
ACC = [128, 192]
AXR, AH, AAT, ATT, APM, ATM, VST = [8, 9], 10, 11, [12, 13, 14, 15], 18, 19, 20
GRP = {"X": AXR, "H": [AH], "A": [AAT], "T": ATT}
VPA, VPV, VPA2, VPV2 = 21, 22, 23, 40
VO = [[24, 25], [26, 27]]
VR = [[28, 29], [30, 31]]
PXR, TXR = 32, 48
XR = 96
sWM, sWN, sHS, sXS, sXR, sFL, sSG, sLO, sHI = 40, 41, 42, 43, 44, 45, 46, 47, 48
sCT, sCB = 53, 54
VCA, SEN, MR, CSR = 16, 28, 32, 48


def acc(S, rb, cb):
    return ACC[S] + rb * 16 + cb * 4


def t_of(A, vd, vi, tmp):
    A.e(f"s_lshr_b32 s{tmp}, s{S_Q}, 1")
    A.e(f"s_lshl_b32 s{tmp}, s{tmp}, 6")
    A.e(f"v_xor_b32 v{vd}, s{tmp}, v{vi}")
    A.e(f"s_lshl_b32 s{tmp}, s{S_MLO}, 8")
    A.e(f"s_add_u32 s{tmp}, s{tmp}, s{S_PAR}")
    A.e(f"v_lshl_add_u32 v{vd}, v{vd}, 1, s{tmp}")


def mirror_t(A, vd, vs, vt):
    A.e(f"v_sub_u32 v{vd}, 2048, v{vs}")
    A.e(f"v_mov_b32 v{vt}, 1024")
    A.e(f"v_cmp_eq_u32 vcc, 0, v{vs}")
    A.e(f"v_cndmask_b32 v{vd}, v{vd}, v{vt}, vcc")


def mirror_e(L, vc, vt):
    L.append(f"v_sub_u32 v{vt}, 1024, v{vc}")
    L.append(f"v_min_u32 v{vc}, v{vc}, v{vt}")
    L.append(f"v_lshrrev_b32 v{vt}, 6, v{vc}")
    L.append(f"v_mul_u32_u24 v{vt}, {AT_BLK}, v{vt}")
    L.append(f"v_and_b32 v6, 1, v{vc}")
    L.append(f"v_mad_u32_u24 v{vt}, v6, s{S_T3}, v{vt}")
    L.append(f"v_bfe_u32 v{vc}, v{vc}, 1, 5")
    L.append(f"v_lshl_add_u32 v{vc}, v{vc}, 4, v{vt}")


def slow_poll(A, name, load, vreg):
    if name in A.ool:
        return
    L = [f"L_sp_{name}:", f"    s_mov_b32 s{S_TO}, 0x40000", f"L_sl_{name}:", f"    {load}", "    s_waitcnt vmcnt(0)",
         f"    v_cmp_ne_u32 vcc, 0, v{vreg}", "    s_cmp_eq_u64 vcc, -1", f"    s_cbranch_scc1 L_ok_{name}",
         f"    s_sub_u32 s{S_TO}, s{S_TO}, 1", f"    s_cbranch_scc0 L_sl_{name}", f"    s_branch L_ok_{name}"]
    A.ool[name] = L


def check_poll(A, name, load, vreg, tag):
    A.vm_need([tag])
    A.e(f"v_cmp_ne_u32 vcc, 0, v{vreg}")
    A.e("s_cmp_eq_u64 vcc, -1")
    A.e(f"s_cbranch_scc0 L_sp_{name}")
    A.label(f"L_ok_{name}")
    slow_poll(A, name, load, vreg)


def consumer(cfg, HS, K, h0, h1, fused):
    A = St()
    main = h0 == 0
    sc = " sc1" if fused else ""
    A.e(f"s_setprio {cfg.get('prio', 1)}")
    A.e(f"s_lshr_b32 s{sWM}, s{S_WAVE}, 1")
    A.e(f"s_and_b32 s{sWN}, s{S_WAVE}, 1")
    A.e(f"v_and_b32 v2, 15, v{VL}")
    A.e(f"v_lshrrev_b32 v3, 4, v{VL}")
    A.e(f"s_lshl_b32 s{S_T0}, s{sWM}, 12")
    A.e(f"s_lshl_b32 s{S_T1}, s{sWN}, 12")
    A.e(f"v_lshlrev_b32 v{VST}, 4, v{VL}")
    base = {"X": 0, "H": 0, "A": 0, "T": 0}
    A.e(f"v_bfe_u32 v4, v{VL}, 2, 2")
    A.e(f"v_lshl_add_u32 v5, v3, 3, v4")
    A.e(f"v_lshlrev_b32 v5, 8, v5")
    A.e(f"v_and_b32 v6, 1, v3")
    A.e(f"v_lshl_add_u32 v4, v6, 2, v4")
    A.e(f"s_lshl_b32 s{S_T2}, s{sWN}, 1")
    A.e(f"v_xor_b32 v4, s{S_T2}, v4")
    A.e(f"v_lshl_add_u32 v5, v4, 5, v5")
    A.e(f"v_and_b32 v4, 3, v{VL}")
    A.e(f"v_lshl_add_u32 v{ATT[0]}, v4, 3, v5")
    for cb in range(1, 4):
        A.e(f"v_xor_b32 v{ATT[cb]}, {(cb >> 1) * 128 + (cb & 1) * 32}, v{ATT[0]}")
    A.e(f"v_lshrrev_b32 v4, 1, v2")
    A.e(f"v_xor_b32 v4, v3, v4")
    A.e(f"v_lshl_add_u32 v5, v2, 7, s{S_T0}")
    if fused and not main:
        base["X"] = K["xbase"]
        A.e(f"v_add_u32 v5, {base['X'] * U}, v5")
    A.e(f"v_lshl_add_u32 v{AXR[0]}, v4, 4, v5")
    A.e(f"v_xor_b32 v{AXR[1]}, 64, v{AXR[0]}")
    A.e(f"v_add_u32 v{AH}, s{S_T0}, v{VST}")
    A.e(f"v_add_u32 v{AAT}, s{S_T1}, v{VST}")
    if main:
        A.e(f"s_lshl_b32 s{S_T2}, s{sWM}, 9")
        A.e(f"s_add_u32 s{S_T2}, s{S_T2}, {L_PM}")
        A.e(f"v_lshl_add_u32 v{APM}, v2, 5, s{S_T2}")
        A.e(f"s_lshl_b32 s{S_T2}, s{sWN}, 8")
        A.e(f"s_add_u32 s{S_T2}, s{S_T2}, {L_TM}")
        A.e(f"v_lshl_add_u32 v{ATM}, v3, 4, s{S_T2}")
        A.e(f"s_lshl1_add_u32 s{sCT}, s{S_MLO}, s{sWM}")
        A.e(f"s_mul_i32 s{S_T2}, s{S_Q}, 7")
        A.e(f"s_add_u32 s{S_T2}, s{S_T2}, s{S_NT}")
        A.e(f"s_lshl1_add_u32 s{S_T2}, s{S_T2}, s{S_PAR}")
        A.e(f"s_lshl3_add_u32 s{S_T2}, s{S_T2}, s{sCT}")
        A.e(f"s_lshl1_add_u32 s{S_T2}, s{S_T2}, s{sWN}")
        A.e(f"s_lshl_b32 s{sCB}, s{S_T2}, 8")
        A.e(f"s_add_u32 s{sCB}, s{sCB}, {WS_CS}")
        A.e(f"v_min_u32 v4, 1, v2")
        A.e(f"v_lshlrev_b32 v4, 30, v4")
        A.e(f"v_lshl_add_u32 v{VCA}, v3, 4, v4")
        for i in range(4):
            A.e(f"v_mov_b32 v{PC + i}, 0x3f803f80")
            A.e(f"v_mov_b32 v{SEN + i}, -1")
        A.e(f"s_mul_i32 s{sXS}, s2, {3 * U}")
        A.e(f"s_mul_i32 s{S_T2}, s{S_WAVE}, {3 * 4096}")
        A.e(f"s_add_u32 s{sXS}, s{sXS}, s{S_T2}")
        A.e(f"s_add_u32 s{sXS}, s{sXS}, {WS_PART}")
        A.e(f"s_lshl_b32 s{S_T2}, s{S_PAR}, 2")
        A.e(f"s_add_u32 s{S_T2}, s{S_T2}, s{S_MLO}")
        A.e(f"s_mul_i32 s{S_T2}, s{S_T2}, 56")
        A.e(f"s_mul_i32 s{S_T3}, s{S_Q}, 7")
        A.e(f"s_add_u32 s{S_T2}, s{S_T2}, s{S_T3}")
        A.e(f"s_add_u32 s{S_T2}, s{S_T2}, s{S_NT}")
        A.e(f"s_sub_u32 s{S_T2}, s{S_T2}, 1")
        A.e(f"s_lshl_b32 s{sHS}, s{S_T2}, 15")
        A.e(f"s_add_u32 s{sHS}, s{sHS}, s{S_T0}")
        A.e(f"s_lshl_b32 s{S_T2}, s{sWN}, 10")
        A.e(f"s_add_u32 s{sHS}, s{sHS}, s{S_T2}")
        assert WS_H == 0
    A.e(f"s_lshl_b32 s{sFL}, s{S_G}, 7")
    A.e(f"s_add_u32 s{sFL}, s{sFL}, {WS_FLAG}")
    A.e(f"v_and_b32 v{VPA}, 7, v{VL}")
    A.e(f"v_lshlrev_b32 v{VPA}, 2, v{VPA}")

    vals = {}
    groups = []
    cur_t = None

    def val(key, reg, reads, pub, unit=None, grp=None):
        vals[key] = dict(key=key, reg=reg, reads=reads, pub=pub, slot=None if unit is None else unit % NS, grp=grp, first=None, last=None)
        return key

    for h in range(h0, h1):
        e = HS[h]
        if e["kind"] == "g":
            if e["d"] is not None:
                cur_t = {}
                for k32 in range(2):
                    for cb in range(4):
                        rg = TF + 4 * (4 * k32 + cb)
                        cur_t[k32, cb] = val(("T", h, k32, cb), rg,
                                             [(f"ds_read_b64_tr_b16 {vr(rg + 2 * u, 2)}, v{ATT[cb]}", k32 * 8192 + u * 1024) for u in range(2)],
                                             h - 1, e["d"], "T")
            for k32 in range(2):
                for rb in range(4):
                    rg = PF + 4 * (4 * k32 + rb)
                    o = (rb >> 1) * 8192 + (rb & 1) * 2048
                    rd = (f"ds_read_b128 {vr(rg, 4)}, v{AXR[k32]}", o) if e["ph"] == 1 else (f"ds_read_b128 {vr(rg, 4)}, v{AH}", o + k32 * 1024)
                    p = val(("P", h, k32, rb), rg, [rd], h - 1, e["r"], "X" if e["ph"] == 1 else "H")
                    groups.append((h, [(acc(e["S"], rb, cb), cur_t[k32, cb], p) for cb in range(4)]))
        else:
            for k32 in range(2):
                for kind in range(2):
                    t = []
                    for cb2 in range(2):
                        rg = TF + 4 * (4 * k32 + 2 * kind + cb2)
                        t.append(val(("AT", h, k32, kind, cb2), rg, [(f"ds_read_b128 {vr(rg, 4)}, v{AAT}", kind * 8192 + cb2 * 2048 + k32 * 1024)], h - 1, e["r"], "A"))
                    for rb2 in range(2):
                        rg = PF + 4 * (4 * k32 + 2 * kind + rb2)
                        p = val(("C", h, k32, kind, rb2), rg, [(f"ds_read_b128 {vr(rg, 4)}, v{AXR[k32]}", kind * 8192 + rb2 * 2048)], h - 1, e["d"], "X")
                        ms = [(acc(0, 2 + rb2, 2 * kind + cb2), t[cb2], p) for cb2 in range(2)]
                        if kind == 0 and rb2 == 0:
                            ms += [(acc(0, 0, 2 + cb2), t[cb2], "PC") for cb2 in range(2)]
                        groups.append((h, ms))
    seq = []
    cnt = {}
    for h, ms in groups:
        for mf in ms:
            i = cnt.get(h, 0)
            cnt[h] = i + 1
            seq.append((h, i, mf))
    for n_, (h, i, (a, t, p)) in enumerate(seq):
        for k in (t, p):
            if k in vals:
                v = vals[k]
                if v["first"] is None:
                    v["first"] = n_
                v["last"] = n_
    order = sorted(vals.values(), key=lambda v: v["first"])
    prev = {}
    for v in order:
        v["prev"] = prev.get(v["reg"])
        prev[v["reg"]] = v
        v["q"] = list(v["reads"])
    pend = list(order)

    extras = []
    prebar = {}

    def X(at, items, dl=None):
        extras.append(dict(at=at, items=list(items), dl=dl))

    def PB(h, fn):
        prebar.setdefault(h, []).append(fn)

    H = K["H"]
    hp2, hd = K["p2"], K["dft"]
    haux = cfg.get("h_aux", " sc1")
    PST = cfg.get("pst", 3 * U)

    def ep_items(S, rb):
        L = []
        for rel in range(2):
            a = acc(S, rb, 2 * rel)
            if rb & 1 == 0 or True:
                L.append(f"s_add_u32 s{S_T0 + rel}, s{sHS}, {S * 56 * U + rel * U + (rb >> 1) * 8192}")
            L += [f"v_cvt_pk_bf16_f32 v{a + i}, v{a + 2 * i}, v{a + 2 * i + 1}" for i in range(4)]
            L += [f"v_pk_max_i16 v{a + i}, v{a + i}, 0" for i in range(4)]
            L.append(("vm", f"buffer_store_dwordx4 {vr(a, 4)}, v{VST}, {sr(S_WS, 4)}, s{S_T0 + rel} offen offset:{(rb & 1) * 2048}{haux}", ("H", S)))
        return L

    def send_items(S, rb):
        L = []
        for relc in range(2):
            d = 2 * (rb >> 1) + relc
            if d == 0:
                continue
            a = acc(S, rb, 2 * relc)
            L += [f"v_cvt_pk_bf16_f32 v{a + i}, v{a + 2 * i}, v{a + 2 * i + 1}" for i in range(4)]
            L.append(("vm", f"buffer_store_dwordx4 {vr(a, 4)}, v{VST}, {sr(S_WS, 4)}, s{49 + d} offen offset:{(S * 2 + (rb & 1)) * 1024}{cfg.get('snd_aux', ' sc1')}", "SND"))
        return L

    RV = [acc(1, 0, 2), acc(1, 0, 3), acc(1, 1, 2), acc(1, 1, 3)] + [acc(1, 2, 0) + 4 * i for i in range(8)]

    def rvr(S, rb2, d):
        return RV[(S * 2 + rb2) * 3 + d]

    def rcv(S, rb2, d):
        return f"buffer_load_dwordx4 {vr(rvr(S, rb2, d), 4)}, v{VST}, {sr(S_WS, 4)}, s{50 + d} offen offset:{(S * 2 + rb2) * 1024} sc1"

    def lastpos(S, rb, hmax):
        best = None
        for n_, (h, i, (a, t, p)) in enumerate(seq):
            if h < hmax and acc(S, rb, 0) <= a < acc(S, rb, 0) + 16:
                best = n_
        return best

    def at_after(n_, d=3):
        n_ = n_ + d
        if n_ >= len(seq):
            return (h1, 0)
        return seq[n_][:2]

    def uses(S, rb):
        return [n_ for n_, (h, i, (a, t, p)) in enumerate(seq) if acc(S, rb, 0) <= a < acc(S, rb, 0) + 16]

    if main:
        if not cfg.get("noscrub"):
            for h in [h for h in range(K["drC"] + 1) if h % 3 != 2][:12]:
                X((h, 12), [f"buffer_store_dwordx4 {vr(SEN, 4)}, v{VST}, {sr(S_WS, 4)}, s{sXS} offen sc1", f"s_add_u32 s{sXS}, s{sXS}, 1024"], dl=(h, 31))
        PB(K["drC"], lambda: A.vm_drain())
        hc = K["cs"]
        L = [("ds", f"ds_read_b128 {vr(MR + 4 * S, 4)}, v{APM} offset:{16 * S}", "M") for S in range(2)]
        L += [("ds", f"ds_read_b128 {vr(CSR + 4 * cb, 4)}, v{ATM} offset:{64 * cb}", "M") for cb in range(4)]
        X((hc, cfg.get("bar_at", 7)), L, dl=(hc + 1, 0))
        n0 = next(n_ for n_, x in enumerate(seq) if x[:2] == (hc, 20))
        for S in range(2):
            for rb in range(4):
                us = uses(S, rb)
                lp = lastpos(S, rb, hp2)
                gaps = [(a_, b_) for a_, b_ in zip(us, us[1:] + [10 ** 6]) if b_ - a_ > 8 and b_ > n0 + 8 and a_ <= lp]
                big = [g_ for g_ in gaps if g_[1] - g_[0] > 20 and g_[0] < lp]
                a_, b_ = (big or gaps)[0]
                mi = MR + 4 * S + rb
                L = [("need", "M")]
                for k in range(8):
                    a = acc(S, rb, 0) + 2 * k
                    L.append(f"v_pk_fma_f32 {vr(a, 2)}, {vr(CSR + 2 * k, 2)}, {vr(mi & ~1, 2)}, {vr(a, 2)} op_sel:[0,{mi & 1},0] op_sel_hi:[1,{mi & 1},1]")
                first2 = next(((h, i) for (h, i, (a, t, p)) in seq if h >= hp2 and acc(S, rb, 0) <= a < acc(S, rb, 0) + 16), None)
                if a_ == lp:
                    X(at_after(max(lp, n0)), L + ep_items(S, rb), dl=first2)
                else:
                    X(at_after(max(a_, n0)), L, dl=seq[b_ - 1][:2])
                    X(at_after(lp), ep_items(S, rb), dl=first2)
        extras.sort(key=lambda x: x["at"])
    pollA = f"buffer_load_dword v{VPV}, v{VPA}, {sr(S_WS, 4)}, s{sFL} offen sc1"
    pollB = f"buffer_load_dword v{VPV}, v{VPA}, {sr(S_WS, 4)}, s{sFL} offen offset:32 sc1"
    pollT = f"buffer_load_dword v{VPV2}, v{VPA2}, {sr(S_WS, 4)}, 0 offen offset:96 sc1"
    pollS = f"buffer_load_dword v{VPV2}, v{VPA2}, {sr(S_DBG, 4)}, 0 offen sc1"
    PL = cfg.get("poll_lead", 2)
    if fused:
        if main:
            PB(K["drA"], lambda: A.vm_drain())
            PB(K["drB"], lambda: A.vm_drain())
            X((max(K["pA"] - PL, K["drA"]), 4), [("vm", pollA, "PA")], dl=(K["pA"], 0))
            PB(K["pA"], lambda: check_poll(A, "A", pollA, VPV, "PA"))
        if K["pB"] >= h0 + 1:
            X((max(K["pB"] - PL, K["drB"], h0), 4), [("vm", pollB, "PB")], dl=(K["pB"], 0))
            PB(K["pB"], lambda: check_poll(A, "B", pollB, VPV, "PB"))
        X((K["pAT"] - PL, 8), [f"v_and_b32 v{VPA2}, 31, v{VL}", f"v_lshlrev_b32 v{VPA2}, 7, v{VPA2}", f"v_add_u32 v{VPA2}, {WS_FLAG}, v{VPA2}", ("vm", pollT, "PT")], dl=(K["pAT"], 0))
        PB(K["pAT"], lambda: check_poll(A, "T", pollT, VPV2, "PT"))
        extras.sort(key=lambda x: x["at"])
    if h1 == H:
        hs_ = K["a2end"] - 5
        pollX = f"buffer_load_dword v{VCA + 1}, v{VCA}, {sr(S_WS, 4)}, s{sCB} offen sc1"
        L = []
        for d in (1, 2, 3):
            L += [f"s_xor_b32 s{S_T2}, s2, {d if not cfg.get('sndown') else 0}", f"s_mul_i32 s{49 + d}, s{S_T2}, {PST}"]
        L += [f"s_lshl_b32 s{S_T2}, s{S_WAVE}, 12", f"s_add_u32 s{S_T2}, s{S_T2}, {WS_PART}"]
        for d in (1, 2, 3):
            L += [f"s_add_u32 s{49 + d}, s{49 + d}, s{S_T2}", f"s_add_u32 s{49 + d}, s{49 + d}, {(d - 1) * U}"]
        L += [f"s_mul_i32 s{sXR}, s2, {PST}", f"s_add_u32 s{sXR}, s{sXR}, s{S_T2}"]
        L += [f"v_and_b32 v2, 15, v{VL}", f"s_lshl_b32 s{S_T2}, s{sWM}, 5", f"v_add_u32 v2, s{S_T2}, v2",
              f"s_lshr_b32 s{S_T2}, s{S_Q}, 1", f"s_lshl_b32 s{S_T2}, s{S_T2}, 6", f"v_xor_b32 v2, s{S_T2}, v2",
              f"s_lshl_b32 s{S_T2}, s{S_MLO}, 8", f"s_add_u32 s{S_T2}, s{S_T2}, s{S_PAR}", f"v_lshl_add_u32 v2, v2, 1, s{S_T2}",
              f"v_sub_u32 v3, 2048, v2", f"v_mov_b32 v4, 1024", f"v_mov_b32 v5, 0xc0000000",
              ("atom", [f"v_cmp_eq_u32 vcc, 0, v2", f"v_cndmask_b32 v4, v3, v4, vcc", f"v_cndmask_b32 v{PC}, 0, v5, vcc"]),
              f"v_mov_b32 v{PC + 1}, v{PC}", f"v_mov_b32 v{PC + 2}, v{PC}", f"v_mov_b32 v{PC + 3}, v{PC}",
              f"v_lshlrev_b32 v{VO[0][0]}, 11, v2", f"v_lshlrev_b32 v{VO[1][0]}, 11, v4",
              f"v_add_u32 v{VO[0][1]}, {32 * 2048}, v{VO[0][0]}", f"v_lshlrev_b32 v{VO[1][1]}, 11, v3",
              f"v_subrev_u32 v{VO[1][1]}, {32 * 2048}, v{VO[1][1]}"]
        L += [f"v_and_b32 v2, 3, v{VL}", f"v_xor_b32 v2, s{S_G}, v2", f"v_lshlrev_b32 v{VCA}, 7, v2",
              f"s_lshl_b32 s{sCB}, s{S_NT}, 2", f"s_add_u32 s{sCB}, s{sCB}, {WS_FLAG + 96}", ("vm", pollX, "PX2"),
              f"s_lshr_b32 s{sSG}, s{S_NT}, 2", f"s_lshl_b32 s{sSG}, s{sSG}, 31", f"s_or_b32 s{sSG}, s{sSG}, 1.0"]
        X((hs_, 2), L, dl=(K["pX"] - 1, 0))
        PB(K["pX"], lambda: check_poll(A, "X", pollX, VCA + 1, "PX2"))
        for S in range(2):
            for rb in range(4):
                X(at_after(lastpos(S, rb, hd)), send_items(S, rb), dl=(hd, 0) if S == 0 else (hd + 2, 0))
        extras.sort(key=lambda x: x["at"])
        L = [f"s_mov_b32 s{S_T2}, {WS_ST}", f"s_mov_b32 s{S_T3}, {AT_PE}"]
        for S in range(2):
            for rb2 in range(2):
                L += [f"v_lshrrev_b32 v2, 8, v{VO[S][rb2]}",
                      ("vm", f"buffer_load_dword v{VR[S][rb2]}, v2, {sr(S_WS, 4)}, s{S_T2} offen offset:4{sc}", "R")]
        L += [f"v_lshrrev_b32 v3, 4, v{VL}", f"v_min_u32 v2, 1, v3", f"v_lshlrev_b32 v2, 30, v2"]
        for rb2 in range(2):
            L += [f"v_lshl_add_u32 v4, v{VO[0][rb2]}, 1, v2"]
            for kind in range(2):
                L += [("vm", f"buffer_load_ushort v{PXR + 4 * kind + 2 * rb2}, v4, {sr(S_CI if kind else S_CR, 4)}, 0 offen offset:1024", "PX")]
        L += [f"s_lshl_b32 s{S_T0}, s{S_NT}, 7", f"s_and_b32 s{S_T1}, s{S_Q}, 1", f"s_lshl_b32 s{S_T1}, s{S_T1}, 6", f"s_add_u32 s{S_T0}, s{S_T0}, s{S_T1}",
              f"s_lshl_b32 s{S_T1}, s{sWN}, 5", f"s_add_u32 s{S_T0}, s{S_T0}, s{S_T1}",
              f"s_mov_b32 s{sLO}, {WS_AT + 32 * 1024}", f"s_mov_b32 s{sHI}, {WS_BT + AT_TP}"]
        for cb2 in range(2):
            L += [f"v_and_b32 v4, 15, v{VL}", f"v_add_u32 v4, s{S_T0}, v4"]
            if cb2:
                L += [f"v_add_u32 v4, 16, v4"]
            mirror_e(L, 4, 5)
            for kind in range(2):
                L += [("vm", f"buffer_load_ushort v{TXR + 4 * kind + 2 * cb2}, v4, {sr(S_WS, 4)}, s{sHI if kind else sLO} offen{sc}", "TX")]
        for i in range(4):
            L += [f"v_mov_b32 v{PXR + 2 * i + 1}, 0", f"v_mov_b32 v{TXR + 2 * i + 1}, 0"]
        L += [f"v_and_b32 v2, 1, v3", f"v_lshlrev_b32 v2, 5, v2", f"v_lshrrev_b32 v3, 1, v3", f"v_lshl_add_u32 v2, v3, 4, v2",
              f"s_lshl_b32 s{S_T0}, s{S_T0}, 1", f"v_add_u32 v2, s{S_T0}, v2"]
        L += [f"v_add_u32 v{VO[S][rb2]}, v2, v{VO[S][rb2]}" for S in range(2) for rb2 in range(2)]
        for d in range(3):
            L.append(f"s_add_u32 s{50 + d}, s{sXR}, {d * U}")
        X((hd + 2, 2), L, dl=(H, 0))
        for S in range(2):
            X((hd + cfg.get("rcvA", 4), 2) if S == 0 else (H - 1, cfg.get("rcvB", 8)), [("vm", rcv(S, rb2, d), ("RV", S, rb2)) for rb2 in range(2) for d in range(3)], dl=(H, 0))

    def emit_item(it):
        if isinstance(it, tuple):
            if it[0] == "vm":
                A.vm_issue(it[1], it[2])
                return 1
            if it[0] == "ds":
                A.ds_issue(it[1], it[2])
                return 1
            if it[0] == "need":
                A.ds_need([it[1]])
                return 0
            for t in it[1]:
                A.e(t)
            return len(it[1])
        A.e(it)
        return 0 if it.startswith("s_") else 1

    state = dict(pub=h0 - 2, n=-1)

    def ready(v):
        return v["pub"] <= state["pub"] and (v["prev"] is None or (v["prev"]["last"] <= state["n"] and not v["prev"]["q"]))

    def inwin(v):
        return v["slot"] is None or 0 <= v["slot"] - base[v["grp"]] <= 3

    def issue_one(v):
        cost = 0
        o = 0
        if v["slot"] is not None:
            g_ = v["grp"]
            if not inwin(v):
                d_ = (v["slot"] - base[g_]) * U
                for r in GRP[g_]:
                    A.e(f"v_add_u32 v{r}, {d_}, v{r}" if d_ > 0 else f"v_subrev_u32 v{r}, {-d_}, v{r}")
                base[g_] = v["slot"]
                cost += len(GRP[g_])
            o = (v["slot"] - base[g_]) * U
        t_, o_ = v["q"].pop(0)
        if not cfg.get("nord"):
            A.ds_issue(f"{t_} offset:{o + o_}", v["key"])
        if not v["q"]:
            pend.remove(v)
        return cost + 1

    def dok(v):
        if inwin(v):
            return True
        for w in pend:
            if w is v:
                return True
            if w["grp"] == v["grp"]:
                return False
        return True

    def fill(cap, pos):
        while cap > 0:
            v = next((v for v in pend[:40] if ready(v) and dok(v)), None)
            if v is not None:
                cap -= issue_one(v)
                continue
            x = extras[0] if extras and extras[0]["at"] <= pos else None
            if x is None:
                break
            ns = 0
            while x["items"] and cap > 0 and ns < 2:
                c_ = emit_item(x["items"].pop(0))
                cap -= c_
                ns += c_ == 0
            if not x["items"]:
                extras.pop(0)
            if ns >= 2:
                break

    def flush(pos):
        last = -1
        for i_, x in enumerate(extras):
            if x["dl"] is not None and x["dl"] <= pos:
                last = i_
        for _ in range(last + 1):
            x = extras.pop(0)
            for it in x["items"]:
                emit_item(it)

    def barrier(h):
        if cfg.get("fr", 0) == 0:
            ks = []
            for v in order:
                if v["pub"] == h - 1 and v["slot"] is not None:
                    while v["q"]:
                        assert ready(v)
                        issue_one(v)
                    ks.append(v["key"])
            A.ds_need(ks)
        for fn in prebar.get(h, []):
            fn()
        if cfg.get("fine"):
            if h >= h0:
                A.e(f"v_writelane_b32 v41, s96, {(h - h0) & 63}")
                A.e(f"v_writelane_b32 v42, s98, {(h - h0) & 63}")
            A.e("s_memtime s[96:97]")
        A.e("s_barrier")
        if cfg.get("fine"):
            A.e("s_memtime s[98:99]")
        state["pub"] = h

    if fused and not main:
        A.e(f"v_and_b32 v{VPA2}, 31, v{VL}")
        A.e(f"v_lshlrev_b32 v{VPA2}, 2, v{VPA2}")
        A.vm_issue(pollS, "PS")
        check_poll(A, "S2", pollS, VPV2, "PS")
        A.vm_issue(pollA, "PA")
        check_poll(A, "A2", pollA, VPV, "PA")
        if K["pB"] < h0 + 1:
            A.vm_issue(pollB, "PB")
            check_poll(A, "B2", pollB, VPV, "PB")
        A.e("s_barrier")
    barrier(h0 - 1)
    stamp(A, 1, cfg)
    fill(100, (h0, -1))
    inited = set()
    CAP = cfg.get("cap", 2)
    BA = cfg.get("bar_at", 7)
    for n_, (h, i, (a, t, p)) in enumerate(seq):
        if i == 0:
            A.block()
            if h == hp2 + 1 and main:
                K["xbase"] = base["X"]
            if h == hp2:
                inited = set()
                stamp(A, 2, cfg)
            if h == hd:
                inited -= {acc(0, rb, cb) for rb in range(4) for cb in range(4) if rb >= 2 or cb >= 2}
                stamp(A, 3, cfg)
            if main and h < min(K["drC"] + 1, hp2) and HS[h]["S"] == 1:
                assert HS[h]["d"] is None or h > 15
                A.e(f"s_sub_u32 s{sCT}, s{sCT}, 1")
                A.e("s_cbranch_scc0 L_cs@")
                for k32 in range(2):
                    for cb in range(4):
                        A.e(f"{MF} {vr(CSR + 4 * cb, 4)}, {vr(TF + 4 * (4 * k32 + cb), 4)}, {vr(PC, 4)}, {vr(CSR + 4 * cb, 4) if k32 else 0}")
                for cb in range(4):
                    A.e(f"buffer_store_dwordx4 {vr(CSR + 4 * cb, 4)}, v{VCA}, {sr(S_WS, 4)}, s{sCB} offen offset:{64 * cb} sc1")
                A.label("L_cs@")
        flush((h, i))
        for k in (t, p):
            if k in vals:
                v = vals[k]
                while v["q"]:
                    assert ready(v), (k, h, i)
                    issue_one(v)
        A.ds_need([t, p])
        treg = vals[t]["reg"]
        preg = PC if p == "PC" else vals[p]["reg"]
        A.e(f"{MF} {vr(a, 4)}, {vr(treg, 4)}, {vr(preg, 4)}, {vr(a, 4) if a in inited else 0}")
        inited.add(a)
        state["n"] = n_
        if i == (BA if HS[h]["kind"] != "dft" else cfg.get("bar_d", 5)):
            barrier(h)
        fill(CAP if HS[h]["kind"] != "dft" else cfg.get("capd", 3), (h, i))
    A.block()
    flush((10 ** 6, 0))
    for x in extras:
        for it in x["items"]:
            emit_item(it)
    if h1 < H:
        return A
    stamp(A, 5, cfg)
    for S in range(2):
        for rb2 in range(2):
            A.vm_issue(f"buffer_load_dwordx4 {vr(XR + 8 * S + 4 * rb2, 4)}, v{VO[S][rb2]}, {sr(S_X, 4)}, 0 offen", "X")
    A.vm_need(["PX", "TX", "R"])
    for kind in range(2):
        for rb2 in range(2):
            for cb2 in range(2):
                a = acc(0, 2 + rb2, 2 * kind + cb2)
                A.e(f"v_mfma_f32_16x16x16_bf16 {vr(a, 4)}, {vr(TXR + 4 * kind + 2 * cb2, 2)}, {vr(PXR + 4 * kind + 2 * rb2, 2)}, {vr(a, 4)}")
    A.e(f"s_mov_b32 s{sLO}, 0x00003f80")
    A.e(f"s_mov_b32 s{sHI}, 0x3f800000")
    for S in range(2):
        for rb2 in range(2):
            for i in range(8):
                k = acc(S, rb2, 0) + i
                if S == 1 and rb2 == 0:
                    A.e(f"v_fma_f32 v{k}, v{k}, v{VR[S][rb2]}, v{acc(0, 0, 2) + i}")
                else:
                    A.e(f"v_mul_f32 v{k}, v{k}, v{VR[S][rb2]}")
    for rb2 in range(2):
        for i in range(8):
            ure, uim = acc(0, 2 + rb2, 0) + i, acc(0, 2 + rb2, 2) + i
            for S in range(2):
                k = acc(S, rb2, 0) + i
                A.e(f"v_add_f32 v{k}, v{k}, v{ure}")
            for S in range(2):
                k = acc(S, rb2, 0) + i
                A.e(f"v_fma_f32 v{k}, {'-' if S == 0 else ''}v{uim}, s{sSG}, v{k}")
    A.vm_need(["X"])
    stamp(A, 6, cfg)
    for S in range(2):
        for rb2 in range(2):
            x = XR + 8 * S + 4 * rb2
            A.e(f"v_permlane16_swap_b32 v{x}, v{x + 2}")
            A.e(f"v_permlane16_swap_b32 v{x + 1}, v{x + 3}")
    for S in range(2):
        for rb2 in range(2):
            x = XR + 8 * S + 4 * rb2
            for i in range(8):
                A.e(f"v_dot2c_f32_bf16 v{acc(S, rb2, 0) + i}, s{sHI if i & 1 else sLO}, v{x + (i >> 1)}")
    T = PF
    A.e(f"s_mov_b32 s{S_TO}, 0x40000")
    for S in range(2):
        for rb2 in range(2):
            A.vm_need([("RV", S, rb2)])
            nm = f"{S}{rb2}"
            A.label(f"L_rv_{nm}")
            w = [rvr(S, rb2, d) + i for d in range(3) for i in range(4)]
            A.e(f"v_max3_u32 v2, v{w[0]}, v{w[1]}, v{w[2]}")
            A.e(f"v_max3_u32 v3, v{w[3]}, v{w[4]}, v{w[5]}")
            A.e(f"v_max3_u32 v2, v2, v{w[6]}, v{w[7]}")
            A.e(f"v_max3_u32 v3, v3, v{w[8]}, v{w[9]}")
            A.e(f"v_max3_u32 v2, v2, v{w[10]}, v{w[11]}")
            A.e(f"v_max_u32 v2, v2, v3")
            A.e(f"v_cmp_eq_u32 vcc, -1, v2")
            t = T + 8 * ((S * 2 + rb2) & 1)
            r0 = rvr(S, rb2, 0)
            for i in range(8):
                A.e(f"v_and_b32 v{t + i}, 0xffff0000, v{r0 + (i >> 1)}" if i & 1 else f"v_lshlrev_b32 v{t + i}, 16, v{r0 + (i >> 1)}")
            A.e(f"s_cbranch_vccnz L_rr_{nm}")
            A.label(f"L_rk_{nm}")
            A.ool["rv" + nm] = [f"L_rr_{nm}:", f"    s_sub_u32 s{S_TO}, s{S_TO}, 1", f"    s_cbranch_scc1 L_rk_{nm}"] + \
                [f"    {rcv(S, rb2, d)}" for d in range(3)] + ["    s_waitcnt vmcnt(0)", f"    s_branch L_rv_{nm}"]
            for d in (1, 2):
                for i in range(8):
                    A.e(f"v_dot2c_f32_bf16 v{t + i}, s{sHI if i & 1 else sLO}, v{rvr(S, rb2, d) + (i >> 1)}")
            k = acc(S, rb2, 0)
            for i in range(8):
                A.e(f"v_fma_f32 v{t + i}, v{t + i}, v{VR[S][rb2]}, v{k + i}")
            for i in range(4):
                A.e(f"v_cvt_pk_bf16_f32 v{k + i}, v{t + 2 * i}, v{t + 2 * i + 1}")
            A.e(f"v_permlane16_swap_b32 v{k}, v{k + 2}")
            A.e(f"v_permlane16_swap_b32 v{k + 1}, v{k + 3}")
            A.vm_issue(f"buffer_store_dwordx4 {vr(k, 4)}, v{VO[S][rb2]}, {sr(S_O, 4)}, 0 offen", "O")
    return A


XA, XB, VW1, VW2, VC = [8, 9, 10, 11], [12, 13, 14, 15], [16, 17, 18, 19], [20, 21, 22, 23], [24, 25, 26, 27]
VHA, VHB, VWR = 28, 29, [30, 31, 32]
VCF, VCL = 33, 34
VFA, VFL, VSA, VSD, VFO, VONE = 49, 50, 51, 52, 56, 57
CT = 58
VAT = [74, 75, 76, 77]
SB = 80
sPW, sKA, sKB, sKW, sW, sHA, sHB, sW2, sD, sDC, sONE, sFLG, sK3 = 40, 41, 42, 43, 44, 45, 46, 47, 48, 49, 50, 51, 52


def producer(cfg, HS, K, h0, h1, fused):
    A = St()
    main = h0 == 0
    NB = cfg.get("nb", 6)
    FR = cfg.get("fr", 0)
    n, m = cfg.get("n", 4), cfg.get("m", 4)
    H = K["H"]
    UN = []
    nst = 0
    for h in range(h0, h1):
        e = HS[h]
        if e["d"] is not None:
            typ = "C" if e["kind"] == "dft" else ("W1" if e["ph"] == 1 else "W2")
            UN.append(dict(h=h, i=e["d"], typ=typ, minb=-99, e=e, st=None, dl=h - 2))
        if e["r"] is not None:
            typ = "AT" if e["kind"] == "dft" else ("X" if e["ph"] == 1 else "H") + "AB"[e["S"]]
            minb = -99
            st = None
            if fused and typ[0] != "X":
                if typ == "HA":
                    minb = (K["drA"] if e["j"] < 2 else K["pA"]) if main else -99
                elif typ == "HB":
                    minb = K["pB"]
                elif typ == "AT":
                    minb = K["pAT"]
                if h < K["dma"]:
                    st = nst % NB
                    nst += 1
                else:
                    minb = max(minb, K["acq"])
            if cfg.get("allst") and typ[0] in cfg["allst"]:
                st = nst % NB
                nst += 1
            UN.append(dict(h=h, i=e["r"], typ=typ, minb=minb, e=e, st=st, dl=h - 2))
    A.e(f"s_sub_u32 s{sPW}, s{S_WAVE}, 4")
    A.e(f"s_lshl_b32 s{sD}, s{sPW}, 12")
    A.e(f"v_lshrrev_b32 v3, 4, v{VL}")
    A.e(f"v_and_b32 v2, 15, v{VL}")
    A.e(f"v_lshlrev_b32 v4, 1, v3")
    A.e(f"v_xor_b32 v2, v2, v4")
    A.e(f"v_lshlrev_b32 v2, 4, v2")

    def init_w1():
        A.e(f"s_mul_i32 s{S_T0}, s{S_Q}, 7")
        A.e(f"s_add_u32 s{S_T0}, s{S_T0}, s{S_NT}")
        A.e(f"s_lshl_b32 s{S_T0}, s{S_T0}, 8")
        A.e(f"s_mul_i32 s{S_T1}, s{sPW}, {16 * 7168}")
        A.e(f"s_add_u32 s{S_T0}, s{S_T0}, s{S_T1}")
        A.e(f"s_sub_u32 s{S_T0}, s{S_T0}, 256")
        A.e(f"v_mul_u32_u24 v4, 7168, v3")
        A.e(f"v_add3_u32 v{VW1[0]}, v4, v2, s{S_T0}")
        A.e(f"v_add_u32 v{VW1[1]}, {4 * 7168 - 1024}, v{VW1[0]}")
        A.e(f"v_xor_b32 v4, 128, v{VW1[0]}")
        A.e(f"v_add_u32 v{VW1[2]}, {8 * 7168 - 2048}, v4")
        A.e(f"v_add_u32 v{VW1[3]}, {12 * 7168 - 3072}, v4")
        rot = cfg.get("rot", 2)
        A.e(f"s_mul_i32 s{sKW}, s{S_Q}, {rot * 128}")
        A.e(f"s_mul_i32 s{S_T0}, s{S_PAR}, {cfg.get('rotp', 8) * 128}")
        A.e(f"s_add_u32 s{sKW}, s{sKW}, s{S_T0}")
        A.e(f"s_and_b32 s{sKW}, s{sKW}, 2047")
        A.e(f"s_mov_b32 s{sKA}, s{sKW}")
        A.e(f"s_mov_b32 s{sKB}, s{sKW}")

    def chunk(vd):
        A.e(f"v_and_b32 v{vd}, 7, v{VL}")
        A.e(f"v_lshrrev_b32 v6, 4, v{VL}")
        A.e(f"v_xor_b32 v{vd}, v{vd}, v6")
        A.e(f"v_lshlrev_b32 v{vd}, 4, v{vd}")

    def init_xa():
        A.e(f"v_lshrrev_b32 v4, 3, v{VL}")
        A.e(f"s_lshl_b32 s{S_T0}, s{sPW}, 5")
        A.e(f"v_add_u32 v4, s{S_T0}, v4")
        t_of(A, 4, 4, S_T0)
        chunk(5)
        A.e(f"v_lshl_add_u32 v{XA[0]}, v4, 11, v5")
        A.e(f"v_xor_b32 v6, 64, v{XA[0]}")
        A.e(f"v_add_u32 v{XA[1]}, {16 * 2048 - 1024}, v6")
        A.e(f"v_add_u32 v{XA[2]}, {32 * 2048 - 2048}, v{XA[0]}")
        A.e(f"v_add_u32 v{XA[3]}, {48 * 2048 - 3072}, v6")

    def init_xb():
        mirror_t(A, CT, 4, 6)
        A.e(f"v_lshl_add_u32 v{XB[0]}, v{CT}, 11, v5")
        A.e(f"v_sub_u32 v4, 2048, v4")
        A.e(f"v_lshl_add_u32 v4, v4, 11, v5")
        A.e(f"v_xor_b32 v6, 64, v4")
        A.e(f"v_subrev_u32 v{XB[1]}, {16 * 2048 + 1024}, v6")
        A.e(f"v_subrev_u32 v{XB[2]}, {32 * 2048 + 2048}, v4")
        A.e(f"v_subrev_u32 v{XB[3]}, {48 * 2048 + 3072}, v6")

    def init_p1_rest():
        A.e(f"v_and_b32 v4, 7, v{VL}")
        A.e(f"v_lshl_add_u32 v4, v4, 2, s{S_Q}")
        A.e(f"s_lshl_b32 s{S_T0}, s{S_NT}, 2")
        A.e(f"s_add_u32 s{S_T0}, s{S_T0}, {WS_FLAG + 96}")
        A.e(f"v_lshl_add_u32 v{VCF}, v4, 7, s{S_T0}")
        A.e(f"s_and_b32 s{S_T0}, s{sPW}, 1")
        A.e(f"s_lshl_b32 s{S_T0}, s{S_T0}, 8")
        A.e(f"v_lshl_add_u32 v{VCL}, v{VL}, 2, s{S_T0}")
        A.e(f"s_mul_i32 s{sONE}, s{S_Q}, 7")
        A.e(f"s_add_u32 s{sONE}, s{sONE}, s{S_NT}")
        A.e(f"s_lshl_b32 s{sONE}, s{sONE}, 13")
        A.e(f"s_add_u32 s{sONE}, s{sONE}, {WS_CS}")
        A.e(f"v_and_b32 v{VFA}, 31, v{VL}")
        A.e(f"v_lshlrev_b32 v{VFA}, 2, v{VFA}")
        A.e(f"s_and_b32 s{S_T0}, s{sPW}, 1")
        A.e(f"s_lshl_b32 s{S_T0}, s{S_T0}, 6")
        A.e(f"v_add_u32 v4, s{S_T0}, v{VL}")
        t_of(A, 4, 4, S_T0)
        mirror_t(A, 5, 4, 6)
        A.e(f"s_cmp_ge_u32 s{sPW}, 2")
        A.e(f"s_cselect_b64 vcc, -1, 0")
        A.e(f"v_cndmask_b32 v4, v4, v5, vcc")
        A.e(f"v_lshlrev_b32 v{VSA}, 3, v4")

    def init_fl():
        A.e(f"s_lshl_b32 s{sFLG}, s{S_G}, 7")
        A.e(f"s_lshl_b32 s{S_T0}, s{S_NT}, 2")
        A.e(f"s_add_u32 s{sFLG}, s{sFLG}, s{S_T0}")
        A.e(f"s_add_u32 s{sFLG}, s{sFLG}, {WS_FLAG}")
        A.e(f"v_add_u32 v4, s{sPW}, v{VL}")
        A.e(f"v_min_u32 v4, 1, v4")
        A.e(f"v_lshlrev_b32 v{VFO}, 30, v4")
        A.e(f"v_mov_b32 v{VONE}, 1")

    def init_p2():
        A.e(f"v_lshrrev_b32 v3, 4, v{VL}")
        A.e(f"v_and_b32 v2, 15, v{VL}")
        A.e(f"v_lshlrev_b32 v4, 1, v3")
        A.e(f"v_xor_b32 v2, v2, v4")
        A.e(f"v_lshlrev_b32 v2, 4, v2")
        A.e(f"s_and_b32 s{S_T0}, s{S_Q}, 1")
        A.e(f"s_lshl_b32 s{S_T0}, s{S_T0}, 7")
        A.e(f"v_xor_b32 v2, s{S_T0}, v2")
        A.e(f"s_mul_i32 s{S_T0}, s{S_Q}, {14 * 64}")
        A.e(f"s_lshr_b32 s{S_T1}, s{sPW}, 1")
        A.e(f"s_lshl_b32 s{S_T1}, s{S_T1}, 5")
        A.e(f"s_add_u32 s{S_T0}, s{S_T0}, s{S_T1}")
        A.e(f"s_and_b32 s{S_T1}, s{sPW}, 1")
        A.e(f"s_lshl_b32 s{S_T1}, s{S_T1}, 3")
        A.e(f"s_add_u32 s{S_T0}, s{S_T0}, s{S_T1}")
        A.e(f"s_lshl_b32 s{S_T0}, s{S_T0}, 11")
        A.e(f"s_lshl_b32 s{S_T1}, s{S_NT}, 8")
        A.e(f"s_add_u32 s{S_T0}, s{S_T0}, s{S_T1}")
        A.e(f"v_lshl_add_u32 v4, v3, 11, v2")
        A.e(f"v_add_u32 v{VW2[0]}, s{S_T0}, v4")
        A.e(f"v_add_u32 v{VW2[1]}, {16 * 2048 - 1024}, v{VW2[0]}")
        A.e(f"v_xor_b32 v4, 128, v{VW2[0]}")
        A.e(f"v_add_u32 v{VW2[2]}, {4 * 2048 - 2048}, v4")
        A.e(f"v_add_u32 v{VW2[3]}, {20 * 2048 - 3072}, v4")
        A.e(f"s_lshl_b32 s{S_T0}, s{S_PAR}, 2")
        A.e(f"s_add_u32 s{S_T0}, s{S_T0}, s{S_MLO}")
        A.e(f"s_mul_i32 s{S_T0}, s{S_T0}, 112")
        A.e(f"s_mul_i32 s{S_T1}, s{S_Q}, 14")
        A.e(f"s_add_u32 s{S_T0}, s{S_T0}, s{S_T1}")
        A.e(f"s_lshl_b32 s{S_T0}, s{S_T0}, 14")
        A.e(f"v_lshl_add_u32 v{VWR[0]}, v{VL}, 4, s{sD}")
        A.e(f"v_add_u32 v{VWR[1]}, {3 * U}, v{VWR[0]}")
        A.e(f"v_add_u32 v{VWR[2]}, {6 * U}, v{VWR[0]}")
        A.e(f"v_add_u32 v{VHA}, s{S_T0}, v{VWR[0]}")
        A.e(f"v_add_u32 v{VHB}, {56 * U}, v{VHA}")
        A.e(f"s_max_u32 s{S_T0}, s{S_NT}, 1")
        A.e(f"s_sub_u32 s{S_T0}, s{S_T0}, 1")
        A.e(f"s_lshl_b32 s{sHA}, s{S_T0}, 15")
        A.e(f"s_mov_b32 s{sW2}, s{sHA}")
        A.e(f"s_add_u32 s{sHB}, s{sHA}, {m * U}")
        A.e(f"s_sub_u32 s{S_T0}, s{sHB}, {14 * U}")
        A.e(f"s_cselect_b32 s{sHB}, s{sHB}, s{S_T0}")

    def init_dft():
        A.e(f"s_cmp_ge_u32 s{sPW}, 2")
        A.e(f"s_cselect_b32 s{S_CS}, s{S_CI}, s{S_CR}")
        A.e(f"s_cselect_b32 s{S_CS + 1}, s{S_CI + 1}, s{S_CR + 1}")
        A.e(f"s_mov_b32 s{S_CS + 2}, s{S_CR + 2}")
        A.e(f"s_mov_b32 s{S_CS + 3}, s{S_CR + 3}")
        A.e(f"s_and_b32 s{S_T1}, s{sPW}, 1")
        A.e(f"s_lshl_b32 s{S_T0}, s{S_T1}, 5")
        A.e(f"v_lshrrev_b32 v4, 3, v{VL}")
        A.e(f"v_add_u32 v4, s{S_T0}, v4")
        t_of(A, 4, 4, S_T0)
        chunk(5)
        A.e(f"v_lshl_add_u32 v{VC[0]}, v4, 12, v5")
        A.e(f"v_xor_b32 v6, 64, v{VC[0]}")
        A.e(f"v_add_u32 v{VC[1]}, {16 * 4096 - 1024}, v6")
        A.e(f"v_add_u32 v{VC[2]}, {32 * 4096 - 2048}, v{VC[0]}")
        A.e(f"v_add_u32 v{VC[3]}, {48 * 4096 - 3072}, v6")
        A.e(f"s_lshl_b32 s{S_T0}, s{S_T1}, 5")
        A.e(f"s_lshl_b32 s{S_T1}, s{S_NT}, 7")
        A.e(f"s_add_u32 s{S_T0}, s{S_T0}, s{S_T1}")
        A.e(f"s_and_b32 s{S_T2}, s{S_Q}, 1")
        A.e(f"s_lshl_b32 s{S_T2}, s{S_T2}, 6")
        A.e(f"s_add_u32 s{S_T1}, s{S_T0}, s{S_T2}")
        A.e(f"s_lshr_b32 s{S_T0}, s{sPW}, 1")
        A.e(f"s_lshl_b32 s{S_T0}, s{S_T0}, 21")
        A.e(f"s_mul_i32 s{S_T2}, s{S_PAR}, {AT_TP}")
        A.e(f"s_add_u32 s{S_T0}, s{S_T0}, s{S_T2}")
        A.e(f"s_add_u32 s{S_T0}, s{S_T0}, {WS_AT}")
        A.e(f"s_mov_b32 s{S_T3}, {AT_PE}")
        A.e(f"v_lshrrev_b32 v3, 4, v{VL}")
        A.e(f"v_lshl_add_u32 v3, v3, 9, s{S_T0}")
        for c2 in range(2):
            A.e(f"v_and_b32 v4, 15, v{VL}")
            A.e(f"v_add_u32 v4, s{S_T1}, v4")
            if c2:
                A.e(f"v_add_u32 v4, 16, v4")
            L = []
            mirror_e(L, 4, 5)
            for t in L:
                A.e(t)
            A.e(f"v_add_u32 v4, v3, v4")
            if c2:
                A.e(f"v_subrev_u32 v4, 2048, v4")
            A.e(f"v_mov_b32 v{VAT[2 * c2]}, v4")
            A.e(f"v_add_u32 v{VAT[2 * c2 + 1]}, 1024, v4")
        A.e(f"s_mov_b32 s{sDC}, 0")
        A.e(f"s_mov_b32 s{sK3}, 0")
        assert WS_BT - WS_AT == 1 << 21

    ax, aw1, aw2, ac = cfg.get("auxX", ""), cfg.get("auxW1", ""), cfg.get("auxW2", ""), cfg.get("auxC", "")

    def wrap14(s):
        return [f"s_add_u32 s{s}, s{s}, {U}", f"s_cmp_eq_u32 s{s}, {14 * U}", f"s_cselect_b32 s{s}, 0, s{s}"]

    def mkpieces(u):
        typ = u["typ"]
        pre, post = [], []
        aux = ""
        if typ[0] == "X":
            V, s = (XA, sKA) if typ == "XA" else (XB, sKB)
            srd_, aux = S_X, ax
            post = [f"s_add_u32 s{s}, s{s}, 128", f"s_and_b32 s{s}, s{s}, 2047"]
        elif typ[0] == "H":
            V, s = ([VHA] * 4, sHA) if typ == "HA" else ([VHB] * 4, sHB)
            srd_ = S_WS
            post = wrap14(s)
        elif typ == "AT":
            V, s, srd_ = VAT, sK3, S_WS
            post = [f"s_add_u32 s{sK3}, s{sK3}, 4096"]
        elif typ == "W1":
            if u["e"].get("rewind"):
                pre += [f"s_sub_u32 s{sKW}, s{sKW}, {n * 128}", f"s_and_b32 s{sKW}, s{sKW}, 2047"]
            pre.append(f"s_mul_i32 s{sW}, s{sKW}, {64 * 7168 // 128}")
            V, srd_, s, aux = VW1, S_W1, sW, aw1
            post = [f"s_add_u32 s{sKW}, s{sKW}, 128", f"s_and_b32 s{sKW}, s{sKW}, 2047"]
        elif typ == "W2":
            pre.append(f"s_lshl_b32 s{sW}, s{sW2}, 3")
            V, srd_, s, aux = VW2, S_W2, sW, aw2
            post = wrap14(sW2)
        else:
            V, srd_, s, aux = VC, S_CS, sDC, ac
            post = [f"s_add_u32 s{sDC}, s{sDC}, 128"]
        if u["st"] is None:
            vm = [f"buffer_load_dwordx4 v{V[p]}, {sr(srd_, 4)}, s{s} offen offset:{p * 1024}{aux} lds" for p in range(4)]
        else:
            b = SB + 16 * u["st"]
            vm = [f"buffer_load_dwordx4 {vr(b + 4 * p, 4)}, v{V[p]}, {sr(srd_, 4)}, s{s} offen offset:{p * 1024} sc1" for p in range(4)]
        return [(pre if p == 0 else [], vm[p], post if p == 3 else []) for p in range(4)]

    byI = {u["i"]: u for u in UN}
    Q = list(UN)
    m0 = [None]
    lastst = {}

    def can(u, b):
        if "pcs" in u:
            return True
        if u["minb"] > b:
            return False
        if u["st"] is not None:
            p = lastst.get(u["st"])
            return p is None or p["h"] - 2 < b
        p = byI.get(u["i"] - NS)
        return p is None or p["h"] + FR <= b

    def next_piece(b, only=None):
        seen = set()
        u = None
        for c in Q[:12]:
            k = "W" if c["typ"] in ("W1", "W2") else c["typ"]
            if k not in seen and (only is None or c["typ"] == only) and can(c, b):
                u = c
                break
            seen.add(k)
        if u is None:
            return False
        if "pcs" not in u:
            u["pcs"] = mkpieces(u)
            if u["st"] is not None:
                lastst[u["st"]] = u
        pre, vm, post = u["pcs"].pop(0)
        if u["st"] is None and m0[0] != u["i"] % NS:
            m0[0] = u["i"] % NS
            A.e(f"s_add_u32 m0, s{sD}, {m0[0] * U}")
        for t in pre:
            A.e(t)
        if not (cfg.get("novm") and u["typ"][0] in cfg["novm"]):
            A.vm_issue(vm, u["i"])
        for t in post:
            A.e(t)
        if not u["pcs"]:
            Q.remove(u)
            u["iss"] = True
        return True

    def issue_some(b, lim, only=None):
        while lim > 0 and next_piece(b, only):
            lim -= 1

    def due(b):
        return sum(len(u.get("pcs", [0] * 4)) for u in Q if u["dl"] <= b)

    def pub_w(hh):
        F = []
        for u in UN:
            if u["h"] == hh and u["st"] is not None:
                b = SB + 16 * u["st"]
                sl = u["i"] % NS

                def need(u=u):
                    assert u.get("iss"), ("not issued", u)
                    A.vm_need([u["i"]])
                F.append((0, need))
                for p in range(4):
                    t = f"ds_write_b128 v{VWR[sl // 3]}, {vr(b + 4 * p, 4)} offset:{(sl % 3) * U + p * 1024}"
                    F.append((26, lambda t=t: A.ds_issue(t, "w")))
        return F

    def pub_d(b):
        for u in UN:
            if u["dl"] <= b and u["st"] is None:
                assert u.get("iss"), ("not issued", u)
                A.vm_need([u["i"]])

    pollS = f"buffer_load_dword v{VFL}, v{VFA}, {sr(S_DBG, 4)}, 0 offen sc1"
    pollC = f"buffer_load_dword v{VFL}, v{VCF}, {sr(S_WS, 4)}, 0 offen sc1"
    bS = K["drC"] - cfg.get("stat_lead", 5)
    bC = K["cs"] - 4

    def flag(off):
        A.vm_issue(f"buffer_store_dword v{VONE}, v{VFO}, {sr(S_WS, 4)}, s{sFLG} offen offset:{off} sc1", "F")

    ramp = cfg.get("ramp", [12, 12, 12])
    lim = cfg.get("lim", 6)
    if main:
        init_w1()
        issue_some(-99, 4)
        init_xa()
        issue_some(-99, 4)
        init_xb()
        issue_some(-99, ramp[0] - 8)
        init_p1_rest()
        init_fl()
        if h1 > K["p2"]:
            init_p2()
            init_dft()
    else:
        init_p2()
        lead = cfg.get("lead2", 3)
        if fused:
            issue_some(-99, 4 * lead, "W2")
            init_dft()
            A.e("s_barrier")
            issue_some(h0 - 3, ramp[0])
        else:
            issue_some(-99, ramp[0])
            init_dft()
    stamp(A, 1, cfg)
    for c_, fn in pub_w(h0):
        fn()
    pub_d(h0 - 2)
    if A.ds:
        A.ds_drain()
    last = h1 - 1
    for b in range(h0 - 1, last + 1):
        A.block()
        A.e("s_barrier")
        if cfg.get("fine"):
            A.e("s_memtime s[96:97]")
        if fused:
            if main and b == K["drA"]:
                flag(0)
            if main and b == K["drB"]:
                flag(32)
        if main and b == K["drC"]:
            flag(96)
        F = pub_w(b + 2)
        k = b - (h0 - 1) + 1
        lm = lim if (b + 3 < H and HS[min(b + 3, H - 1)]["kind"] == "g" and any(HS[hh]["d"] is None for hh in range(b + 3, min(b + 6, H)))) else cfg.get("lim1", 8)
        du = due(b)
        nv = max(ramp[k] if k < len(ramp) else lm, du) - du
        issue_some(b, du)
        gap = cfg.get("gap", 60)
        done = 0
        acc_ = 0
        for c_, fn in F:
            while done < nv and acc_ >= done * gap:
                next_piece(b)
                done += 1
            fn()
            acc_ += c_
        issue_some(b, nv - done)
        if cfg.get("fine"):
            A.e("s_memtime s[98:99]")
        if main:
            if b == bS:
                A.vm_issue(pollS, "PS")
            if b == bS + 3:
                check_poll(A, "S", pollS, VFL, "PS")
                A.e(f"s_mov_b32 s{S_T0}, {WS_ST}")
                A.vm_issue(f"buffer_load_dword v{VSD}, v{VSA}, {sr(S_WS, 4)}, s{S_T0} offen sc1", "SD")
            if b == bC:
                A.vm_issue(pollC, "PC")
                A.e(f"v_bfe_u32 v4, v{VL}, 4, 1")
                A.e(f"v_and_b32 v5, 15, v{VL}")
                A.e(f"v_lshl_add_u32 v4, v5, 3, v4")
                A.e(f"v_lshrrev_b32 v5, 5, v{VL}")
                A.e(f"v_lshl_add_u32 v4, v5, 7, v4")
                A.e(f"s_lshl_b32 s{S_T0}, s{sPW}, 3")
                A.e(f"s_add_u32 s{S_T0}, s{S_T0}, {L_PM}")
                A.e(f"v_lshl_add_u32 v4, v4, 2, s{S_T0}")
                A.vm_need(["SD"])
                A.e(f"v_and_b32 v{VSD}, 0xffff0000, v{VSD}")
                A.e(f"v_xor_b32 v{VSD}, 0x80000000, v{VSD}")
                A.ds_issue(f"ds_write_b32 v4, v{VSD}", "w")
            if b == bC + 1:
                check_poll(A, "C", pollC, VFL, "PC")
                for i in range(16):
                    if i == 8:
                        A.e(f"s_add_u32 s{sONE}, s{sONE}, 4096")
                    A.vm_issue(f"buffer_load_dword v{CT + i}, v{VCL}, {sr(S_WS, 4)}, s{sONE} offen offset:{(i & 7) * 512} sc1", "CS")
            if b == bC + 3:
                A.vm_need(["CS"])
                for w in (8, 4, 2):
                    for i in range(0, w, 2):
                        A.e(f"v_pk_add_f32 {vr(CT + i, 2)}, {vr(CT + i, 2)}, {vr(CT + w + i, 2)}")
                A.e(f"v_add_f32 v{CT}, v{CT}, v{CT + 1}")
                A.e(f"v_add_u32 v4, {L_TM}, v{VCL}")
                A.ds_issue(f"ds_write_b32 v4, v{CT}", "w")
        pub_d(b)
        if A.ds:
            A.ds_drain()
        if cfg.get("fine"):
            A.e("s_memtime s[100:101]")
            A.e("s_waitcnt lgkmcnt(0)")
            for i_ in range(3):
                A.e(f"v_writelane_b32 v{253 + i_}, s{96 + 2 * i_}, {(b + 1 - h0) & 63}")
        if b == K["p2"]:
            stamp(A, 2, cfg)
        if b == K["dft"]:
            stamp(A, 3, cfg)
    A.block()
    assert not Q
    return A


def common(A, cfg, end):
    A.e("s_cmp_ge_u32 s2, 256")
    A.e(f"s_cbranch_scc1 {end}")
    A.e("s_load_dwordx2 s[4:5], s[0:1], 0")
    A.e("s_load_dwordx4 s[88:91], s[0:1], 48")
    A.e("s_load_dwordx2 s[6:7], s[0:1], 80")
    A.e("s_load_dwordx4 s[8:11], s[0:1], 8")
    A.e("s_load_dwordx4 s[12:15], s[0:1], 24")
    A.e("s_load_dwordx4 s[92:95], s[0:1], 64")
    A.e("v_lshrrev_b32 v1, 6, v0")
    A.e(f"s_and_b32 s{S_Q}, s2, 3")
    A.e(f"v_readfirstlane_b32 s{S_WAVE}, v1")
    A.e(f"s_bfe_u32 s{S_PAR}, s2, 0x10002")
    A.e("v_and_b32 v1, 63, v0")
    A.e(f"s_bfe_u32 s{S_MLO}, s2, 0x20003")
    A.e(f"s_lshr_b32 s{S_NT}, s2, 5")
    A.e(f"s_and_b32 s{S_G}, s2, 31")
    if cfg.get("stamps"):
        A.e(f"v_mov_b32 v{STAMP_V}, 0")
    A.e("s_waitcnt lgkmcnt(0)")
    srd(A, S_W1, 88, 1024 * 3584 * 2)
    srd(A, S_X, 4, 2048 * 1024 * 2)
    srd(A, S_WS, 6, WS_BYTES)
    srd(A, S_W2, 90, 1024 * 3584 * 2)
    srd(A, S_DBG, 94, 256)
    srd(A, S_O, 92, 2048 * 1024 * 2)
    srd(A, S_CR, 8, 2048 * 2048 * 2)
    srd(A, S_CI, 10, 2048 * 2048 * 2)
    k1h.stamp(A, 0, enable=cfg.get("stamps"))


def fin(A, cfg, off):
    if cfg.get("stamps"):
        A.e("s_waitcnt vmcnt(0)")
        k1h.stamp(A, 4, enable=True)
        A.e("s_getreg_b32 s61, hwreg(HW_REG_XCC_ID)")
        A.e(f"v_writelane_b32 v{STAMP_V}, s61, 7")
        A.e(f"s_lshl_b32 s60, s2, 3")
        A.e(f"s_add_u32 s60, s60, s{S_WAVE}")
        A.e(f"s_lshl_b32 s60, s60, 8")
        A.e(f"s_add_u32 s60, s60, {WS_DBG + off}")
        A.e("v_and_b32 v1, 63, v0")
        A.e("v_lshlrev_b32 v1, 2, v1")
        A.e(f"buffer_store_dword v{STAMP_V}, v1, {sr(S_WS, 4)}, s60 offen")
        if cfg.get("fine"):
            for i_, r in enumerate((41, 42, 253, 254, 255)):
                A.e(f"s_add_u32 s60, s60, {2 << 20}")
                A.e(f"buffer_store_dword v{r}, v1, {sr(S_WS, 4)}, s60 offen")


def zero_line(A):
    A.e(f"v_and_b32 v2, 0x17, v{VL}")
    A.e(f"v_cmp_eq_u32 vcc, 0, v2")
    A.e(f"v_cndmask_b32 v2, 0, 1, vcc")
    A.e(f"v_lshrrev_b32 v4, 5, v0")
    A.e(f"v_min_u32 v4, 1, v4")
    A.e(f"v_lshlrev_b32 v3, 2, v{VL}")
    A.e(f"v_lshl_add_u32 v3, v4, 30, v3")
    A.e(f"s_lshl_b32 s{S_T0}, s{S_G}, 7")
    A.e(f"s_add_u32 s{S_T0}, s{S_T0}, {WS_FLAG}")
    A.vm_issue(f"buffer_store_dword v2, v3, {sr(S_WS, 4)}, s{S_T0} offen sc1", "Z")


def at_flag(A):
    A.e("s_waitcnt vmcnt(0) lgkmcnt(0)")
    A.e("s_barrier")
    A.e(f"v_min_u32 v2, 1, v0")
    A.e(f"v_lshlrev_b32 v2, 30, v2")
    A.e(f"v_mov_b32 v3, 1")
    A.e(f"s_lshl_b32 s{S_T0}, s{S_G}, 7")
    A.e(f"s_add_u32 s{S_T0}, s{S_T0}, {WS_FLAG}")
    A.e(f"buffer_store_dword v3, v2, {sr(S_WS, 4)}, s{S_T0} offen offset:96 sc1")


def uniq(L):
    nb, nl, out = {}, {}, []
    for t in L:
        if t.endswith("@"):
            k = t.split()[-1]
            nb[k] = nb.get(k, 0) + 1
            t = t[:-1] + f"_{nb[k]}"
        elif t.endswith("@:"):
            k = t[:-1]
            nl[k] = nl.get(k, 0) + 1
            t = t[:-2] + f"_{nl[k]}:"
        out.append(t)
    return out


def join(name, M, Jn, rl):
    bm, bj = M.blocks(), Jn.blocks()
    k = 0
    while k < min(len(bm), len(bj)) - 1 and bm[len(bm) - 1 - k] == bj[len(bj) - 1 - k]:
        k += 1
    lab = f"L_{name}_join"
    main = roll(bm[:len(bm) - k], name + "a", rl) + [lab + ":"] + roll(bm[len(bm) - k:], name + "b", rl)
    pre = roll(bj[:len(bj) - k], name + "c", rl) + [f"    s_branch {lab}"]
    return main, pre, len(bj) - k


HEADER = """; out = x + Re(DFT_seq(DFT_hid(LN x))) + relu(LN(x) w1) w2      (generated code)
; Symmetries of the constant DFT matrices that are used (C = seq tables, D = hidden tables):
;   Dr[e,1024-d]=Dr[e,d], Di[e,1024-d]=-Di[e,d], D[e,512+-d]=(-1)^e-type mirror, same mirrors in e;
;   Cr[t,2048-s]=Cr[t,s], Ci[t,2048-s]=-Ci[t,s], C[t,1024+-s]=(-1)^t-type mirror, same mirrors in t.
; folded (sums / differences of mirrored samples) before each product."""


def build(cfg):
    import k1s
    fused = cfg.get("fused", True)
    rl = cfg.get("roll", True)
    HS, K = make_sched(cfg)
    A = Asm()
    names = ["pk_kernel"] if fused else ["k1_kernel", "k2_kernel"]
    for nm in names:
        A.raw(f"; @launch kernel={nm} grid=(256,1,1) block=(512,1,1) lds=163840")
    for l in HEADER.split("\n"):
        A.raw(l)
    A.raw('.amdgcn_target "amdgcn-amd-amdhsa--gfx950"')
    A.raw(".text")
    scfg = dict(cfg)
    scfg["zflag"] = False
    scfg["early"] = True
    scfg.setdefault("s_store_aux", " sc1")
    H, hp2 = K["H"], K["p2"]
    if fused:
        kernel_begin(A, names[0])
        common(A, cfg, "L_end")
        C, P = consumer(cfg, HS, K, 0, H, True), producer(cfg, HS, K, 0, H, True)
        C2, P2 = consumer(cfg, HS, K, hp2, H, True), producer(cfg, HS, K, hp2, H, True)
        cm, cp, nc = join("c", C, C2, rl)
        pm, pp, np_ = join("p", P, P2, rl)
        print("join after blocks: consumer", nc, "producer", np_, K, file=sys.stderr)
        A.e(f"s_cmp_eq_u32 s{S_NT}, 0")
        A.e("s_cbranch_scc1 L_special")
        A.e(f"s_cmp_ge_u32 s{S_WAVE}, 4")
        A.e("s_cbranch_scc1 L_prod")
        A.L += cm
        A.e("s_branch L_fin")
        A.label("L_prod")
        A.L += pm
        A.e("s_branch L_fin")
        A.label("L_special")
        zero_line(A)
        k1s.k1_special(A, scfg)
        at_flag(A)
        A.e(f"s_cmp_ge_u32 s{S_WAVE}, 4")
        A.e("s_cbranch_scc1 L_prod2")
        A.L += cp
        A.label("L_prod2")
        A.L += pp
        ool = {}
        for s in (C, P, C2, P2):
            ool.update(s.ool)
        for L in ool.values():
            A.L += L
        A.label("L_fin")
        fin(A, cfg, 0)
        A.label("L_end")
        A.e("s_endpgm")
    else:
        for ki, (h0, h1) in enumerate(((0, hp2), (hp2, H))):
            nm = names[ki]
            kernel_begin(A, nm)
            common(A, cfg, f"L_end{ki}")
            C, P = consumer(cfg, HS, K, h0, h1, False), producer(cfg, HS, K, h0, h1, False)
            if ki == 0:
                A.e(f"s_cmp_eq_u32 s{S_NT}, 0")
                A.e("s_cbranch_scc1 L_special")
            A.e(f"s_cmp_ge_u32 s{S_WAVE}, 4")
            A.e(f"s_cbranch_scc1 L_prod{ki}")
            A.L += roll(C.blocks(), f"c{ki}", rl)
            A.e(f"s_branch L_fin{ki}")
            A.label(f"L_prod{ki}")
            A.L += roll(P.blocks(), f"p{ki}", rl)
            A.e(f"s_branch L_fin{ki}")
            for s in (C, P):
                for L in s.ool.values():
                    A.L += L
            if ki == 0:
                A.label("L_special")
                zero_line(A)
                k1s.k1_special(A, scfg)
                at_flag(A)
            A.label(f"L_fin{ki}")
            fin(A, cfg, ki << 20)
            A.label(f"L_end{ki}")
            A.e("s_endpgm")
    A.raw('.section .rodata,"a"')
    for nm in names:
        descriptor(A, nm)
    A.L = uniq(A.L)
    return A.text(cfg.get("hv", False))


if __name__ == "__main__":
    cfg = dict(stamps=("stamps" in sys.argv))
    for a in sys.argv[2:]:
        if "=" in a:
            k, v = a.split("=", 1)
            try:
                v = eval(v)
            except Exception:
                pass
            cfg[k] = v
    open(sys.argv[1], "w").write(build(cfg))
```

```python
import sys
from asmlib import *
from k1h import WS_H, WS_AT, WS_BT, AT_BLK, AT_PE, AT_TP, WS_ST, WS_FLAG, WS_PART, WS_DBG, WS_BYTES, STAMP_V
import k1h

U = 16384
L_PM = 49152
L_TM = L_PM + 4096
L_D = 65536
DX = 0xC000
OOB = 0x40000000
S_X, S_W1, S_WS, S_CS, S_DBG, S_W2, S_O, S_CR, S_CI = 16, 20, 24, 28, 64, 68, 72, 76, 80
S_WAVE, S_Q, S_PAR, S_MLO, S_NT, S_G = 32, 33, 34, 35, 36, 37
S_T0, S_T1, S_T2, S_T3 = 38, 39, 84, 85
S_CNT, S_TO = 86, 87
VL = 1
MF = "v_mfma_f32_16x16x32_bf16"


class St(Asm):
    def __init__(self):
        super().__init__()
        self.bidx = [0]
        self.ool = {}

    def block(self):
        self.bidx.append(len(self.L))

    def blocks(self):
        b = self.bidx + [len(self.L)]
        return [self.L[b[i]:b[i + 1]] for i in range(len(b) - 1)]


def stamp(A, idx, cfg):
    k1h.stamp(A, idx, enable=cfg.get("stamps", False))
    if cfg.get("stamps", False):
        A.ds = []


def roll(blocks, name, enable=True):
    out = []
    i = 0
    n = len(blocks)
    nl = 0
    while i < n:
        best = None
        if enable:
            for p in range(1, 13):
                k = 1
                while i + (k + 1) * p <= n and blocks[i + k * p:i + (k + 1) * p] == blocks[i:i + p]:
                    k += 1
                if k >= 2:
                    sav = (k - 1) * sum(len(b) for b in blocks[i:i + p])
                    if sav > 40 and (best is None or sav > best[0]):
                        best = (sav, p, k)
        if best:
            _, p, k = best
            nl += 1
            lab = f"L_{name}_r{nl}"
            out.append(f"    s_mov_b32 s{S_CNT}, {k - 1}")
            out.append(lab + ":")
            for b in blocks[i:i + p]:
                out += b
            out.append(f"    s_sub_u32 s{S_CNT}, s{S_CNT}, 1")
            out.append(f"    s_cbranch_scc0 {lab}")
            i += p * k
        else:
            out += blocks[i]
            i += 1
    return out


def make_sched(cfg):
    n, m = cfg.get("n", 4), cfg.get("m", 4)
    HS = []
    c = {"r": 0, "d": 0}

    def g(ph, S, load, **kw):
        e = dict(kind="g", ph=ph, S=S, r=c["r"], d=None, **kw)
        c["r"] += 1
        if load:
            e["d"] = c["d"]
            c["d"] += 1
        HS.append(e)

    for k in range(16 - n):
        g(1, 0, True, cs=True)
        g(1, 1, False)
    for k in range(n):
        g(1, 0, True, cs=True)
    HS.append(dict(kind="mini", ph=1, r=None, d=None))
    for k in range(n):
        g(1, 1, True, rewind=(k == 0))
    for j in range(m):
        g(2, 0, True, j=j)
    for j in range(m, 14):
        g(2, 0, True, j=j)
        g(2, 1, False, j=j)
    for j in range(m):
        g(2, 1, True, j=j)
    for kd in range(8):
        HS.append(dict(kind="dft", ph=3, r=c["r"], d=c["d"], kd=kd))
        c["r"] += 1
        c["d"] += 1
    K = {}
    K["mini"] = [h for h, e in enumerate(HS) if e["kind"] == "mini"][0]
    K["p2"] = [h for h, e in enumerate(HS) if e["ph"] == 2][0]
    K["dft"] = [h for h, e in enumerate(HS) if e["ph"] == 3][0]
    K["a2end"] = max(h for h, e in enumerate(HS) if e["ph"] == 2 and e["S"] == 0)
    K["H"] = len(HS)
    K["drA"] = K["mini"] + cfg.get("drA", 5)
    K["drB"] = K["p2"] + cfg.get("drB", 5)
    firstRA = K["p2"] + (2 if m >= 3 else (3 if m == 2 else 4 - m + 0))
    ra = [h for h, e in enumerate(HS) if e["ph"] == 2 and e["S"] == 0 and e["j"] == 2][0]
    rb = [h for h, e in enumerate(HS) if e["ph"] == 2 and e["S"] == 1][0]
    K["pA"] = max(ra - cfg.get("leadA", 5), K["drA"] + 1)
    K["pB"] = max(rb - cfg.get("leadB", 5), K["drB"] + 1)
    K["pAT"] = K["dft"] - cfg.get("leadAT", 8)
    K["drX"] = K["dft"] + cfg.get("drX", 5)
    return HS, K


PF, TF, TMF, PC = 64, 96, 48, 44
ACC = [128, 192]
AXR, AH, AAT, ATT, ACD, APM, ATM, VST = [8, 9], 10, 11, [12, 13, 14, 15], [16, 17], 18, 19, 20
VPA, VPV, VPA2, VPV2 = 21, 22, 23, 40
VO = [[24, 25], [26, 27]]
VR = [[28, 29], [30, 31]]
PXR, TXR = 32, 48
XR = 96
sWM, sWN, sHS, sXS, sXR, sFL, sSG, sLO, sHI = 40, 41, 42, 43, 44, 45, 46, 47, 48


def acc(S, rb, cb):
    return ACC[S] + rb * 16 + cb * 4


def t_of(A, vd, vi, tmp):
    A.e(f"s_lshr_b32 s{tmp}, s{S_Q}, 1")
    A.e(f"s_lshl_b32 s{tmp}, s{tmp}, 6")
    A.e(f"v_xor_b32 v{vd}, s{tmp}, v{vi}")
    A.e(f"s_lshl_b32 s{tmp}, s{S_MLO}, 8")
    A.e(f"s_add_u32 s{tmp}, s{tmp}, s{S_PAR}")
    A.e(f"v_lshl_add_u32 v{vd}, v{vd}, 1, s{tmp}")


def mirror_t(A, vd, vs, vt):
    A.e(f"v_sub_u32 v{vd}, 2048, v{vs}")
    A.e(f"v_mov_b32 v{vt}, 1024")
    A.e(f"v_cmp_eq_u32 vcc, 0, v{vs}")
    A.e(f"v_cndmask_b32 v{vd}, v{vd}, v{vt}, vcc")


def mirror_e(L, vc, vt):
    L.append(f"v_sub_u32 v{vt}, 1024, v{vc}")
    L.append(f"v_min_u32 v{vc}, v{vc}, v{vt}")
    L.append(f"v_lshrrev_b32 v{vt}, 6, v{vc}")
    L.append(f"v_mul_u32_u24 v{vt}, {AT_BLK}, v{vt}")
    L.append(f"v_and_b32 v6, 1, v{vc}")
    L.append(f"v_mad_u32_u24 v{vt}, v6, s{S_T3}, v{vt}")
    L.append(f"v_bfe_u32 v{vc}, v{vc}, 1, 5")
    L.append(f"v_lshl_add_u32 v{vc}, v{vc}, 4, v{vt}")


def slow_poll(A, name, load, vreg):
    if name in A.ool:
        return
    L = [f"L_sp_{name}:", f"    s_mov_b32 s{S_TO}, 0x40000", f"L_sl_{name}:", f"    {load}", "    s_waitcnt vmcnt(0)",
         f"    v_cmp_ne_u32 vcc, 0, v{vreg}", "    s_cmp_eq_u64 vcc, -1", f"    s_cbranch_scc1 L_ok_{name}",
         f"    s_sub_u32 s{S_TO}, s{S_TO}, 1", f"    s_cbranch_scc0 L_sl_{name}", f"    s_branch L_ok_{name}"]
    A.ool[name] = L


def check_poll(A, name, load, vreg, tag):
    A.vm_need([tag])
    A.e(f"v_cmp_ne_u32 vcc, 0, v{vreg}")
    A.e("s_cmp_eq_u64 vcc, -1")
    A.e(f"s_cbranch_scc0 L_sp_{name}")
    A.label(f"L_ok_{name}")
    slow_poll(A, name, load, vreg)


def consumer(cfg, HS, K, h0, h1, fused):
    A = St()
    main = h0 == 0
    sc = " sc1" if fused else ""
    A.e(f"s_setprio {cfg.get('prio', 1)}")
    A.e(f"s_lshr_b32 s{sWM}, s{S_WAVE}, 1")
    A.e(f"s_and_b32 s{sWN}, s{S_WAVE}, 1")
    A.e(f"v_and_b32 v2, 15, v{VL}")
    A.e(f"v_lshrrev_b32 v3, 4, v{VL}")
    A.e(f"s_lshl_b32 s{S_T0}, s{sWM}, 12")
    A.e(f"s_lshl_b32 s{S_T1}, s{sWN}, 12")
    A.e(f"v_lshlrev_b32 v{VST}, 4, v{VL}")
    dslot0 = next(e["d"] for e in HS[h0:] if e["d"] is not None)
    tb = [(dslot0 % 6) // 3]
    A.e(f"v_bfe_u32 v4, v{VL}, 2, 2")
    A.e(f"v_lshl_add_u32 v5, v3, 3, v4")
    A.e(f"v_lshlrev_b32 v5, 8, v5")
    A.e(f"v_and_b32 v6, 1, v3")
    A.e(f"v_lshl_add_u32 v4, v6, 2, v4")
    A.e(f"s_lshl_b32 s{S_T2}, s{sWN}, 1")
    A.e(f"v_xor_b32 v4, s{S_T2}, v4")
    A.e(f"v_lshl_add_u32 v5, v4, 5, v5")
    A.e(f"v_and_b32 v4, 3, v{VL}")
    A.e(f"v_lshl_add_u32 v5, v4, 3, v5")
    A.e(f"v_add_u32 v{ATT[0]}, {L_D ^ (DX * tb[0])}, v5")
    for cb in range(1, 4):
        A.e(f"v_xor_b32 v{ATT[cb]}, {(cb >> 1) * 128 + (cb & 1) * 32}, v{ATT[0]}")
    A.e(f"v_lshrrev_b32 v4, 1, v2")
    A.e(f"v_xor_b32 v4, v3, v4")
    A.e(f"v_lshl_add_u32 v5, v2, 7, s{S_T0}")
    A.e(f"v_lshl_add_u32 v{AXR[0]}, v4, 4, v5")
    A.e(f"v_xor_b32 v{AXR[1]}, 64, v{AXR[0]}")
    A.e(f"v_add_u32 v{AH}, s{S_T0}, v{VST}")
    A.e(f"v_add_u32 v{AAT}, s{S_T1}, v{VST}")
    if main:
        A.e(f"s_lshl_b32 s{S_T2}, s{sWM}, 9")
        A.e(f"s_add_u32 s{S_T2}, s{S_T2}, {L_PM}")
        A.e(f"v_lshl_add_u32 v{APM}, v2, 4, s{S_T2}")
        A.e(f"s_lshl_b32 s{S_T2}, s{sWN}, 11")
        A.e(f"s_add_u32 s{S_T2}, s{S_T2}, {L_TM}")
        A.e(f"v_add_u32 v{ATM}, s{S_T2}, v{VST}")
        A.e(f"s_lshl_b32 s{S_T2}, s{S_PAR}, 2")
        A.e(f"s_add_u32 s{S_T2}, s{S_T2}, s{S_MLO}")
        A.e(f"s_mul_i32 s{S_T2}, s{S_T2}, 56")
        A.e(f"s_mul_i32 s{S_T3}, s{S_Q}, 7")
        A.e(f"s_add_u32 s{S_T2}, s{S_T2}, s{S_T3}")
        A.e(f"s_add_u32 s{S_T2}, s{S_T2}, s{S_NT}")
        A.e(f"s_sub_u32 s{S_T2}, s{S_T2}, 1")
        A.e(f"s_lshl_b32 s{sHS}, s{S_T2}, 15")
        A.e(f"s_add_u32 s{sHS}, s{sHS}, s{S_T0}")
        A.e(f"s_lshl_b32 s{S_T2}, s{sWN}, 10")
        A.e(f"s_add_u32 s{sHS}, s{sHS}, s{S_T2}")
        assert WS_H == 0
    A.e(f"s_lshl_b32 s{sFL}, s{S_G}, 7")
    A.e(f"s_add_u32 s{sFL}, s{sFL}, {WS_FLAG}")
    A.e(f"v_and_b32 v{VPA}, 7, v{VL}")
    A.e(f"v_lshlrev_b32 v{VPA}, 2, v{VPA}")

    if main and cfg.get("scrub"):
        gr, xr = cfg["scrub"]
        A.e(f"s_xor_b32 s{S_T2}, s2, {xr}")
        A.e(f"s_mul_i32 s{S_T2}, s{S_T2}, {3 * U}")
        A.e(f"s_mul_i32 s{S_T3}, s{S_WAVE}, {3 * 4096}")
        A.e(f"s_add_u32 s{S_T2}, s{S_T2}, s{S_T3}")
        A.e(f"s_add_u32 s{S_T2}, s{S_T2}, {cfg.get('part', 24) << 20}")
        A.e(f"v_mul_u32_u24 v4, {gr}, v{VL}")
        for i in range((12288 + gr * 64 - 1) // (gr * 64)):
            if (i + 1) * gr * 64 > 12288:
                A.e(f"v_cmp_gt_u32 vcc, {12288 - i * gr * 64}, v4")
                A.e(f"v_cndmask_b32 v5, 1, 0, vcc")
                A.e(f"v_lshl_add_u32 v4, v5, 30, v4")
            if gr == 16:
                A.e(f"buffer_store_dwordx4 v[8:11], v4, {sr(S_WS, 4)}, s{S_T2} offen sc1")
            else:
                A.e(f"buffer_store_dword v8, v4, {sr(S_WS, 4)}, s{S_T2} offen sc1")
            A.e(f"s_add_u32 s{S_T2}, s{S_T2}, {gr * 64}")

    vals = {}
    groups = []
    cur_t = None

    def val(key, reg, reads, pub, dslot=None, dreg=None):
        vals[key] = dict(key=key, reg=reg, reads=reads, pub=pub, dslot=dslot, dreg=dreg, first=None, last=None)
        return key

    for h in range(h0, h1):
        e = HS[h]
        if e["kind"] == "g":
            ro = (e["r"] % 3) * U
            if e["d"] is not None:
                do = (e["d"] % 3) * U
                cur_t = {}
                for k32 in range(2):
                    for cb in range(4):
                        rg = TF + 4 * (4 * k32 + cb)
                        cur_t[k32, cb] = val(("T", h, k32, cb), rg,
                                             [f"ds_read_b64_tr_b16 {vr(rg + 2 * u, 2)}, v{ATT[cb]} offset:{do + k32 * 8192 + u * 1024}" for u in range(2)],
                                             h - 1, (e["d"] % 6) // 3, "T")
            for k32 in range(2):
                for rb in range(4):
                    rg = PF + 4 * (4 * k32 + rb)
                    o = ro + (rb >> 1) * 8192 + (rb & 1) * 2048
                    rd = f"ds_read_b128 {vr(rg, 4)}, v{AXR[k32]} offset:{o}" if e["ph"] == 1 else f"ds_read_b128 {vr(rg, 4)}, v{AH} offset:{o + k32 * 1024}"
                    p = val(("P", h, k32, rb), rg, [rd], h - 1)
                    groups.append((h, [(acc(e["S"], rb, cb), cur_t[k32, cb], p) for cb in range(4)]))
        elif e["kind"] == "mini":
            tm = [val(("TM", cb), TMF + 4 * cb, [f"ds_read_b128 {vr(TMF + 4 * cb, 4)}, v{ATM} offset:{(cb >> 1) * 4096 + (cb & 1) * 1024}"], h - 1) for cb in range(4)]
            for S in range(2):
                for rb in range(4):
                    rg = PF + 4 * (4 * S + rb)
                    p = val(("PM", S, rb), rg, [f"ds_read_b128 {vr(rg, 4)}, v{APM} offset:{S * 2048 + (rb >> 1) * 1024 + (rb & 1) * 256}"], h - 1)
                    groups.append((h, [(acc(S, rb, cb), tm[cb], p) for cb in range(4)]))
        else:
            ro = (e["r"] % 3) * U
            do = (e["d"] % 3) * U
            for k32 in range(2):
                for kind in range(2):
                    t = []
                    for cb2 in range(2):
                        rg = TF + 4 * (4 * k32 + 2 * kind + cb2)
                        t.append(val(("AT", h, k32, kind, cb2), rg, [f"ds_read_b128 {vr(rg, 4)}, v{AAT} offset:{ro + kind * 8192 + cb2 * 2048 + k32 * 1024}"], h - 1))
                    for rb2 in range(2):
                        rg = PF + 4 * (4 * k32 + 2 * kind + rb2)
                        p = val(("C", h, k32, kind, rb2), rg, [f"ds_read_b128 {vr(rg, 4)}, v{ACD[k32]} offset:{do + kind * 8192 + rb2 * 2048}"], h - 1, (e["d"] % 6) // 3, "C")
                        ms = [(acc(0, 2 + rb2, 2 * kind + cb2), t[cb2], p) for cb2 in range(2)]
                        if kind == 0 and rb2 == 0:
                            ms += [(acc(0, 0, 2 + cb2), t[cb2], "PC") for cb2 in range(2)]
                        groups.append((h, ms))
    seq = []
    cnt = {}
    for h, ms in groups:
        for mf in ms:
            i = cnt.get(h, 0)
            cnt[h] = i + 1
            seq.append((h, i, mf))
    for n_, (h, i, (a, t, p)) in enumerate(seq):
        for k in (t, p):
            if k in vals:
                v = vals[k]
                if v["first"] is None:
                    v["first"] = n_
                v["last"] = n_
    order = sorted(vals.values(), key=lambda v: v["first"])
    prev = {}
    for v in order:
        v["prev"] = prev.get(v["reg"])
        prev[v["reg"]] = v
        v["q"] = list(v["reads"])
    pend = list(order)
    cb_ = [None]

    extras = []
    prebar = {}

    def X(at, items, dl=None):
        extras.append(dict(at=at, items=list(items), dl=dl))

    def PB(h, fn):
        prebar.setdefault(h, []).append(fn)

    H = K["H"]
    hm, hp2, hd = K["mini"], K["p2"], K["dft"]
    haux = cfg.get("h_aux", " sc1")
    PST = cfg.get("pst", 3 * U)
    WS_PART = cfg.get("part", 24) << 20

    def ep_items(S, rb):
        L = []
        for rel in range(2):
            a = acc(S, rb, 2 * rel)
            if rb & 1 == 0 or True:
                L.append(f"s_add_u32 s{S_T0 + rel}, s{sHS}, {S * 56 * U + rel * U + (rb >> 1) * 8192}")
            L += [f"v_cvt_pk_bf16_f32 v{a + i}, v{a + 2 * i}, v{a + 2 * i + 1}" for i in range(4)]
            L += [f"v_pk_max_i16 v{a + i}, v{a + i}, 0" for i in range(4)]
            L.append(("vm", f"buffer_store_dwordx4 {vr(a, 4)}, v{VST}, {sr(S_WS, 4)}, s{S_T0 + rel} offen offset:{(rb & 1) * 2048}{haux}", ("H", S)))
        return L

    def send_items(S, rb):
        L = []
        for relc in range(2):
            d = 2 * (rb >> 1) + relc
            if d == 0:
                continue
            a = acc(S, rb, 2 * relc)
            L += [f"v_cvt_pk_bf16_f32 v{a + i}, v{a + 2 * i}, v{a + 2 * i + 1}" for i in range(4)]
            L.append(("vm", f"buffer_store_dwordx4 {vr(a, 4)}, v{VST}, {sr(S_WS, 4)}, s{49 + d} offen offset:{(S * 2 + (rb & 1)) * 1024}{cfg.get('snd_aux', ' sc1')}", "SND"))
        return L

    def lastpos(S, rb, hmax):
        best = None
        for n_, (h, i, (a, t, p)) in enumerate(seq):
            if h < hmax and acc(S, rb, 0) <= a < acc(S, rb, 0) + 16:
                best = n_
        return best

    def at_after(n_, d=3):
        n_ = n_ + d
        if n_ >= len(seq):
            return (h1, 0)
        return seq[n_][:2]

    if main:
        for S in range(2):
            for rb in range(4):
                first2 = next(((h, i) for (h, i, (a, t, p)) in seq if h >= hp2 and acc(S, rb, 0) <= a < acc(S, rb, 0) + 16), None)
                X(at_after(lastpos(S, rb, hp2)), ep_items(S, rb), dl=first2)
        extras.sort(key=lambda x: x["at"])
    pollA = f"buffer_load_dword v{VPV}, v{VPA}, {sr(S_WS, 4)}, s{sFL} offen sc1"
    pollB = f"buffer_load_dword v{VPV}, v{VPA}, {sr(S_WS, 4)}, s{sFL} offen offset:32 sc1"
    pollT = f"buffer_load_dword v{VPV2}, v{VPA2}, {sr(S_DBG, 4)}, 0 offen offset:128 sc1"
    pollS = f"buffer_load_dword v{VPV2}, v{VPA2}, {sr(S_DBG, 4)}, 0 offen sc1"
    PL = cfg.get("poll_lead", 2)
    if fused:
        if main:
            PB(K["drA"], lambda: A.vm_drain())
            PB(K["drB"], lambda: A.vm_drain())
            X((max(K["pA"] - PL, K["drA"]), 4), [("vm", pollA, "PA")], dl=(K["pA"], 0))
            PB(K["pA"], lambda: check_poll(A, "A", pollA, VPV, "PA"))
        if K["pB"] >= h0 + 1:
            X((max(K["pB"] - PL, K["drB"], h0), 4), [("vm", pollB, "PB")], dl=(K["pB"], 0))
            PB(K["pB"], lambda: check_poll(A, "B", pollB, VPV, "PB"))
        X((K["pAT"] - PL, 8), [f"v_and_b32 v{VPA2}, 31, v{VL}", f"v_lshlrev_b32 v{VPA2}, 2, v{VPA2}", ("vm", pollT, "PT")], dl=(K["pAT"], 0))
        PB(K["pAT"], lambda: check_poll(A, "T", pollT, VPV2, "PT"))
        extras.sort(key=lambda x: x["at"])
    if h1 == H:
        hs_ = K["a2end"] - 4
        L = []
        for d in (1, 2, 3):
            L += [f"s_xor_b32 s{S_T2}, s2, {d if not cfg.get('sndown') else 0}", f"s_mul_i32 s{49 + d}, s{S_T2}, {PST}"]
        L += [f"s_lshl_b32 s{S_T2}, s{S_WAVE}, 12", f"s_add_u32 s{S_T2}, s{S_T2}, {WS_PART}"]
        for d in (1, 2, 3):
            L += [f"s_add_u32 s{49 + d}, s{49 + d}, s{S_T2}", f"s_add_u32 s{49 + d}, s{49 + d}, {(d - 1) * U}"]
        L += [f"s_mul_i32 s{sXR}, s2, {PST}", f"s_add_u32 s{sXR}, s{sXR}, s{S_T2}"]
        dfirst = HS[hd]["d"]
        cb_[0] = (dfirst % 6) // 3
        L += [f"v_add_u32 v{ACD[k]}, {L_D ^ (DX * cb_[0])}, v{AXR[k]}" for k in range(2)]
        L += [f"v_and_b32 v2, 15, v{VL}", f"s_lshl_b32 s{S_T2}, s{sWM}, 5", f"v_add_u32 v2, s{S_T2}, v2",
              f"s_lshr_b32 s{S_T2}, s{S_Q}, 1", f"s_lshl_b32 s{S_T2}, s{S_T2}, 6", f"v_xor_b32 v2, s{S_T2}, v2",
              f"s_lshl_b32 s{S_T2}, s{S_MLO}, 8", f"s_add_u32 s{S_T2}, s{S_T2}, s{S_PAR}", f"v_lshl_add_u32 v2, v2, 1, s{S_T2}",
              f"v_sub_u32 v3, 2048, v2", f"v_mov_b32 v4, 1024", f"v_mov_b32 v5, 0xc0000000",
              ("atom", [f"v_cmp_eq_u32 vcc, 0, v2", f"v_cndmask_b32 v4, v3, v4, vcc", f"v_cndmask_b32 v{PC}, 0, v5, vcc"]),
              f"v_mov_b32 v{PC + 1}, v{PC}", f"v_mov_b32 v{PC + 2}, v{PC}", f"v_mov_b32 v{PC + 3}, v{PC}",
              f"v_lshlrev_b32 v{VO[0][0]}, 11, v2", f"v_lshlrev_b32 v{VO[1][0]}, 11, v4",
              f"v_add_u32 v{VO[0][1]}, {32 * 2048}, v{VO[0][0]}", f"v_lshlrev_b32 v{VO[1][1]}, 11, v3",
              f"v_subrev_u32 v{VO[1][1]}, {32 * 2048}, v{VO[1][1]}"]
        X((hs_, 2), L, dl=(K["a2end"], 0))
        for S in range(2):
            for rb in range(4):
                if S == 0:
                    X(at_after(lastpos(S, rb, hd)), send_items(S, rb), dl=(hd, 0))
                else:
                    X(at_after(lastpos(S, rb, hd)), send_items(S, rb), dl=(K["drX"], 0))
        extras.sort(key=lambda x: x["at"])
        L = [f"s_mov_b32 s{S_T2}, {WS_ST}", f"s_mov_b32 s{S_T3}, {AT_PE}"]
        for S in range(2):
            for rb2 in range(2):
                L += [f"v_lshrrev_b32 v2, 8, v{VO[S][rb2]}",
                      ("vm", f"buffer_load_dword v{VR[S][rb2]}, v2, {sr(S_WS, 4)}, s{S_T2} offen offset:4{sc}", "R")]
        L += [f"v_lshrrev_b32 v3, 4, v{VL}", f"v_min_u32 v2, 1, v3", f"v_lshlrev_b32 v2, 30, v2"]
        for rb2 in range(2):
            L += [f"v_lshl_add_u32 v4, v{VO[0][rb2]}, 1, v2"]
            for kind in range(2):
                L += [("vm", f"buffer_load_ushort v{PXR + 4 * kind + 2 * rb2}, v4, {sr(S_CI if kind else S_CR, 4)}, 0 offen offset:1024", "PX")]
        L += [f"s_lshl_b32 s{S_T0}, s{S_NT}, 7", f"s_and_b32 s{S_T1}, s{S_Q}, 1", f"s_lshl_b32 s{S_T1}, s{S_T1}, 6", f"s_add_u32 s{S_T0}, s{S_T0}, s{S_T1}",
              f"s_lshl_b32 s{S_T1}, s{sWN}, 5", f"s_add_u32 s{S_T0}, s{S_T0}, s{S_T1}",
              f"s_mov_b32 s{sLO}, {WS_AT + 32 * 1024}", f"s_mov_b32 s{sHI}, {WS_BT + AT_TP}"]
        for cb2 in range(2):
            L += [f"v_and_b32 v4, 15, v{VL}", f"v_add_u32 v4, s{S_T0}, v4"]
            if cb2:
                L += [f"v_add_u32 v4, 16, v4"]
            mirror_e(L, 4, 5)
            for kind in range(2):
                L += [("vm", f"buffer_load_ushort v{TXR + 4 * kind + 2 * cb2}, v4, {sr(S_WS, 4)}, s{sHI if kind else sLO} offen{sc}", "TX")]
        for i in range(4):
            L += [f"v_mov_b32 v{PXR + 2 * i + 1}, 0", f"v_mov_b32 v{TXR + 2 * i + 1}, 0"]
        L += [f"v_and_b32 v2, 1, v3", f"v_lshlrev_b32 v2, 5, v2", f"v_lshrrev_b32 v3, 1, v3", f"v_lshl_add_u32 v2, v3, 4, v2",
              f"s_lshl_b32 s{S_T0}, s{S_T0}, 1", f"v_add_u32 v2, s{S_T0}, v2"]
        L += [f"v_add_u32 v{VO[S][rb2]}, v2, v{VO[S][rb2]}" for S in range(2) for rb2 in range(2)]
        L += [f"v_and_b32 v2, 3, v{VL}", f"v_max_u32 v2, 1, v2", f"v_xor_b32 v2, s{S_G}, v2", f"v_lshlrev_b32 v{VPA}, 7, v2",
              f"s_lshl_b32 s{sFL}, s{S_NT}, 2", f"s_add_u32 s{sFL}, s{sFL}, {WS_FLAG + 64}",
              f"s_lshr_b32 s{sSG}, s{S_NT}, 2", f"s_lshl_b32 s{sSG}, s{sSG}, 31", f"s_or_b32 s{sSG}, s{sSG}, 1.0"]
        X((K["drX"], 2), L, dl=(H, 0))
        PB(K["drX"], lambda: A.vm_drain())

    def emit_item(it):
        if isinstance(it, tuple):
            if it[0] == "vm":
                A.vm_issue(it[1], it[2])
                return 1
            for t in it[1]:
                A.e(t)
            return len(it[1])
        A.e(it)
        return 0 if it.startswith("s_") else 1

    state = dict(pub=h0 - 2, n=-1)

    def ready(v):
        return v["pub"] <= state["pub"] and (v["prev"] is None or (v["prev"]["last"] <= state["n"] and not v["prev"]["q"]))

    def issue_one(v):
        cost = 0
        if v["dslot"] is not None:
            st_, regs = (tb, ATT) if v["dreg"] == "T" else (cb_, ACD)
            if st_[0] != v["dslot"]:
                for r in regs:
                    A.e(f"v_xor_b32 v{r}, {DX}, v{r}")
                st_[0] = v["dslot"]
                cost += len(regs)
        t_ = v["q"].pop(0)
        if not cfg.get("nord"):
            A.ds_issue(t_, v["key"])
        if not v["q"]:
            pend.remove(v)
        return cost + 1

    def dok(v):
        if v["dslot"] is None:
            return True
        for w in pend:
            if w is v:
                return True
            if w["dreg"] == v["dreg"] and w["dslot"] != v["dslot"]:
                return False
        return True

    def fill(cap, pos):
        while cap > 0:
            v = next((v for v in pend[:40] if ready(v) and dok(v)), None)
            if v is not None:
                cap -= issue_one(v)
                continue
            x = extras[0] if extras and extras[0]["at"] <= pos else None
            if x is None:
                break
            ns = 0
            while x["items"] and cap > 0 and ns < 2:
                c_ = emit_item(x["items"].pop(0))
                cap -= c_
                ns += c_ == 0
            if not x["items"]:
                extras.pop(0)
            if ns >= 2:
                break

    def flush(pos):
        last = -1
        for i_, x in enumerate(extras):
            if x["dl"] is not None and x["dl"] <= pos:
                last = i_
        for _ in range(last + 1):
            x = extras.pop(0)
            for it in x["items"]:
                emit_item(it)

    def barrier(h):
        for fn in prebar.get(h, []):
            fn()
        if cfg.get("fine"):
            if h >= h0:
                A.e(f"v_writelane_b32 v41, s96, {(h - h0) & 63}")
                A.e(f"v_writelane_b32 v42, s98, {(h - h0) & 63}")
            A.e("s_memtime s[96:97]")
        A.e("s_barrier")
        if cfg.get("fine"):
            A.e("s_memtime s[98:99]")
        state["pub"] = h

    if fused and not main:
        A.e(f"v_and_b32 v{VPA2}, 31, v{VL}")
        A.e(f"v_lshlrev_b32 v{VPA2}, 2, v{VPA2}")
        A.vm_issue(pollS, "PS")
        check_poll(A, "S2", pollS, VPV2, "PS")
        A.vm_issue(pollA, "PA")
        check_poll(A, "A2", pollA, VPV, "PA")
        if K["pB"] < h0 + 1:
            A.vm_issue(pollB, "PB")
            check_poll(A, "B2", pollB, VPV, "PB")
        A.e("s_barrier")
    barrier(h0 - 1)
    stamp(A, 1, cfg)
    fill(100, (h0, -1))
    inited = set()
    CAP = cfg.get("cap", 2)
    BA = cfg.get("bar_at", 1)
    for n_, (h, i, (a, t, p)) in enumerate(seq):
        if i == 0:
            A.block()
            if h == hp2:
                inited = set()
                stamp(A, 2, cfg)
            if h == hd:
                inited -= {acc(0, rb, cb) for rb in range(4) for cb in range(4) if rb >= 2 or cb >= 2}
                stamp(A, 3, cfg)
        flush((h, i))
        for k in (t, p):
            if k in vals:
                v = vals[k]
                while v["q"]:
                    assert ready(v), (k, h, i)
                    issue_one(v)
        A.ds_need([t, p])
        treg = vals[t]["reg"]
        preg = PC if p == "PC" else vals[p]["reg"]
        A.e(f"{MF} {vr(a, 4)}, {vr(treg, 4)}, {vr(preg, 4)}, {vr(a, 4) if a in inited else 0}")
        inited.add(a)
        state["n"] = n_
        if i == BA:
            barrier(h)
        fill(CAP if HS[h]["kind"] != "dft" else cfg.get("capd", 3), (h, i))
    A.block()
    flush((10 ** 6, 0))
    for x in extras:
        for it in x["items"]:
            emit_item(it)
    if h1 < H:
        return A
    stamp(A, 5, cfg)
    pollX = f"buffer_load_dword v{VPV}, v{VPA}, {sr(S_WS, 4)}, s{sFL} offen sc1"
    for S in range(2):
        for rb2 in range(2):
            A.vm_issue(f"buffer_load_dwordx4 {vr(XR + 8 * S + 4 * rb2, 4)}, v{VO[S][rb2]}, {sr(S_X, 4)}, 0 offen", "X")
    A.vm_issue(pollX, "PX2")
    A.vm_need(["PX", "TX", "R"])
    for kind in range(2):
        for rb2 in range(2):
            for cb2 in range(2):
                a = acc(0, 2 + rb2, 2 * kind + cb2)
                A.e(f"v_mfma_f32_16x16x16_bf16 {vr(a, 4)}, {vr(TXR + 4 * kind + 2 * cb2, 2)}, {vr(PXR + 4 * kind + 2 * rb2, 2)}, {vr(a, 4)}")
    A.e(f"s_mov_b32 s{sLO}, 0x00003f80")
    A.e(f"s_mov_b32 s{sHI}, 0x3f800000")
    for S in range(2):
        for rb2 in range(2):
            for i in range(8):
                k = acc(S, rb2, 0) + i
                if S == 1 and rb2 == 0:
                    A.e(f"v_fma_f32 v{k}, v{k}, v{VR[S][rb2]}, v{acc(0, 0, 2) + i}")
                else:
                    A.e(f"v_mul_f32 v{k}, v{k}, v{VR[S][rb2]}")
    check_poll(A, "X", pollX, VPV, "PX2")
    stamp(A, 6, cfg)
    RV = [acc(1, 0, 2), acc(1, 0, 3), acc(1, 1, 2), acc(1, 1, 3)] + [acc(1, 2, 0) + 4 * i for i in range(8)]
    rv = {}
    k_ = 0
    for d in range(3):
        A.e(f"s_add_u32 s{50 + d}, s{sXR}, {d * U}")
    for S in range(2):
        for rb2 in range(2):
            for d in range(3):
                rv[S, rb2, d] = RV[k_]
                k_ += 1
                A.vm_issue(f"buffer_load_dwordx4 {vr(rv[S, rb2, d], 4)}, v{VST}, {sr(S_WS, 4)}, s{50 + d} offen offset:{(S * 2 + rb2) * 1024}{cfg.get('rcv_aux', ' sc1')}", ("RV", S, rb2))
    for rb2 in range(2):
        for i in range(8):
            ure, uim = acc(0, 2 + rb2, 0) + i, acc(0, 2 + rb2, 2) + i
            for S in range(2):
                k = acc(S, rb2, 0) + i
                A.e(f"v_add_f32 v{k}, v{k}, v{ure}")
            for S in range(2):
                k = acc(S, rb2, 0) + i
                A.e(f"v_fma_f32 v{k}, {'-' if S == 0 else ''}v{uim}, s{sSG}, v{k}")
    for S in range(2):
        for rb2 in range(2):
            x = XR + 8 * S + 4 * rb2
            A.e(f"v_permlane16_swap_b32 v{x}, v{x + 2}")
            A.e(f"v_permlane16_swap_b32 v{x + 1}, v{x + 3}")
    for S in range(2):
        for rb2 in range(2):
            x = XR + 8 * S + 4 * rb2
            for i in range(8):
                A.e(f"v_dot2c_f32_bf16 v{acc(S, rb2, 0) + i}, s{sHI if i & 1 else sLO}, v{x + (i >> 1)}")
    T = PF
    for S in range(2):
        for rb2 in range(2):
            A.vm_need([("RV", S, rb2)])
            t = T + 8 * ((S * 2 + rb2) & 1)
            r0 = rv[S, rb2, 0]
            for i in range(8):
                A.e(f"v_and_b32 v{t + i}, 0xffff0000, v{r0 + (i >> 1)}" if i & 1 else f"v_lshlrev_b32 v{t + i}, 16, v{r0 + (i >> 1)}")
            for d in (1, 2):
                for i in range(8):
                    A.e(f"v_dot2c_f32_bf16 v{t + i}, s{sHI if i & 1 else sLO}, v{rv[S, rb2, d] + (i >> 1)}")
            k = acc(S, rb2, 0)
            for i in range(8):
                A.e(f"v_fma_f32 v{t + i}, v{t + i}, v{VR[S][rb2]}, v{k + i}")
            for i in range(4):
                A.e(f"v_cvt_pk_bf16_f32 v{k + i}, v{t + 2 * i}, v{t + 2 * i + 1}")
            A.e(f"v_permlane16_swap_b32 v{k}, v{k + 2}")
            A.e(f"v_permlane16_swap_b32 v{k + 1}, v{k + 3}")
            A.vm_issue(f"buffer_store_dwordx4 {vr(k, 4)}, v{VO[S][rb2]}, {sr(S_O, 4)}, 0 offen", "O")
    return A


XA, XB, VW1, VW2, VC = [8, 9, 10, 11], [12, 13, 14, 15], [16, 17, 18, 19], [20, 21, 22, 23], [24, 25, 26, 27]
VHA, VHB, VAT, VWR, VWA = 28, 29, 30, 31, 32
VCS = list(range(33, 41))
CS = list(range(41, 49))
VFA, VFL, VSA, VSD, VFO, VONE = 49, 50, 51, 52, 56, 57
CT = 58
SB = 80
sPW, sKA, sKB, sKW, sW, sHA, sHB, sW2, sD, sDC, sONE, sFLG, sK3 = 40, 41, 42, 43, 44, 45, 46, 47, 48, 49, 50, 51, 52


def producer(cfg, HS, K, h0, h1, fused):
    A = St()
    main = h0 == 0
    NB = cfg.get("nb", 6)
    n, m = cfg.get("n", 4), cfg.get("m", 4)
    sc = " sc1" if fused else ""
    H = K["H"]
    RU, DU = [], []
    for h in range(h0, h1):
        e = HS[h]
        if e["r"] is not None:
            typ = "AT" if e["kind"] == "dft" else ("X" if e["ph"] == 1 else "H") + "AB"[e["S"]]
            minb = -99
            if fused:
                if typ == "HA":
                    minb = (K["drA"] if e["j"] < 2 else K["pA"]) if main else -99
                elif typ == "HB":
                    minb = K["pB"]
                elif typ == "AT":
                    minb = K["pAT"]
            RU.append(dict(h=h, i=e["r"], typ=typ, minb=minb, e=e, ring="R"))
        if e["d"] is not None:
            typ = "C" if e["kind"] == "dft" else ("W1" if e["ph"] == 1 else "W2")
            DU.append(dict(h=h, i=e["d"], typ=typ, minb=-99, e=e, ring="D"))
    db = [(DU[0]["i"] % 6) // 3]
    cb = [db[0]]
    A.e(f"s_sub_u32 s{sPW}, s{S_WAVE}, 4")
    A.e(f"s_lshl_b32 s{sD}, s{sPW}, 12")
    A.e(f"v_lshl_add_u32 v{VWR}, v{VL}, 4, s{sD}")
    A.e(f"s_add_u32 s{sD}, s{sD}, {L_D ^ (DX * db[0])}")
    A.e(f"v_lshrrev_b32 v3, 4, v{VL}")
    A.e(f"v_and_b32 v2, 15, v{VL}")
    A.e(f"v_lshlrev_b32 v4, 1, v3")
    A.e(f"v_xor_b32 v2, v2, v4")
    A.e(f"v_lshlrev_b32 v2, 4, v2")

    def init_w1():
        A.e(f"s_mul_i32 s{S_T0}, s{S_Q}, 7")
        A.e(f"s_add_u32 s{S_T0}, s{S_T0}, s{S_NT}")
        A.e(f"s_lshl_b32 s{S_T0}, s{S_T0}, 8")
        A.e(f"s_mul_i32 s{S_T1}, s{sPW}, {16 * 7168}")
        A.e(f"s_add_u32 s{S_T0}, s{S_T0}, s{S_T1}")
        A.e(f"s_sub_u32 s{S_T0}, s{S_T0}, 256")
        A.e(f"v_mul_u32_u24 v4, 7168, v3")
        A.e(f"v_add3_u32 v{VW1[0]}, v4, v2, s{S_T0}")
        A.e(f"v_add_u32 v{VW1[1]}, {4 * 7168 - 1024}, v{VW1[0]}")
        A.e(f"v_xor_b32 v4, 128, v{VW1[0]}")
        A.e(f"v_add_u32 v{VW1[2]}, {8 * 7168 - 2048}, v4")
        A.e(f"v_add_u32 v{VW1[3]}, {12 * 7168 - 3072}, v4")
        rot = cfg.get("rot", 2)
        A.e(f"s_and_b32 s{sKW}, s2, 7")
        A.e(f"s_mul_i32 s{sKW}, s{sKW}, {rot * 128}")
        A.e(f"s_and_b32 s{sKW}, s{sKW}, 2047")
        A.e(f"s_mov_b32 s{sKA}, s{sKW}")
        A.e(f"s_mov_b32 s{sKB}, s{sKW}")

    def chunk(vd):
        A.e(f"v_and_b32 v{vd}, 7, v{VL}")
        A.e(f"v_lshrrev_b32 v6, 4, v{VL}")
        A.e(f"v_xor_b32 v{vd}, v{vd}, v6")
        A.e(f"v_lshlrev_b32 v{vd}, 4, v{vd}")

    def init_xa():
        A.e(f"v_lshrrev_b32 v4, 3, v{VL}")
        A.e(f"s_lshl_b32 s{S_T0}, s{sPW}, 5")
        A.e(f"v_add_u32 v4, s{S_T0}, v4")
        t_of(A, 4, 4, S_T0)
        chunk(5)
        A.e(f"v_lshl_add_u32 v{XA[0]}, v4, 11, v5")
        A.e(f"v_xor_b32 v6, 64, v{XA[0]}")
        A.e(f"v_add_u32 v{XA[1]}, {16 * 2048}, v6")
        A.e(f"v_add_u32 v{XA[2]}, {32 * 2048}, v{XA[0]}")
        A.e(f"v_add_u32 v{XA[3]}, {48 * 2048}, v6")

    def init_xb():
        mirror_t(A, CT, 4, 6)
        A.e(f"v_lshl_add_u32 v{XB[0]}, v{CT}, 11, v5")
        A.e(f"v_sub_u32 v4, 2048, v4")
        A.e(f"v_lshl_add_u32 v4, v4, 11, v5")
        A.e(f"v_xor_b32 v6, 64, v4")
        A.e(f"v_subrev_u32 v{XB[1]}, {16 * 2048}, v6")
        A.e(f"v_subrev_u32 v{XB[2]}, {32 * 2048}, v4")
        A.e(f"v_subrev_u32 v{XB[3]}, {48 * 2048}, v6")

    def init_p1_rest():
        A.e(f"v_bfe_u32 v4, v{VL}, 2, 2")
        A.e(f"v_bfe_u32 v5, v{VL}, 4, 1")
        A.e(f"v_lshl_add_u32 v6, v5, 3, v4")
        A.e(f"v_lshl_add_u32 v4, v5, 2, v4")
        A.e(f"v_lshrrev_b32 v5, 5, v{VL}")
        A.e(f"v_lshl_add_u32 v6, v5, 2, v6")
        A.e(f"v_lshlrev_b32 v6, 8, v6")
        A.e(f"v_lshl_add_u32 v6, v4, 5, v6")
        A.e(f"v_and_b32 v5, 3, v{VL}")
        A.e(f"v_lshl_add_u32 v6, v5, 3, v6")
        A.e(f"s_lshl_b32 s{S_T0}, s{sPW}, 12")
        A.e(f"s_add_u32 s{S_T0}, s{S_T0}, {L_D ^ (DX * cb[0])}")
        A.e(f"v_add_u32 v{VCS[0]}, s{S_T0}, v6")
        for c in range(1, 8):
            A.e(f"v_xor_b32 v{VCS[c]}, {c << 5}, v{VCS[0]}")
        for c in CS:
            A.e(f"v_mov_b32 v{c}, 0")
        A.e(f"s_mov_b32 s{sONE}, 0x3f803f80")
        A.e(f"v_and_b32 v{VFA}, 31, v{VL}")
        A.e(f"v_lshlrev_b32 v{VFA}, 2, v{VFA}")
        A.e(f"s_and_b32 s{S_T0}, s{sPW}, 1")
        A.e(f"s_lshl_b32 s{S_T0}, s{S_T0}, 6")
        A.e(f"v_add_u32 v4, s{S_T0}, v{VL}")
        t_of(A, 4, 4, S_T0)
        mirror_t(A, 5, 4, 6)
        A.e(f"s_cmp_ge_u32 s{sPW}, 2")
        A.e(f"s_cselect_b64 vcc, -1, 0")
        A.e(f"v_cndmask_b32 v4, v4, v5, vcc")
        A.e(f"v_lshlrev_b32 v{VSA}, 3, v4")

    def init_p2():
        A.e(f"v_lshrrev_b32 v3, 4, v{VL}")
        A.e(f"v_and_b32 v2, 15, v{VL}")
        A.e(f"v_lshlrev_b32 v4, 1, v3")
        A.e(f"v_xor_b32 v2, v2, v4")
        A.e(f"v_lshlrev_b32 v2, 4, v2")
        A.e(f"s_and_b32 s{S_T0}, s{S_Q}, 1")
        A.e(f"s_lshl_b32 s{S_T0}, s{S_T0}, 7")
        A.e(f"v_xor_b32 v2, s{S_T0}, v2")
        A.e(f"s_mul_i32 s{S_T0}, s{S_Q}, {14 * 64}")
        A.e(f"s_lshr_b32 s{S_T1}, s{sPW}, 1")
        A.e(f"s_lshl_b32 s{S_T1}, s{S_T1}, 5")
        A.e(f"s_add_u32 s{S_T0}, s{S_T0}, s{S_T1}")
        A.e(f"s_and_b32 s{S_T1}, s{sPW}, 1")
        A.e(f"s_lshl_b32 s{S_T1}, s{S_T1}, 3")
        A.e(f"s_add_u32 s{S_T0}, s{S_T0}, s{S_T1}")
        A.e(f"s_lshl_b32 s{S_T0}, s{S_T0}, 11")
        A.e(f"s_lshl_b32 s{S_T1}, s{S_NT}, 8")
        A.e(f"s_add_u32 s{S_T0}, s{S_T0}, s{S_T1}")
        A.e(f"v_lshl_add_u32 v4, v3, 11, v2")
        A.e(f"v_add_u32 v{VW2[0]}, s{S_T0}, v4")
        A.e(f"v_add_u32 v{VW2[1]}, {16 * 2048 - 1024}, v{VW2[0]}")
        A.e(f"v_xor_b32 v4, 128, v{VW2[0]}")
        A.e(f"v_add_u32 v{VW2[2]}, {4 * 2048 - 2048}, v4")
        A.e(f"v_add_u32 v{VW2[3]}, {20 * 2048 - 3072}, v4")
        A.e(f"s_lshl_b32 s{S_T0}, s{S_PAR}, 2")
        A.e(f"s_add_u32 s{S_T0}, s{S_T0}, s{S_MLO}")
        A.e(f"s_mul_i32 s{S_T0}, s{S_T0}, 112")
        A.e(f"s_mul_i32 s{S_T1}, s{S_Q}, 14")
        A.e(f"s_add_u32 s{S_T0}, s{S_T0}, s{S_T1}")
        A.e(f"s_lshl_b32 s{S_T0}, s{S_T0}, 14")
        A.e(f"v_add_u32 v{VHA}, s{S_T0}, v{VWR}")
        A.e(f"v_add_u32 v{VHB}, {56 * U}, v{VHA}")
        A.e(f"s_max_u32 s{S_T0}, s{S_NT}, 1")
        A.e(f"s_sub_u32 s{S_T0}, s{S_T0}, 1")
        A.e(f"s_lshl_b32 s{sHA}, s{S_T0}, 15")
        A.e(f"s_mov_b32 s{sW2}, s{sHA}")
        A.e(f"s_add_u32 s{sHB}, s{sHA}, {m * U}")
        A.e(f"s_sub_u32 s{S_T0}, s{sHB}, {14 * U}")
        A.e(f"s_cselect_b32 s{sHB}, s{sHB}, s{S_T0}")
        A.e(f"s_lshl_b32 s{sFLG}, s{S_G}, 7")
        A.e(f"s_lshl_b32 s{S_T0}, s{S_NT}, 2")
        A.e(f"s_add_u32 s{sFLG}, s{sFLG}, s{S_T0}")
        A.e(f"s_add_u32 s{sFLG}, s{sFLG}, {WS_FLAG}")
        A.e(f"v_add_u32 v4, s{sPW}, v{VL}")
        A.e(f"v_min_u32 v4, 1, v4")
        A.e(f"v_lshlrev_b32 v{VFO}, 30, v4")
        A.e(f"v_mov_b32 v{VONE}, 1")

    def init_dft():
        A.e(f"s_cmp_ge_u32 s{sPW}, 2")
        A.e(f"s_cselect_b32 s{S_CS}, s{S_CI}, s{S_CR}")
        A.e(f"s_cselect_b32 s{S_CS + 1}, s{S_CI + 1}, s{S_CR + 1}")
        A.e(f"s_mov_b32 s{S_CS + 2}, s{S_CR + 2}")
        A.e(f"s_mov_b32 s{S_CS + 3}, s{S_CR + 3}")
        A.e(f"s_and_b32 s{S_T1}, s{sPW}, 1")
        A.e(f"s_lshl_b32 s{S_T0}, s{S_T1}, 5")
        A.e(f"v_lshrrev_b32 v4, 3, v{VL}")
        A.e(f"v_add_u32 v4, s{S_T0}, v4")
        t_of(A, 4, 4, S_T0)
        chunk(5)
        A.e(f"v_lshl_add_u32 v{VC[0]}, v4, 12, v5")
        A.e(f"v_xor_b32 v6, 64, v{VC[0]}")
        A.e(f"v_add_u32 v{VC[1]}, {16 * 4096 - 1024}, v6")
        A.e(f"v_add_u32 v{VC[2]}, {32 * 4096 - 2048}, v{VC[0]}")
        A.e(f"v_add_u32 v{VC[3]}, {48 * 4096 - 3072}, v6")
        A.e(f"v_and_b32 v4, 31, v{VL}")
        A.e(f"v_lshl_add_u32 v4, v4, 1, s{S_T1}")
        A.e(f"v_lshrrev_b32 v3, 5, v{VL}")
        A.e(f"v_and_b32 v5, 15, v4")
        A.e(f"v_lshl_add_u32 v5, v3, 4, v5")
        A.e(f"v_lshlrev_b32 v5, 4, v5")
        A.e(f"v_lshrrev_b32 v6, 4, v4")
        A.e(f"v_lshl_add_u32 v5, v6, 11, v5")
        A.e(f"s_lshr_b32 s{S_T0}, s{sPW}, 1")
        A.e(f"s_lshl_b32 s{S_T1}, s{S_T0}, 13")
        A.e(f"v_add_u32 v{VWA}, s{S_T1}, v5")
        A.e(f"s_lshl_b32 s{S_T1}, s{S_NT}, 7")
        A.e(f"s_and_b32 s{S_T2}, s{S_Q}, 1")
        A.e(f"s_lshl_b32 s{S_T2}, s{S_T2}, 6")
        A.e(f"s_add_u32 s{S_T1}, s{S_T1}, s{S_T2}")
        A.e(f"v_add_u32 v4, s{S_T1}, v4")
        A.e(f"s_mov_b32 s{S_T3}, {AT_PE}")
        L = []
        mirror_e(L, 4, 5)
        for t in L:
            A.e(t)
        A.e(f"v_lshl_add_u32 v4, v3, 9, v4")
        A.e(f"s_lshl_b32 s{S_T0}, s{S_T0}, 21")
        A.e(f"s_mul_i32 s{S_T1}, s{S_PAR}, {AT_TP}")
        A.e(f"s_add_u32 s{S_T0}, s{S_T0}, s{S_T1}")
        A.e(f"s_add_u32 s{S_T0}, s{S_T0}, {WS_AT}")
        A.e(f"v_add_u32 v{VAT}, s{S_T0}, v4")
        A.e(f"s_mov_b32 s{sDC}, 0")
        A.e(f"s_mov_b32 s{sK3}, 0")
        assert WS_BT - WS_AT == 1 << 21

    ax, aw1, aw2, ac = cfg.get("auxX", ""), cfg.get("auxW1", ""), cfg.get("auxW2", ""), cfg.get("auxC", "")

    def wrap14(s):
        return [f"s_add_u32 s{s}, s{s}, {U}", f"s_cmp_eq_u32 s{s}, {14 * U}", f"s_cselect_b32 s{s}, 0, s{s}"]

    def mkpieces(u):
        typ = u["typ"]
        pre, post = [], []
        if u["ring"] == "R":
            b = SB + 16 * (u["i"] % NB)
            if typ[0] == "X":
                V, s = (XA, sKA) if typ == "XA" else (XB, sKB)
                vm = [f"buffer_load_dwordx4 {vr(b + 4 * p, 4)}, v{V[p]}, {sr(S_X, 4)}, s{s} offen{ax}" for p in range(4)]
                post = [f"s_add_u32 s{s}, s{s}, 128", f"s_and_b32 s{s}, s{s}, 2047"]
            elif typ[0] == "H":
                V, s = (VHA, sHA) if typ == "HA" else (VHB, sHB)
                vm = [f"buffer_load_dwordx4 {vr(b + 4 * p, 4)}, v{V}, {sr(S_WS, 4)}, s{s} offen offset:{p * 1024}{sc}" for p in range(4)]
                post = wrap14(s)
            else:
                vm = [f"buffer_load_dwordx4 {vr(b + 4 * p, 4)}, v{VAT}, {sr(S_WS, 4)}, s{sK3} offen offset:{p * 1024}{sc}" for p in range(4)]
                post = [f"s_add_u32 s{sK3}, s{sK3}, 4096"]
            if cfg.get("rdma"):
                import re
                vm = [re.sub(r"dwordx4 v\[\d+:\d+\], ", "dwordx4 ", t) + " lds" for t in vm]
                if typ[0] == "X":
                    return [([f"s_lshl_b32 s{S_T0}, s{sPW}, 12", f"s_add_u32 m0, s{S_T0}, {(u['i'] % 3) * U + p * 1024}"], vm[p], post if p == 3 else []) for p in range(4)]
                return [([f"s_lshl_b32 s{S_T0}, s{sPW}, 12", f"s_add_u32 m0, s{S_T0}, {(u['i'] % 3) * U}"], vm[p], post if p == 3 else []) for p in range(4)]
        else:
            if (u["i"] % 6) // 3 != db[0]:
                pre.append(f"s_xor_b32 s{sD}, s{sD}, {DX}")
                db[0] ^= 1
            pre.append(f"s_add_u32 m0, s{sD}, {(u['i'] % 3) * U}")
            if typ == "W1":
                if u["e"].get("rewind"):
                    pre += [f"s_sub_u32 s{sKW}, s{sKW}, {n * 128}", f"s_and_b32 s{sKW}, s{sKW}, 2047"]
                pre.append(f"s_mul_i32 s{sW}, s{sKW}, {64 * 7168 // 128}")
                V, srd_, s, aux = VW1, S_W1, sW, aw1
                post = [f"s_add_u32 s{sKW}, s{sKW}, 128", f"s_and_b32 s{sKW}, s{sKW}, 2047"]
            elif typ == "W2":
                pre.append(f"s_lshl_b32 s{sW}, s{sW2}, 3")
                V, srd_, s, aux = VW2, S_W2, sW, aw2
                post = wrap14(sW2)
            else:
                V, srd_, s, aux = VC, S_CS, sDC, ac
                post = [f"s_add_u32 s{sDC}, s{sDC}, 128"]
            vm = [f"buffer_load_dwordx4 v{V[p]}, {sr(srd_, 4)}, s{s} offen offset:{p * 1024}{aux} lds" for p in range(4)]
        if cfg.get("rdma"):
            return [(pre if p == 0 else [f"s_add_u32 m0, s{sD}, {(u['i'] % 3) * U}"], vm[p], post if p == 3 else []) for p in range(4)]
        return [(pre if p == 0 else [], vm[p], post if p == 3 else []) for p in range(4)]

    byR = {u["i"]: u for u in RU}
    byD = {u["i"]: u for u in DU}
    qR, qD = list(RU), list(DU)

    def can(u, b):
        if "pcs" in u:
            return True
        if u["minb"] > b:
            return False
        if u["ring"] == "R":
            p = byR.get(u["i"] - NB)
            return p is None or p["h"] - 2 < b
        p = byD.get(u["i"] - 6)
        return p is None or p["h"] + 1 <= b

    def next_piece(b, only=None):
        c = [q[0] for q in ((qD, qR) if only is None else (only,)) if q and can(q[0], b)]
        if not c:
            return False
        u = min(c, key=lambda u: u["h"] - (cfg.get("dbias", 0) if u["ring"] == "D" else 0))
        if "pcs" not in u:
            u["pcs"] = mkpieces(u)
        pre, vm, post = u["pcs"].pop(0)
        for t in pre:
            A.e(t)
        if not (cfg.get("novm") and u["ring"] in cfg["novm"]):
            A.vm_issue(vm, (u["ring"], u["i"]))
        for t in post:
            A.e(t)
        if not u["pcs"]:
            (qR if u["ring"] == "R" else qD).pop(0)
            u["iss"] = True
        return True

    def issue_some(b, lim, only=None):
        while lim > 0 and next_piece(b, only):
            lim -= 1

    def due(hh):
        return sum(len(u.get("pcs", [0] * 4)) for q in (qR, qD) for u in q if u["h"] <= hh)

    def pub_w(hh):
        F = []
        for u in RU:
            if u["h"] == hh:
                b = SB + 16 * (u["i"] % NB)

                def need(u=u):
                    assert u.get("iss"), ("not issued", u)
                    A.vm_need([("R", u["i"])])
                F.append((0, need))
                for p in range(4):
                    if u["typ"] == "AT":
                        t = f"ds_write_b128 v{VWA}, {vr(b + 4 * p, 4)} offset:{(u['i'] % 3) * U + p * 512}"
                    else:
                        t = f"ds_write_b128 v{VWR}, {vr(b + 4 * p, 4)} offset:{(u['i'] % 3) * U + p * 1024}"
                    if not cfg.get("now"):
                        F.append((26, lambda t=t: A.ds_issue(t, "w")))
        return F

    def pub_d(hh):
        for u in DU:
            if u["h"] == hh:
                assert u.get("iss"), ("not issued", u)
                A.vm_need([("D", u["i"])])

    def colsum(u):
        F = []
        if cfg.get("nocs"):
            return F
        if (u["i"] % 6) // 3 != cb[0]:
            for c in VCS:
                F.append((8, lambda c=c: A.e(f"v_xor_b32 v{c}, {DX}, v{c}")))
            cb[0] ^= 1
        for c in range(8):
            F.append((8, lambda c=c: A.ds_issue(f"ds_read_b64_tr_b16 {vr(CT + 2 * c, 2)}, v{VCS[c]} offset:{(u['i'] % 3) * U}", ("cs", c))))
        G = []
        for c0 in (0, 4):
            G.append((0, lambda c0=c0: A.ds_need([("cs", c0 + 3)])))
            for k in range(2):
                for c in range(c0, c0 + 4):
                    G.append((10, lambda c=c, k=k: A.e(f"v_dot2c_f32_bf16 v{CS[c]}, s{sONE}, v{CT + 2 * c + k}")))
        return F, G

    def tm_write():
        A.e(f"s_lshl_b32 s{S_T0}, s{sPW}, 2")
        A.e(f"s_add_u32 s{S_T0}, s{S_T0}, {L_TM}")
        A.e(f"v_lshl_add_u32 v4, v{VL}, 4, s{S_T0}")
        for c in range(8):
            A.e(f"v_cvt_pk_bf16_f32 v{CT + c}, -v{CS[c]}, -v{CS[c]}")
        for c in range(8):
            A.e(f"v_and_b32 v{CT + c}, 0xffff0000, v{CT + c}")
        for c in range(8):
            A.e(f"v_sub_f32 v{CS[c]}, -v{CS[c]}, v{CT + c}")
        for c in range(8):
            A.e(f"v_cvt_pk_bf16_f32 v{CT + c}, v{CS[c]}, v{CT + c}")
        for c in range(8):
            A.ds_issue(f"ds_write_b32 v4, v{CT + c} offset:{c * 1024}", "w")

    pollS = f"buffer_load_dword v{VFL}, v{VFA}, {sr(S_DBG, 4)}, 0 offen sc1"
    hm = K["mini"]
    bS = hm - cfg.get("stat_lead", 11)

    def flag(off):
        A.vm_issue(f"buffer_store_dword v{VONE}, v{VFO}, {sr(S_WS, 4)}, s{sFLG} offen offset:{off} sc1", "F")

    ramp = cfg.get("ramp", [12, 12, 8])
    lim = cfg.get("lim", 7)
    if main:
        init_w1()
        issue_some(-99, 4)
        init_xa()
        issue_some(-99, 4)
        init_xb()
        issue_some(-99, ramp[0] - 8)
        init_p1_rest()
        if h1 > K["p2"]:
            init_p2()
            init_dft()
    else:
        init_p2()
        lead = cfg.get("lead2", 3)
        if fused:
            issue_some(-99, 4 * lead, qD)
            init_dft()
            A.e("s_barrier")
            issue_some(h0 - 3, ramp[0])
        else:
            issue_some(-99, ramp[0])
            init_dft()
    stamp(A, 1, cfg)
    for c_, fn in pub_w(h0):
        fn()
    pub_d(h0)
    A.ds_drain()
    last = h1 - 1
    for b in range(h0 - 1, last + 1):
        A.block()
        A.e("s_barrier")
        if cfg.get("fine"):
            A.e("s_memtime s[96:97]")
        if fused:
            if main and b == K["drA"]:
                flag(0)
            if main and b == K["drB"]:
                flag(32)
        if h1 == H and b == K["drX"]:
            flag(64)
        cu = [u for u in DU if u["e"].get("cs") and u["h"] == b + 1]
        F = pub_w(b + 2)
        if cu and not cfg.get("nocs"):
            f_, g_ = colsum(cu[0])
            F = f_ + F + g_ if cfg.get("csfirst", True) else F + f_ + g_
        k = b - (h0 - 1) + 1
        du = due(b + 2)
        nv = max(ramp[k] if k < len(ramp) else lim, du) - du
        issue_some(b, du)
        tot = sum(c_ for c_, _ in F)
        gap = cfg.get("gap", 60)
        done = 0
        acc_ = 0
        for c_, fn in F:
            while done < nv and acc_ >= done * gap:
                next_piece(b)
                done += 1
            fn()
            acc_ += c_
        issue_some(b, nv - done)
        if cfg.get("fine"):
            A.e("s_memtime s[98:99]")
        if main:
            if b == bS:
                A.vm_issue(pollS, "PS")
            if b == bS + 4:
                check_poll(A, "S", pollS, VFL, "PS")
                A.e(f"s_mov_b32 s{S_T0}, {WS_ST}")
                A.vm_issue(f"buffer_load_dword v{VSD}, v{VSA}, {sr(S_WS, 4)}, s{S_T0} offen sc1", "SD")
            if b == bS + 8:
                A.e(f"s_lshl_b32 s{S_T0}, s{sPW}, 10")
                A.e(f"s_add_u32 s{S_T0}, s{S_T0}, {L_PM}")
                A.e(f"v_lshl_add_u32 v4, v{VL}, 4, s{S_T0}")
                A.vm_need(["SD"])
                for i in range(1, 4):
                    A.e(f"v_mov_b32 v{VSD + i}, v{VSD}")
                A.ds_issue(f"ds_write_b128 v4, {vr(VSD, 4)}", "w")
        if cu and (b == hm - 2 or (n == 0 and b == hm - 3)):
            tm_write()
        pub_d(b + 2)
        if A.ds:
            A.ds_drain()
        if cfg.get("fine"):
            A.e("s_memtime s[100:101]")
            A.e("s_waitcnt lgkmcnt(0)")
            for i_ in range(3):
                A.e(f"v_writelane_b32 v{253 + i_}, s{96 + 2 * i_}, {(b + 1 - h0) & 63}")
        if b == K["p2"]:
            stamp(A, 2, cfg)
        if b == K["dft"]:
            stamp(A, 3, cfg)
    A.block()
    assert not qR and not qD
    return A


def common(A, cfg, end):
    A.e("s_cmp_ge_u32 s2, 256")
    A.e(f"s_cbranch_scc1 {end}")
    A.e("s_load_dwordx2 s[4:5], s[0:1], 0")
    A.e("s_load_dwordx4 s[88:91], s[0:1], 48")
    A.e("s_load_dwordx2 s[6:7], s[0:1], 80")
    A.e("s_load_dwordx4 s[8:11], s[0:1], 8")
    A.e("s_load_dwordx4 s[12:15], s[0:1], 24")
    A.e("s_load_dwordx4 s[92:95], s[0:1], 64")
    A.e("v_lshrrev_b32 v1, 6, v0")
    A.e(f"s_and_b32 s{S_Q}, s2, 3")
    A.e(f"v_readfirstlane_b32 s{S_WAVE}, v1")
    A.e(f"s_bfe_u32 s{S_PAR}, s2, 0x10002")
    A.e("v_and_b32 v1, 63, v0")
    A.e(f"s_bfe_u32 s{S_MLO}, s2, 0x20003")
    A.e(f"s_lshr_b32 s{S_NT}, s2, 5")
    A.e(f"s_and_b32 s{S_G}, s2, 31")
    if cfg.get("stamps"):
        A.e(f"v_mov_b32 v{STAMP_V}, 0")
    A.e("s_waitcnt lgkmcnt(0)")
    srd(A, S_W1, 88, 1024 * 3584 * 2)
    srd(A, S_X, 4, 2048 * 1024 * 2)
    srd(A, S_WS, 6, WS_BYTES)
    srd(A, S_W2, 90, 1024 * 3584 * 2)
    srd(A, S_DBG, 94, 256)
    srd(A, S_O, 92, 2048 * 1024 * 2)
    srd(A, S_CR, 8, 2048 * 2048 * 2)
    srd(A, S_CI, 10, 2048 * 2048 * 2)
    k1h.stamp(A, 0, enable=cfg.get("stamps"))


def fin(A, cfg, off):
    if cfg.get("stamps"):
        A.e("s_waitcnt vmcnt(0)")
        k1h.stamp(A, 4, enable=True)
        A.e("s_getreg_b32 s61, hwreg(HW_REG_XCC_ID)")
        A.e(f"v_writelane_b32 v{STAMP_V}, s61, 7")
        A.e(f"s_lshl_b32 s60, s2, 3")
        A.e(f"s_add_u32 s60, s60, s{S_WAVE}")
        A.e(f"s_lshl_b32 s60, s60, 8")
        A.e(f"s_add_u32 s60, s60, {WS_DBG + off}")
        A.e("v_and_b32 v1, 63, v0")
        A.e("v_lshlrev_b32 v1, 2, v1")
        A.e(f"buffer_store_dword v{STAMP_V}, v1, {sr(S_WS, 4)}, s60 offen")
        if cfg.get("fine"):
            for i_, r in enumerate((41, 42, 253, 254, 255)):
                A.e(f"s_add_u32 s60, s60, {2 << 20}")
                A.e(f"buffer_store_dword v{r}, v1, {sr(S_WS, 4)}, s60 offen")


def zero_line(A):
    A.e(f"v_and_b32 v2, 0x17, v{VL}")
    A.e(f"v_cmp_eq_u32 vcc, 0, v2")
    A.e(f"v_cndmask_b32 v2, 0, 1, vcc")
    A.e(f"v_lshrrev_b32 v4, 5, v0")
    A.e(f"v_min_u32 v4, 1, v4")
    A.e(f"v_lshlrev_b32 v3, 2, v{VL}")
    A.e(f"v_lshl_add_u32 v3, v4, 30, v3")
    A.e(f"s_lshl_b32 s{S_T0}, s{S_G}, 7")
    A.e(f"s_add_u32 s{S_T0}, s{S_T0}, {WS_FLAG}")
    A.vm_issue(f"buffer_store_dword v2, v3, {sr(S_WS, 4)}, s{S_T0} offen sc1", "Z")


def join(name, M, Jn, rl):
    bm, bj = M.blocks(), Jn.blocks()
    k = 0
    while k < min(len(bm), len(bj)) - 1 and bm[len(bm) - 1 - k] == bj[len(bj) - 1 - k]:
        k += 1
    lab = f"L_{name}_join"
    main = roll(bm[:len(bm) - k], name + "a", rl) + [lab + ":"] + roll(bm[len(bm) - k:], name + "b", rl)
    pre = roll(bj[:len(bj) - k], name + "c", rl) + [f"    s_branch {lab}"]
    return main, pre, len(bj) - k


HEADER = """; out = x + Re(DFT_seq(DFT_hid(LN x))) + relu(LN(x) w1) w2      (generated code)
; Symmetries of the constant DFT matrices that are used (C = seq tables, D = hidden tables):
;   Dr[e,1024-d]=Dr[e,d], Di[e,1024-d]=-Di[e,d], D[e,512+-d]=(-1)^e-type mirror, same mirrors in e;
;   Cr[t,2048-s]=Cr[t,s], Ci[t,2048-s]=-Ci[t,s], C[t,1024+-s]=(-1)^t-type mirror, same mirrors in t.
; folded (sums / differences of mirrored samples) before each product."""


def build(cfg):
    import k1s
    fused = cfg.get("fused", True)
    rl = cfg.get("roll", True)
    HS, K = make_sched(cfg)
    A = Asm()
    names = ["pk_kernel"] if fused else ["k1_kernel", "k2_kernel"]
    for nm in names:
        A.raw(f"; @launch kernel={nm} grid=(256,1,1) block=(512,1,1) lds=163840")
    for l in HEADER.split("\n"):
        A.raw(l)
    A.raw('.amdgcn_target "amdgcn-amd-amdhsa--gfx950"')
    A.raw(".text")
    scfg = dict(cfg)
    scfg["zflag"] = False
    scfg.setdefault("s_store_aux", " sc1")
    H, hp2 = K["H"], K["p2"]
    if fused:
        kernel_begin(A, names[0])
        common(A, cfg, "L_end")
        C, P = consumer(cfg, HS, K, 0, H, True), producer(cfg, HS, K, 0, H, True)
        C2, P2 = consumer(cfg, HS, K, hp2, H, True), producer(cfg, HS, K, hp2, H, True)
        cm, cp, nc = join("c", C, C2, rl)
        pm, pp, np_ = join("p", P, P2, rl)
        print("join after blocks: consumer", nc, "producer", np_, K, file=sys.stderr)
        A.e(f"s_cmp_eq_u32 s{S_NT}, 0")
        A.e("s_cbranch_scc1 L_special")
        A.e(f"s_cmp_ge_u32 s{S_WAVE}, 4")
        A.e("s_cbranch_scc1 L_prod")
        A.L += cm
        A.e("s_branch L_fin")
        A.label("L_prod")
        A.L += pm
        A.e("s_branch L_fin")
        A.label("L_special")
        zero_line(A)
        k1s.k1_special(A, scfg)
        A.e("s_waitcnt vmcnt(0) lgkmcnt(0)")
        A.e("s_barrier")
        A.e(f"v_min_u32 v2, 1, v0")
        A.e(f"v_lshlrev_b32 v2, 30, v2")
        A.e(f"v_mov_b32 v3, 1")
        A.e(f"s_lshl_b32 s{S_T0}, s{S_G}, 2")
        A.e(f"buffer_store_dword v3, v2, {sr(S_DBG, 4)}, s{S_T0} offen offset:128 sc1")
        A.e(f"s_cmp_ge_u32 s{S_WAVE}, 4")
        A.e("s_cbranch_scc1 L_prod2")
        A.L += cp
        A.label("L_prod2")
        A.L += pp
        ool = {}
        for s in (C, P, C2, P2):
            ool.update(s.ool)
        for L in ool.values():
            A.L += L
        A.label("L_fin")
        fin(A, cfg, 0)
        A.label("L_end")
        A.e("s_endpgm")
    else:
        for ki, (h0, h1) in enumerate(((0, hp2), (hp2, H))):
            nm = names[ki]
            kernel_begin(A, nm)
            common(A, cfg, f"L_end{ki}")
            C, P = consumer(cfg, HS, K, h0, h1, False), producer(cfg, HS, K, h0, h1, False)
            if ki == 0:
                A.e(f"s_cmp_eq_u32 s{S_NT}, 0")
                A.e("s_cbranch_scc1 L_special")
            A.e(f"s_cmp_ge_u32 s{S_WAVE}, 4")
            A.e(f"s_cbranch_scc1 L_prod{ki}")
            A.L += roll(C.blocks(), f"c{ki}", rl)
            A.e(f"s_branch L_fin{ki}")
            A.label(f"L_prod{ki}")
            A.L += roll(P.blocks(), f"p{ki}", rl)
            A.e(f"s_branch L_fin{ki}")
            for s in (C, P):
                for L in s.ool.values():
                    A.L += L
            if ki == 0:
                A.label("L_special")
                zero_line(A)
                k1s.k1_special(A, scfg)
            A.label(f"L_fin{ki}")
            fin(A, cfg, ki << 20)
            A.label(f"L_end{ki}")
            A.e("s_endpgm")
    A.raw('.section .rodata,"a"')
    for nm in names:
        descriptor(A, nm)
    return A.text(cfg.get("hv", False))


if __name__ == "__main__":
    cfg = dict(stamps=("stamps" in sys.argv))
    for a in sys.argv[2:]:
        if "=" in a:
            k, v = a.split("=", 1)
            try:
                v = eval(v)
            except Exception:
                pass
            cfg[k] = v
    open(sys.argv[1], "w").write(build(cfg))
```
